```python
import torch

def _softmax(x, axis=-1):
    return torch.softmax(x, dim=axis)
def _gelu(x):
    return torch.nn.functional.gelu(x, approximate="tanh")
def _silu(x):
    return torch.nn.functional.silu(x)
def _sigmoid(x):
    return torch.sigmoid(x)
def _layernorm(x, axis=-1, eps=1e-5):
    m = x.mean(dim=axis, keepdim=True)
    v = x.var(dim=axis, keepdim=True, unbiased=False)
    return (x - m) / torch.sqrt(v + eps)
def _scatter_add(tgt, idx, src, axis=0):
    return tgt.clone().index_add_(axis, idx, src)
def _segment_sum(src, seg, n):
    out = torch.zeros((n,) + src.shape[1:], dtype=src.dtype)
    return out.index_add_(0, seg, src)
def _pad(x, pw):
    flat = tuple(v for pair in reversed(pw) for v in pair)
    return torch.nn.functional.pad(x, flat)

kernel_name = 'concat_heads__mha_block_cached__gqa_block_cached__decode'

def setup_inputs():

    _w = (lambda a: (lambda t: t.to(torch.bfloat16) if t.is_floating_point() else t)(torch.as_tensor(a)))
    def _A_setup():
        B, Sq, D = 1, 1, 576
        H, Sk, Dh = 32, 65536, 128
        return {
            "x": _w((lambda *s: torch.randn(*s, dtype=torch.bfloat16) * 0.8)(B, Sq, D)),
            "k_cache": _w((lambda *s: torch.randn(*s, dtype=torch.bfloat16) * 1.6)(B, H, Sk, Dh)),
            "v_cache": _w((lambda *s: torch.randn(*s, dtype=torch.bfloat16) * 0.2)(B, H, Sk, Dh)),
            "wq": _w((lambda *s: torch.randn(*s, dtype=torch.bfloat16) * 1.6)(D, H * Dh) * (D ** -0.5)),
            "wo": _w((lambda *s: torch.randn(*s, dtype=torch.bfloat16) * 0.2)(H * Dh, D) * ((H * Dh) ** -0.5)),
        }
    _A_in = _A_setup()

    def _B_setup():
        B, Sq, D = 1, 1, 576
        Hq, Hkv, Sk, Dh = 32, 16, 65536, 128
        assert Hq % Hkv == 0, (Hq, Hkv)
        return {
            "x": _w((lambda *s: torch.randn(*s, dtype=torch.bfloat16) * 0.8)(B, Sq, D)),
            "k_cache": _w((lambda *s: torch.randn(*s, dtype=torch.bfloat16) * 1.6)(B, Hkv, Sk, Dh)),
            "v_cache": _w((lambda *s: torch.randn(*s, dtype=torch.bfloat16) * 0.2)(B, Hkv, Sk, Dh)),
            "wq": _w((lambda *s: torch.randn(*s, dtype=torch.bfloat16) * 1.6)(D, Hq * Dh) * (D ** -0.5)),
            "wo": _w((lambda *s: torch.randn(*s, dtype=torch.bfloat16) * 0.2)(Hq * Dh, D) * ((Hq * Dh) ** -0.5)),
        }
    _B_in = _B_setup()

    return {
        "A_x": _A_in["x"],
        "A_k_cache": _A_in["k_cache"],
        "A_v_cache": _A_in["v_cache"],
        "A_wq": _A_in["wq"],
        "A_wo": _A_in["wo"],
        "B_x": _B_in["x"],
        "B_k_cache": _B_in["k_cache"],
        "B_v_cache": _B_in["v_cache"],
        "B_wq": _B_in["wq"],
        "B_wo": _B_in["wo"],
    }

def reference(A_x, A_k_cache, A_v_cache, A_wq, A_wo, B_x, B_k_cache, B_v_cache, B_wq, B_wo):
    def _A_ref(x, k_cache, v_cache, wq, wo):
        B, Sq, D = x.shape
        H, Dh = 32, 128
        q = (lambda x, *d: x.permute(*d))((x @ wq).reshape(B, Sq, H, Dh), 0, 2, 1, 3)
        scores = torch.einsum("bhqd,bhkd->bhqk", q, k_cache) * (Dh ** -0.5)
        p = _softmax(scores, axis=-1)
        o = torch.einsum("bhqk,bhkd->bhqd", p, v_cache)
        return (lambda x, *d: x.permute(*d))(o, 0, 2, 1, 3).reshape(B, Sq, H * Dh) @ wo

    def _B_ref(x, k_cache, v_cache, wq, wo):
        B, Sq, D = x.shape
        Hq, Dh = 32, 128
        Hkv = k_cache.shape[1]
        rep = Hq // Hkv
        q = (lambda x, *d: x.permute(*d))((x @ wq).reshape(B, Sq, Hq, Dh), 0, 2, 1, 3)
        k = (lambda x, n, axis: torch.repeat_interleave(x, n, dim=axis))(k_cache, rep, axis=1)
        v = (lambda x, n, axis: torch.repeat_interleave(x, n, dim=axis))(v_cache, rep, axis=1)
        scores = torch.einsum("bhqd,bhkd->bhqk", q, k) * (Dh ** -0.5)
        p = _softmax(scores, axis=-1)
        o = torch.einsum("bhqk,bhkd->bhqd", p, v)
        return (lambda x, *d: x.permute(*d))(o, 0, 2, 1, 3).reshape(B, Sq, Hq * Dh) @ wo

    a = _A_ref(A_x, A_k_cache, A_v_cache, A_wq, A_wo)
    b = _B_ref(B_x, B_k_cache, B_v_cache, B_wq, B_wo)
    return torch.concatenate([a, b], axis=-1)
```

```python
import sys, re, math, struct
NAME='concat_heads__mha_block_cached__gqa_block_cached__decode'
HDR=open('cdna_kernels/%s.s.ref'%NAME).read().split('; Override launch')[0]

WS_Q=0; WS_PO=0x10000; WS_PML=0x90000; WS_Y=0xA0000; WS_CNT=0x140000; WS_SIZE=0x150000
L_Q=0; L_QR=1024; L_PART=3072; L_YL=16384; L_FL=16384+4*2560; LDS_SIZE=L_FL+256
CSC=struct.unpack('<I',struct.pack('<f',math.log2(math.e)/math.sqrt(128)))[0]

class G:
    def __init__(s, **o):
        s.o=dict(mode='multi', pattern='wg', kfl='nt', vfl='nt', R=4, stamp=False, xcd=False); s.o.update(o)
        s.t=[]; s.uid=0
    def e(s,x): s.t.append(x)
    def lab(s,n): s.uid+=1; return 'L_%s_%d'%(n,s.uid)
    def head(s,name,nwg):
        s.e('.text\n.globl %s\n.p2align 8\n.type %s,@function\n%s:'%(name,name,name))
        s.end=s.lab('end')
        s.e('s_cmp_ge_u32 s2, %d\ns_cbranch_scc1 %s'%(nwg,s.end))
        s.e('s_load_dwordx16 s[4:19], s[0:1], 0\ns_load_dwordx8 s[20:27], s[0:1], 64\ns_load_dwordx2 s[28:29], s[0:1], 96')
        if s.o['stamp']: s.e('s_memrealtime s[90:91]')
        s.e('v_lshrrev_b32 v1, 6, v0\nv_mov_b32 v3, v0\nv_and_b32 v0, 63, v0')
        s.e('v_readfirstlane_b32 s30, v1')
        if s.o['xcd']:
            s.e('s_and_b32 s31, s2, 7\ns_lshr_b32 s3, s2, 3\ns_lshl_b32 s31, s31, 5\ns_add_u32 s3, s3, s31')
        else: s.e('s_mov_b32 s3, s2')
        s.e('s_lshr_b32 s31, s3, 4\ns_and_b32 s64, s3, 15')
        s.e('s_waitcnt lgkmcnt(0)')
        s.e('s_mov_b32 s40, s28\ns_mov_b32 s41, s29\ns_mov_b32 s42, %d\ns_mov_b32 s43, 0x20000'%WS_SIZE)
    def tail(s,name,nv,ns=96):
        s.e('%s:\ns_endpgm'%s.end)
        s.e('.section .rodata,"a"\n.p2align 6\n.amdhsa_kernel %s\n  .amdhsa_next_free_vgpr %d\n  .amdhsa_next_free_sgpr %d\n  .amdhsa_accum_offset %d\n  .amdhsa_group_segment_fixed_size 0\n  .amdhsa_kernarg_size 104\n  .amdhsa_user_sgpr_count 2\n  .amdhsa_user_sgpr_kernarg_segment_ptr 1\n  .amdhsa_system_sgpr_workgroup_id_x 1\n.end_amdhsa_kernel'%(name,nv,ns,(nv+3)//4*4))
    def q_issue(s,wb,xb):
        e=s.e
        e('s_cmp_lt_u32 s64, 8')
        e('s_cselect_b32 s44, s20, s10\ns_cselect_b32 s45, s21, s11\ns_cselect_b32 s48, s14, s4\ns_cselect_b32 s49, s15, s5')
        e('s_mov_b32 s46, %d\ns_mov_b32 s47, 0x20000\ns_mov_b32 s50, 1152\ns_mov_b32 s51, 0x20000'%(576*8192))
        e('s_and_b32 s65, s64, 7\ns_lshl_b32 s65, s65, 6\ns_lshl_b32 s66, s31, 9\ns_add_u32 s65, s65, s66')
        e('v_lshrrev_b32 v4, 2, v3\nv_and_b32 v5, 3, v3\nv_lshlrev_b32 v5, 4, v5\nv_lshl_add_u32 v5, v4, 13, v5\nv_lshlrev_b32 v4, 1, v4')
        for i in range(9):
            e('buffer_load_ushort v%d, v4, s[48:51], 0 offen offset:%d'%(xb+i,i*128))
        for i in range(9):
            e('buffer_load_dwordx4 v[%d:%d], v5, s[44:47], s65 offen nt'%(wb+4*i,wb+4*i+3))
            if i<8: e('s_add_u32 s65, s65, %d'%(64*8192))
    def q_compute(s,wb,xb,ab,tb,newer):
        e=s.e
        for j in range(8): e('v_mov_b32 v%d, 0'%(ab+j))
        for i in range(9):
            e('s_waitcnt vmcnt(%d)'%(newer+8-i))
            e('v_lshlrev_b32 v%d, 16, v%d'%(xb+i,xb+i))
            for d in range(4):
                e('v_lshlrev_b32 v%d, 16, v%d\nv_and_b32 v%d, 0xffff0000, v%d'%(tb,wb+4*i+d,tb+1,wb+4*i+d))
                e('v_fmac_f32 v%d, v%d, v%d\nv_fmac_f32 v%d, v%d, v%d'%(ab+2*d,xb+i,tb,ab+2*d+1,xb+i,tb+1))
        for ror in (4,8):
            e('s_nop 1')
            for j in range(8): e('v_add_f32_dpp v%d, v%d, v%d row_ror:%d row_mask:0xf bank_mask:0xf'%(ab+j,ab+j,ab+j,ror))
        e('v_lshrrev_b32 v%d, 4, v3\nv_and_b32 v%d, 3, v3\nv_lshlrev_b32 v%d, 5, v%d\nv_lshl_add_u32 v%d, v%d, 7, v%d'%(tb,tb+1,tb+1,tb+1,tb,tb,tb+1))
        e('ds_write_b128 v%d, v[%d:%d] offset:%d\nds_write_b128 v%d, v[%d:%d] offset:%d'%(tb,ab,ab+3,L_QR,tb,ab+4,ab+7,L_QR+16))
        e('s_waitcnt lgkmcnt(0)')
    def q_finish(s,tb,fl):
        e=s.e
        e('v_and_b32 v%d, 31, v0\nv_lshlrev_b32 v%d, 2, v%d\nv_lshrrev_b32 v%d, 5, v0\nv_lshl_add_u32 v%d, v%d, 10, v%d'%(tb,tb,tb,tb+1,tb,tb+1,tb))
        for p in range(8): e('ds_read_b32 v%d, v%d offset:%d'%(tb+2+p,tb,L_QR+p*128))
        e('s_lshl_b32 s65, s3, 6\nv_and_b32 v%d, 31, v0\nv_lshlrev_b32 v%d, 1, v%d'%(tb,tb,tb))
        e('s_waitcnt lgkmcnt(0)')
        for a,b in ((0,1),(2,3),(4,5),(6,7),(0,2),(4,6),(0,4)): e('v_add_f32 v%d, v%d, v%d'%(tb+2+a,tb+2+a,tb+2+b))
        e('v_mov_b32 v%d, v%d\ns_nop 1\nv_permlane32_swap_b32 v%d, v%d\nv_add_f32 v%d, v%d, v%d'%(tb+3,tb+2,tb+2,tb+3,tb+2,tb+2,tb+3))
        e('v_cvt_pk_bf16_f32 v%d, v%d, v%d'%(tb+2,tb+2,tb+2))
        e('s_mov_b32 exec_hi, 0')
        e('buffer_store_short v%d, v%d, s[40:43], s65 offen %s'%(tb+2,tb,fl))
        e('s_mov_b64 exec, -1')
    RING=96
    def att_setup(s):
        e=s.e
        e('s_lshl_b32 s65, s31, 24\ns_add_u32 s32, s16, s65\ns_addc_u32 s33, s17, 0\ns_add_u32 s36, s18, s65\ns_addc_u32 s37, s19, 0')
        e('s_lshl_b32 s65, s31, 25\ns_add_u32 s52, s6, s65\ns_addc_u32 s53, s7, 0\ns_add_u32 s54, s8, s65\ns_addc_u32 s55, s9, 0')
        e('s_add_u32 s56, s52, 0x1000000\ns_addc_u32 s57, s53, 0\ns_add_u32 s58, s54, 0x1000000\ns_addc_u32 s59, s55, 0')
        e('s_mov_b32 s34, 0x1000000\ns_mov_b32 s35, 0x20000\ns_mov_b32 s38, 0x1000000\ns_mov_b32 s39, 0x20000')
        if s.o['pattern']=='wg': e('s_lshl_b32 s60, s64, 20'); s.step=16384
        else: e('s_lshl_b32 s60, s64, 14'); s.step=262144
        e('s_lshl_b32 s65, s30, 12\ns_add_u32 s60, s60, s65\ns_mov_b32 s61, s60')
        e('v_and_b32 v1, 3, v0\nv_lshlrev_b32 v1, 10, v1\nv_bfe_u32 v2, v0, 2, 2\nv_lshl_add_u32 v1, v2, 8, v1\nv_lshrrev_b32 v2, 4, v0\nv_lshl_add_u32 v1, v2, 4, v1')
        e('v_lshlrev_b32 v2, 4, v0')
    def masks(s):
        e=s.e
        e('v_and_b32 v8, 1, v0\nv_cmp_eq_u32 vcc, 1, v8\nv_mov_b32 v9, 0xffff\nv_mov_b32 v10, 0xffff0000\nv_cndmask_b32 v9, v9, v10, vcc\nv_bfe_u32 v8, v0, 1, 2')
        for q in range(4): e('v_cmp_eq_u32 vcc, %d, v8\ns_nop 1\nv_cndmask_b32 v%d, 0, v9, vcc'%(q,4+q))
    def issueK(s,sl):
        for i in range(4):
            r=s.RING+sl*32+4*i
            s.e('buffer_load_dwordx4 v[%d:%d], v1, s[32:35], s61 offen offset:%d %s'%(r,r+3,64*i,s.o['kfl']))
    def issueV(s,sl):
        for i in range(4):
            r=s.RING+sl*32+16+4*i
            s.e('buffer_load_dwordx4 v[%d:%d], v2, s[36:39], s61 offen offset:%d %s'%(r,r+3,1024*i,s.o['vfl']))
        s.e('s_add_u32 s61, s61, %d'%s.step)
    def wo_issue(s):
        e=s.e
        e('s_cmp_lt_u32 s64, 8\ns_cselect_b32 s44, s22, s12\ns_cselect_b32 s45, s23, s13')
        e('s_and_b32 s65, s64, 7\ns_lshl_b32 s65, s65, 5\ns_lshl_b32 s66, s31, 8\ns_add_u32 s65, s65, s66\ns_mul_i32 s65, s65, 1152')
        e('s_add_u32 s44, s44, s65\ns_addc_u32 s45, s45, 0\ns_sub_u32 s46, %d, s65\ns_mov_b32 s47, 0x20000'%(4096*1152))
        e('s_mul_i32 s65, s30, %d\ns_add_u32 s66, s65, 4608'%(8*1152))
        e('v_lshrrev_b32 v26, 4, v0\nv_mul_u32_u24 v26, 1152, v26\nv_and_b32 v27, 15, v0\nv_lshl_add_u32 v26, v27, 4, v26')
        for rg in range(2):
            for cb in range(5):
                r=56+(rg*5+cb)*4
                e('buffer_load_dwordx4 v[%d:%d], v26, s[44:47], %s offen offset:%d nt'%(r,r+3,'s65' if rg==0 else 's66',cb*256))
    def q_operand(s,first):
        e=s.e
        if first: e('v_bfe_u32 v19, v0, 3, 1\nv_lshlrev_b32 v19, 8, v19\nv_lshrrev_b32 v24, 4, v0\nv_lshl_add_u32 v19, v24, 4, v19')
        else: e('s_add_u32 s65, s62, 1\ns_lshl_b32 s65, s65, 8\nv_lshrrev_b32 v19, 4, v0\nv_lshl_add_u32 v19, v19, 4, s65')
        for i in range(4): e('ds_read_b128 v[%d:%d], v19 offset:%d'%(40+4*i,43+4*i,L_Q+64*i))
        e('v_mov_b32 v12, 0\nv_mov_b32 v13, 0\nv_mov_b32 v14, 0\nv_mov_b32 v15, 0\nv_mov_b32 v16, 0xff800000\nv_mov_b32 v17, 0xff800000\nv_mov_b32 v18, 0')
        e('s_waitcnt lgkmcnt(0)')
    def att_loop(s,wo_prefetch):
        e=s.e; R=s.o['R']; n=4+8*(R-1)
        Lr=s.lab('round'); Ll=s.lab('loop'); Ln=s.lab('nosw'); rare=[]
        e('s_mov_b32 s62, 0\ns_mov_b32 s67, 0x%x'%CSC)
        s.q_operand(True)
        e('%s:\ns_mov_b32 s63, %d'%(Lr,64//R))
        e('%s:'%Ll)
        e('s_cmp_lg_u32 s63, 1\ns_cbranch_scc1 %s'%Ln)
        e('s_mov_b32 s32, s52\ns_mov_b32 s33, s53\ns_mov_b32 s36, s54\ns_mov_b32 s37, s55\ns_mov_b64 s[52:53], s[56:57]\ns_mov_b64 s[54:55], s[58:59]\ns_mov_b32 s61, s60')
        e('s_cmp_lt_u32 s62, 2\ns_cselect_b32 s34, s34, 0\ns_mov_b32 s38, s34')
        e('%s:'%Ln)
        for sl in range(R):
            kb=s.RING+sl*32; vb=kb+16
            e('s_waitcnt vmcnt(%d)'%n)
            for i in range(4):
                e('v_mfma_f32_16x16x32_bf16 v[8:11], v[%d:%d], v[%d:%d], %s'%(kb+4*i,kb+4*i+3,40+4*i,43+4*i,'0' if i==0 else 'v[8:11]'))
            s.issueK(sl)
            e('s_nop 3')
            La=s.lab('rare'); Lb=s.lab('back'); rare.append((La,Lb))
            e('v_max3_f32 v19, v8, v9, v10\nv_max_f32 v19, v19, v11\nv_cmp_gt_f32 vcc, v19, v16\ns_cbranch_vccnz %s\n%s:'%(La,Lb))
            for r in range(4): e('v_fma_f32 v%d, v%d, s67, -v17'%(20+r,8+r))
            for r in range(4): e('v_exp_f32 v%d, v%d'%(20+r,20+r))
            e('v_add_f32 v18, v18, v20\nv_cvt_pk_bf16_f32 v20, v20, v20')
            for r in range(1,4): e('v_add_f32 v18, v18, v%d\nv_cvt_pk_bf16_f32 v%d, v%d, v%d'%(20+r,20+r,20+r,20+r))
            for r in range(4):
                for q in range(4): e('v_and_b32 v%d, v%d, v%d'%(24+4*r+q,20+r,4+q))
            e('s_waitcnt vmcnt(%d)'%n)
            e('s_nop 0')
            for r in range(4):
                e('v_mfma_f32_16x16x32_bf16 v[12:15], v[%d:%d], v[%d:%d], v[12:15]'%(24+4*r,27+4*r,vb+4*r,vb+4*r+3))
            s.issueV(sl)
        e('s_sub_u32 s63, s63, 1\ns_cmp_lg_u32 s63, 0\ns_cbranch_scc1 %s'%Ll)
        e('v_mov_b32 v19, v18\ns_nop 1\nv_permlane32_swap_b32 v18, v19\nv_add_f32 v18, v18, v19\nv_mov_b32 v19, v18\ns_nop 1\nv_permlane16_swap_b32 v18, v19\nv_add_f32 v18, v18, v19')
        e('s_lshl_b32 s65, s62, 2\ns_add_u32 s65, s65, s30\ns_mul_i32 s65, s65, 1040')
        e('v_lshrrev_b32 v19, 5, v0\nv_lshlrev_b32 v19, 9, v19\nv_and_b32 v20, 15, v0\nv_lshl_add_u32 v19, v20, 5, v19\nv_bfe_u32 v20, v0, 4, 1\nv_lshl_add_u32 v19, v20, 4, v19\nv_add_u32 v19, s65, v19')
        e('v_bfe_u32 v20, v0, 3, 1\nv_lshl_add_u32 v20, v20, 3, s65\nv_mov_b32 v22, v17\nv_mov_b32 v23, v18')
        e('ds_write_b128 v19, v[12:15] offset:%d\nds_write_b64 v20, v[22:23] offset:%d'%(L_PART,L_PART+1024))
        Ld=s.lab('done')
        e('s_add_u32 s62, s62, 1\ns_cmp_eq_u32 s62, 3\ns_cbranch_scc1 %s'%Ld)
        e('s_waitcnt lgkmcnt(0)')
        if wo_prefetch:
            Lw=s.lab('nowo')
            e('s_cmp_lg_u32 s62, 1\ns_cbranch_scc1 %s'%Lw); s.wo_issue(); e('%s:'%Lw)
        s.q_operand(False)
        e('s_branch %s'%Lr)
        for La,Lb in rare:
            e('%s:'%La)
            e('v_max_f32 v19, v19, v16\nv_mov_b32 v24, v19\ns_nop 1\nv_permlane32_swap_b32 v19, v24\nv_max_f32 v19, v19, v24\nv_mov_b32 v24, v19\ns_nop 1\nv_permlane16_swap_b32 v19, v24\nv_max_f32 v16, v19, v24')
            e('v_mul_f32 v24, s67, v16\nv_sub_f32 v25, v17, v24\nv_exp_f32 v25, v25\nv_mov_b32 v17, v24\ns_nop 0\nv_mul_f32 v18, v18, v25')
            e('v_mov_b32_dpp v26, v25 row_newbcast:0 row_mask:0x3 bank_mask:0xf\nv_mov_b32_dpp v26, v25 row_newbcast:8 row_mask:0xc bank_mask:0xf')
            for r in range(4): e('v_mul_f32 v%d, v%d, v26'%(12+r,12+r))
            e('s_branch %s'%Lb)
        e('%s:'%Ld)
    def wg_combine(s,fl):
        e=s.e
        e('s_sub_u32 s65, s30, 1\ns_max_i32 s65, s65, 0\ns_mul_i32 s65, s65, 4160\ns_cmp_eq_u32 s30, 1\ns_cselect_b32 s66, 512, 0\ns_cselect_b32 s68, 8, 0\ns_add_u32 s66, s66, s65\ns_add_u32 s68, s68, s65')
        e('v_lshl_add_u32 v19, v0, 3, s66\nv_mov_b32 v20, s68')
        for i in range(4):
            e('ds_read_b64 v[%d:%d], v19 offset:%d\nds_read_b64 v[%d:%d], v20 offset:%d'%(24+2*i,25+2*i,L_PART+i*1040,32+2*i,33+2*i,L_PART+1024+i*1040))
        e('s_lshl_b32 s65, s31, 2\ns_add_u32 s65, s65, s30\ns_lshl_b32 s65, s65, 4\ns_add_u32 s65, s65, s64')
        e('s_lshl_b32 s66, s65, 9\ns_add_u32 s66, s66, %d\ns_lshl_b32 s65, s65, 3\ns_add_u32 s65, s65, %d'%(WS_PO,WS_PML))
        e('v_lshlrev_b32 v19, 3, v0\nv_mov_b32 v20, 0')
        e('s_waitcnt lgkmcnt(0)')
        e('v_max3_f32 v22, v32, v34, v36\nv_max_f32 v22, v22, v38')
        for i in range(4): e('v_sub_f32 v%d, v%d, v22'%(32+2*i,32+2*i))
        for i in range(4): e('v_exp_f32 v%d, v%d'%(32+2*i,32+2*i))
        e('s_nop 0\nv_mul_f32 v12, v32, v24\nv_mul_f32 v13, v32, v25\nv_mul_f32 v23, v32, v33')
        for i in range(1,4): e('v_fmac_f32 v12, v%d, v%d\nv_fmac_f32 v13, v%d, v%d\nv_fmac_f32 v23, v%d, v%d'%(32+2*i,24+2*i,32+2*i,25+2*i,32+2*i,33+2*i))
        e('buffer_store_dwordx2 v[12:13], v19, s[40:43], s66 offen %s'%fl)
        e('s_mov_b64 exec, 1\nbuffer_store_dwordx2 v[22:23], v20, s[40:43], s65 offen %s\ns_mov_b64 exec, -1'%fl)
    def team_loads(s,fl):
        e=s.e
        e('s_lshr_b32 s65, s64, 2\ns_lshl_b32 s66, s31, 2\ns_add_u32 s65, s65, s66')
        e('s_lshl_b32 s66, s65, 13\ns_and_b32 s68, s64, 3\ns_lshl_b32 s68, s68, 7\ns_add_u32 s66, s66, s68\ns_lshl_b32 s68, s30, 5\ns_add_u32 s66, s66, s68\ns_add_u32 s66, s66, %d'%WS_PO)
        e('s_lshl_b32 s65, s65, 7\ns_add_u32 s65, s65, %d'%WS_PML)
        e('v_and_b32 v19, 15, v0\nv_lshlrev_b32 v20, 3, v19\nv_lshlrev_b32 v19, 9, v19\nv_lshrrev_b32 v21, 4, v0\nv_lshl_add_u32 v19, v21, 2, v19')
        e('buffer_load_dwordx2 v[22:23], v20, s[40:43], s65 offen %s'%fl)
        e('buffer_load_dword v24, v19, s[40:43], s66 offen %s\nbuffer_load_dword v25, v19, s[40:43], s66 offen offset:16 %s'%(fl,fl))
    def rowred(s,op,regs):
        for ror in (8,4,2,1):
            s.e('s_nop 1')
            for r in regs: s.e('%s_dpp v%d, v%d, v%d row_ror:%d row_mask:0xf bank_mask:0xf'%(op,r,r,r,ror))
    def team_proj(s,fl):
        e=s.e
        e('s_waitcnt vmcnt(0)')
        e('v_mov_b32 v21, v22'); s.rowred('v_max_f32',[21])
        e('v_sub_f32 v22, v22, v21\nv_exp_f32 v22, v22\ns_nop 0\nv_mul_f32 v23, v23, v22\nv_mul_f32 v24, v24, v22\nv_mul_f32 v25, v25, v22')
        s.rowred('v_add_f32',[23,24,25])
        e('v_rcp_f32 v23, v23\ns_nop 0\nv_mul_f32 v24, v24, v23\nv_mul_f32 v25, v25, v23\nv_cvt_pk_bf16_f32 v24, v24, v24\nv_cvt_pk_bf16_f32 v25, v25, v25')
        for rg in range(2):
            for q in range(4): e('v_and_b32 v%d, v%d, v%d'%(28+4*rg+q,24+rg,4+q))
        e('s_nop 1')
        for rg in range(2):
            for cb in range(5):
                r=56+(rg*5+cb)*4; d=100+4*cb
                e('v_mfma_f32_16x16x32_bf16 v[%d:%d], v[%d:%d], v[%d:%d], %s'%(d,d+3,28+4*rg,31+4*rg,r,r+3,'0' if rg==0 else 'v[%d:%d]'%(d,d+3)))
        e('s_mul_i32 s65, s30, 2560\nv_and_b32 v19, 15, v0\nv_lshl_add_u32 v19, v19, 5, s65\nv_bfe_u32 v20, v0, 4, 1\nv_lshl_add_u32 v19, v20, 4, v19')
        e('s_nop 4\ns_mov_b32 exec_hi, 0')
        for cb in range(5): e('ds_write_b128 v19, v[%d:%d] offset:%d'%(100+4*cb,103+4*cb,L_YL+cb*512))
        e('s_mov_b64 exec, -1')
        e('s_cmp_lt_u32 s64, 8\ns_cselect_b32 s69, 1, 0\ns_mul_i32 s65, s69, %d\ns_and_b32 s66, s64, 7\ns_lshl_b32 s68, s31, 3\ns_add_u32 s66, s66, s68\ns_lshl_b32 s66, s66, 6\ns_add_u32 s65, s65, s66\ns_add_u32 s65, s65, %d'%(36*8192,WS_Y))
        e('v_lshlrev_b32 v19, 4, v3\nv_lshrrev_b32 v20, 2, v3\nv_lshlrev_b32 v20, 13, v20\nv_and_b32 v21, 3, v3\nv_lshl_add_u32 v20, v21, 4, v20')
        e('s_waitcnt lgkmcnt(0)\ns_barrier')
        Ls=s.lab('noy')
        e('v_cmp_gt_u32 vcc, 144, v3\ns_and_saveexec_b64 s[70:71], vcc\ns_cbranch_execz %s'%Ls)
        for w in range(4): e('ds_read_b128 v[%d:%d], v19 offset:%d'%(24+4*w,27+4*w,L_YL+w*2560))
        e('s_waitcnt lgkmcnt(0)')
        for r in range(4): e('v_add_f32 v%d, v%d, v%d\nv_add_f32 v%d, v%d, v%d'%(24+r,24+r,28+r,32+r,32+r,36+r))
        for r in range(4): e('v_add_f32 v%d, v%d, v%d'%(24+r,24+r,32+r))
        e('buffer_store_dwordx4 v[24:27], v20, s[40:43], s65 offen %s'%fl)
        e('s_waitcnt vmcnt(0)')
        e('%s:\ns_mov_b64 exec, s[70:71]'%Ls)
    def signal(s,soff):
        s.e('s_mov_b64 exec, 1\nv_mov_b32 v19, 0\nv_mov_b32 v20, 1\nbuffer_atomic_add v20, v19, s[40:43], %s offen sc1\ns_mov_b64 exec, -1'%soff)
    def poll(s,srd,vaddr,soff,nl,target):
        e=s.e; L=s.lab('poll'); Lx=s.lab('pollx')
        e('s_mov_b64 exec, 0x%x\ns_mov_b32 s72, 0x200000'%((1<<nl)-1))
        e('%s:\nbuffer_load_dword v20, %s, %s, %s offen sc1\ns_waitcnt vmcnt(0)\nv_cmp_ne_u32 vcc, %d, v20\ns_cbranch_vccz %s'%(L,vaddr,srd,soff,target,Lx))
        e('s_sub_u32 s72, s72, 1\ns_cmp_lg_u32 s72, 0\ns_cbranch_scc1 %s\n%s:\ns_mov_b64 exec, -1'%(L,Lx))
    def final(s):
        e=s.e
        e('s_cmp_ge_u32 s3, 72\ns_cbranch_scc1 %s'%s.end)
        Lp=s.lab('nopoll')
        e('s_cmp_lg_u32 s30, 0\ns_cbranch_scc1 %s'%Lp)
        e('s_cmp_ge_u32 s3, 36\ns_cselect_b32 s65, 4096, 0\ns_add_u32 s65, s65, %d\nv_lshlrev_b32 v19, 8, v0'%(WS_CNT))
        s.poll('s[40:43]','v19','s65',16,8)
        e('%s:\ns_barrier'%Lp)
        e('s_lshl_b32 s65, s3, 13\ns_add_u32 s65, s65, %d\ns_add_u32 s66, s65, 4096\nv_lshlrev_b32 v19, 4, v3'%WS_Y)
        e('buffer_load_dwordx4 v[24:27], v19, s[40:43], s65 offen sc1\nbuffer_load_dwordx4 v[28:31], v19, s[40:43], s66 offen sc1')
        e('s_mov_b32 s44, s24\ns_mov_b32 s45, s25\ns_mov_b32 s46, 2304\ns_mov_b32 s47, 0x20000')
        e('s_lshl_b32 s66, s30, 6\nv_and_b32 v19, 3, v0\nv_lshl_add_u32 v19, v19, 4, s66')
        e('s_waitcnt vmcnt(0)')
        for r in range(4): e('v_add_f32 v%d, v%d, v%d'%(24+r,24+r,28+r))
        for ror in (4,8):
            e('s_nop 1')
            for r in range(4): e('v_add_f32_dpp v%d, v%d, v%d row_ror:%d row_mask:0xf bank_mask:0xf'%(24+r,24+r,24+r,ror))
        for sw in ('32','16'):
            for r in range(4): e('v_mov_b32 v%d, v%d'%(28+r,24+r))
            e('s_nop 1')
            for r in range(4): e('v_permlane%s_swap_b32 v%d, v%d'%(sw,24+r,28+r))
            for r in range(4): e('v_add_f32 v%d, v%d, v%d'%(24+r,24+r,28+r))
        e('s_mov_b64 exec, 0xf\nds_write_b128 v19, v[24:27] offset:%d\ns_mov_b64 exec, -1'%L_FL)
        e('s_waitcnt lgkmcnt(0)\ns_barrier')
        e('s_cmp_lg_u32 s30, 0\ns_cbranch_scc1 %s'%s.end)
        e('s_mov_b64 exec, 0xffff\nv_lshlrev_b32 v19, 2, v0')
        for w in range(4): e('ds_read_b32 v%d, v19 offset:%d'%(24+w,L_FL+64*w))
        e('s_lshl_b32 s65, s3, 5\nv_lshlrev_b32 v19, 1, v0\ns_waitcnt lgkmcnt(0)')
        e('v_add_f32 v24, v24, v25\nv_add_f32 v26, v26, v27\nv_add_f32 v24, v24, v26\nv_cvt_pk_bf16_f32 v24, v24, v24')
        e('buffer_store_short v24, v19, s[44:47], s65 offen')
    def ysignal(s):
        e=s.e; L=s.lab('nosig')
        e('s_barrier\ns_cmp_lg_u32 s30, 0\ns_cbranch_scc1 %s'%L)
        e('s_lshl_b32 s65, s69, 4\ns_add_u32 s65, s65, s31\ns_lshl_b32 s65, s65, 8\ns_add_u32 s65, s65, %d'%WS_CNT)
        s.signal('s65')
        e('%s:'%L)
    def stamp(s,slot):
        if not s.o['stamp']: return
        e=s.e
        e('s_memrealtime s[92:93]\ns_getreg_b32 s94, hwreg(HW_REG_XCC_ID)\ns_waitcnt lgkmcnt(0)')
        e('s_add_u32 s84, s28, 0x60000000\ns_addc_u32 s85, s29, 0\ns_mov_b32 s86, 0x1000000\ns_mov_b32 s87, 0x20000')
        e('s_lshl_b32 s88, s2, 3\ns_add_u32 s88, s88, s30\ns_lshl_b32 s88, s88, 6\ns_add_u32 s88, s88, %d'%(slot*4))
        e('s_mov_b64 s[78:79], exec\ns_mov_b64 exec, 1\nv_mov_b32 v252, 0\nv_mov_b32 v253, s92')
        e('buffer_store_dword v253, v252, s[84:87], s88 offen')
        if slot==15: e('v_mov_b32 v253, s90\nv_mov_b32 v254, s94\nbuffer_store_dword v253, v252, s[84:87], s88 offen offset:4')
        e('s_mov_b64 exec, s[78:79]')
    def multi(s):
        e=s.e
        k1,k2,k3='qproj_kernel','attn_kernel','oproj_kernel'
        s.head(k1,256)
        s.q_issue(16,52);
        L=s.lab('noz')
        e('s_cmp_ge_u32 s3, 48\ns_cbranch_scc1 %s\ns_lshl_b32 s65, s3, 8\ns_add_u32 s65, s65, %d\nv_mov_b32 v6, 0\nv_mov_b32 v7, 0\ns_mov_b64 exec, 1\nbuffer_store_dword v6, v7, s[40:43], s65 offen\ns_mov_b64 exec, -1\ns_waitcnt vmcnt(0)\n%s:'%(L,WS_CNT,L))
        s.q_compute(16,52,8,6,0)
        e('s_barrier\ns_cmp_lg_u32 s30, 0\ns_cbranch_scc1 %s'%s.end)
        s.q_finish(16,'')
        s.tail(k1,64)
        s.head(k2,256)
        e('s_lshl_b32 s65, s31, 10\nv_lshlrev_b32 v19, 4, v0\nbuffer_load_dwordx4 v[24:27], v19, s[40:43], s65 offen')
        s.att_setup()
        for sl in range(s.o['R']): s.issueK(sl); s.issueV(sl)
        s.masks()
        e('s_waitcnt vmcnt(%d)\nds_write_b128 v19, v[24:27] offset:%d\ns_waitcnt lgkmcnt(0)'%(8*s.o['R'],L_Q))
        s.att_loop(False)
        e('s_waitcnt lgkmcnt(0)\ns_barrier')
        s.wg_combine('')
        s.tail(k2,s.RING+32*s.o['R'])
        s.head(k3,256)
        s.team_loads(''); s.wo_issue(); s.masks()
        s.team_proj('sc1'); s.ysignal(); s.final()
        s.tail(k3,128)
        launch='\n'.join('; @launch kernel=%s grid=(256,1,1) block=(256,1,1) lds=%d'%(k,l) for k,l in ((k1,3072),(k2,16384),(k3,LDS_SIZE)))
        spec=','.join('%s:256:256:%d'%(k,l) for k,l in ((k1,3072),(k2,16384),(k3,LDS_SIZE)))
        return launch,spec,[(k1,64,256),(k2,s.RING+32*s.o['R'],256),(k3,128,256)]
    def build(s):
        launch,spec,ks=getattr(s,s.o['mode'])()
        return HDR+launch+'\n.amdgcn_target "amdgcn-amd-amdhsa--gfx950"\n'+'\n'.join(s.t)+'\n',spec,ks
def write(path,**o):
    t,spec,ks=G(**o).build(); open(path,'w').write(t); return spec,ks
if __name__=='__main__':
    o=eval('dict(%s)'%(sys.argv[2] if len(sys.argv)>2 else ''))
    print(write(sys.argv[1],**o))
```

```python
import sys, re, math, struct
NAME='concat_heads__mha_block_cached__gqa_block_cached__decode'
HDR=open('cdna_kernels/%s.s.ref'%NAME).read().split('; Override launch')[0]

WS_Q=0; WS_PO=0x10000; WS_PML=0x110000; WS_Y=0x120000; WS_E=0x240000; WS_CNT=0x241000; WS_SIZE=0x250000
TAGINC=0x9E3779B1
L_Q=0; L_QR=1024; L_PART=3072; L_YL=16384; L_FL=16384+4*2560; LDS_SIZE=L_FL+256
CSC=struct.unpack('<I',struct.pack('<f',math.log2(math.e)/math.sqrt(128)))[0]

class G:
    def __init__(s, **o):
        s.o=dict(mode='fused', pattern='wg', kfl='nt', vfl='nt', R=4, stamp=False, xcd=False); s.o.update(o)
        s.t=[]; s.uid=0; s.px=s.o.get('prefix','')
    def e(s,x): s.t.append(x)
    def lab(s,n): s.uid+=1; return 'L_%s%s_%d'%(s.px,n,s.uid)
    def head(s,name,nwg):
        s.e('.text\n.globl %s\n.p2align 8\n.type %s,@function\n%s:'%(name,name,name))
        s.end=s.lab('end')
        s.e('s_cmp_ge_u32 s2, %d\ns_cbranch_scc1 %s'%(nwg,s.end))
        s.e('s_load_dwordx16 s[4:19], s[0:1], 0\ns_load_dwordx8 s[20:27], s[0:1], 64\ns_load_dwordx2 s[28:29], s[0:1], 96')
        if s.o['stamp']: s.e('s_memrealtime s[90:91]\ns_mov_b32 s95, 0')
        s.e('v_lshrrev_b32 v1, 6, v0\nv_mov_b32 v3, v0\nv_and_b32 v0, 63, v0')
        s.e('v_readfirstlane_b32 s30, v1')
        if s.o['xcd']:
            s.e('s_and_b32 s31, s2, 7\ns_lshr_b32 s3, s2, 3\ns_lshl_b32 s31, s31, 5\ns_add_u32 s3, s3, s31')
        else: s.e('s_mov_b32 s3, s2')
        s.e('s_lshr_b32 s31, s3, 4\ns_and_b32 s64, s3, 15')
        s.e('s_waitcnt lgkmcnt(0)')
        s.e('s_mov_b32 s40, s28\ns_mov_b32 s41, s29\ns_mov_b32 s42, %d\ns_mov_b32 s43, 0x20000'%WS_SIZE)
        s.e('s_add_u32 s74, s28, %d\ns_addc_u32 s75, s29, 0\ns_load_dword s73, s[74:75], 0'%WS_E)
    def tail(s,name,nv,ns=96):
        if s.o['stamp']: nv=256
        s.e('%s:\ns_endpgm'%s.end)
        s.e('.section .rodata,"a"\n.p2align 6\n.amdhsa_kernel %s\n  .amdhsa_next_free_vgpr %d\n  .amdhsa_next_free_sgpr %d\n  .amdhsa_accum_offset %d\n  .amdhsa_group_segment_fixed_size 0\n  .amdhsa_kernarg_size 104\n  .amdhsa_user_sgpr_count 2\n  .amdhsa_user_sgpr_kernarg_segment_ptr 1\n  .amdhsa_system_sgpr_workgroup_id_x 1\n.end_amdhsa_kernel'%(name,nv,ns,(nv+3)//4*4))
    def q_issue(s,wb,xb):
        e=s.e
        e('s_cmp_lt_u32 s64, 8')
        e('s_cselect_b32 s44, s20, s10\ns_cselect_b32 s45, s21, s11\ns_cselect_b32 s48, s14, s4\ns_cselect_b32 s49, s15, s5')
        e('s_mov_b32 s46, %d\ns_mov_b32 s47, 0x20000\ns_mov_b32 s50, 1152\ns_mov_b32 s51, 0x20000'%(576*8192))
        e('s_and_b32 s65, s64, 7\ns_lshl_b32 s65, s65, 6\ns_lshl_b32 s66, s31, 9\ns_add_u32 s65, s65, s66')
        e('v_lshrrev_b32 v4, 2, v3\nv_and_b32 v5, 3, v3\nv_lshlrev_b32 v5, 4, v5\nv_lshl_add_u32 v5, v4, 13, v5\nv_lshlrev_b32 v4, 1, v4')
        for i in range(9):
            e('buffer_load_ushort v%d, v4, s[48:51], 0 offen offset:%d'%(xb+i,i*128))
        for i in range(9):
            e('buffer_load_dwordx4 v[%d:%d], v5, s[44:47], s65 offen nt'%(wb+4*i,wb+4*i+3))
            if i<8: e('s_add_u32 s65, s65, %d'%(64*8192))
    def q_compute(s,wb,xb,ab,tb,newer,hooks={}):
        e=s.e
        for j in range(8): e('v_mov_b32 v%d, 0'%(ab+j))
        for i in range(9):
            e('s_waitcnt vmcnt(%d)'%(newer+8-i))
            if i in hooks: hooks[i](); newer+=4
            e('v_lshlrev_b32 v%d, 16, v%d'%(xb+i,xb+i))
            for d in range(4):
                e('v_lshlrev_b32 v%d, 16, v%d\nv_and_b32 v%d, 0xffff0000, v%d'%(tb,wb+4*i+d,tb+1,wb+4*i+d))
                e('v_fmac_f32 v%d, v%d, v%d\nv_fmac_f32 v%d, v%d, v%d'%(ab+2*d,xb+i,tb,ab+2*d+1,xb+i,tb+1))
        for ror in (4,8):
            e('s_nop 1')
            for j in range(8): e('v_add_f32_dpp v%d, v%d, v%d row_ror:%d row_mask:0xf bank_mask:0xf'%(ab+j,ab+j,ab+j,ror))
        e('v_lshrrev_b32 v%d, 4, v3\nv_and_b32 v%d, 3, v3\nv_lshlrev_b32 v%d, 5, v%d\nv_lshl_add_u32 v%d, v%d, 7, v%d'%(tb,tb+1,tb+1,tb+1,tb,tb,tb+1))
        e('ds_write_b128 v%d, v[%d:%d] offset:%d\nds_write_b128 v%d, v[%d:%d] offset:%d'%(tb,ab,ab+3,L_QR,tb,ab+4,ab+7,L_QR+16))
        e('s_waitcnt lgkmcnt(0)')
    def q_finish(s,tb,fl):
        e=s.e
        e('v_and_b32 v%d, 31, v0\nv_lshlrev_b32 v%d, 2, v%d\nv_lshrrev_b32 v%d, 5, v0\nv_lshl_add_u32 v%d, v%d, 10, v%d'%(tb,tb,tb,tb+1,tb,tb+1,tb))
        for p in range(8): e('ds_read_b32 v%d, v%d offset:%d'%(tb+2+p,tb,L_QR+p*128))
        e('s_lshl_b32 s65, s3, 7\nv_and_b32 v%d, 31, v0\nv_lshlrev_b32 v%d, 2, v%d'%(tb,tb,tb))
        e('s_waitcnt lgkmcnt(0)')
        for a,b in ((0,1),(2,3),(4,5),(6,7),(0,2),(4,6),(0,4)): e('v_add_f32 v%d, v%d, v%d'%(tb+2+a,tb+2+a,tb+2+b))
        e('v_mov_b32 v%d, v%d\ns_nop 1\nv_permlane32_swap_b32 v%d, v%d\nv_add_f32 v%d, v%d, v%d'%(tb+3,tb+2,tb+2,tb+3,tb+2,tb+2,tb+3))
        e('s_nop 1\nv_mov_b32_dpp v%d, v%d quad_perm:[1,0,3,2] row_mask:0xf bank_mask:0xf'%(tb+3,tb+2))
        e('v_cvt_pk_bf16_f32 v%d, v%d, v%d\nv_mov_b32 v%d, s73'%(tb+2,tb+2,tb+3,tb+3))
        e('s_mov_b32 exec_lo, 0x55555555\ns_mov_b32 exec_hi, 0')
        e('buffer_store_dwordx2 v[%d:%d], v%d, s[40:43], s65 offen %s'%(tb+2,tb+3,tb,fl))
        e('s_mov_b64 exec, -1')
    RING=96
    def att_setup(s):
        e=s.e
        e('s_lshl_b32 s65, s31, 24\ns_add_u32 s32, s16, s65\ns_addc_u32 s33, s17, 0\ns_add_u32 s36, s18, s65\ns_addc_u32 s37, s19, 0')
        e('s_lshl_b32 s65, s31, 25\ns_add_u32 s52, s6, s65\ns_addc_u32 s53, s7, 0\ns_add_u32 s54, s8, s65\ns_addc_u32 s55, s9, 0')
        e('s_add_u32 s56, s52, 0x1000000\ns_addc_u32 s57, s53, 0\ns_add_u32 s58, s54, 0x1000000\ns_addc_u32 s59, s55, 0')
        e('s_mov_b32 s34, 0x1000000\ns_mov_b32 s35, 0x20000\ns_mov_b32 s38, 0x1000000\ns_mov_b32 s39, 0x20000')
        if s.o['pattern']=='wg': e('s_lshl_b32 s60, s64, 20'); s.step=16384
        else: e('s_lshl_b32 s60, s64, 14'); s.step=262144
        e('s_lshl_b32 s65, s30, 12\ns_add_u32 s60, s60, s65\ns_mov_b32 s61, s60')
        e('v_and_b32 v1, 3, v0\nv_lshlrev_b32 v1, 10, v1\nv_bfe_u32 v2, v0, 2, 2\nv_lshl_add_u32 v1, v2, 8, v1\nv_lshrrev_b32 v2, 4, v0\nv_lshl_add_u32 v1, v2, 4, v1')
        e('v_lshlrev_b32 v2, 4, v0')
    def masks(s):
        e=s.e
        e('v_and_b32 v8, 1, v0\nv_cmp_eq_u32 vcc, 1, v8\nv_mov_b32 v9, 0xffff\nv_mov_b32 v10, 0xffff0000\nv_cndmask_b32 v9, v9, v10, vcc\nv_bfe_u32 v8, v0, 1, 2')
        for q in range(4): e('v_cmp_eq_u32 vcc, %d, v8\ns_nop 1\nv_cndmask_b32 v%d, 0, v9, vcc'%(q,4+q))
    def issueK(s,sl):
        for i in range(4):
            r=s.RING+sl*32+4*i
            s.e('buffer_load_dwordx4 v[%d:%d], v1, s[32:35], s61 offen offset:%d %s'%(r,r+3,64*i,s.o['kfl']))
    def issueV(s,sl):
        for i in range(4):
            r=s.RING+sl*32+16+4*i
            s.e('buffer_load_dwordx4 v[%d:%d], v2, s[36:39], s61 offen offset:%d %s'%(r,r+3,1024*i,s.o['vfl']))
        s.e('s_add_u32 s61, s61, %d'%s.step)
    def wo_issue(s):
        e=s.e
        e('s_cmp_lt_u32 s64, 8\ns_cselect_b32 s44, s22, s12\ns_cselect_b32 s45, s23, s13')
        e('s_and_b32 s65, s64, 7\ns_lshl_b32 s65, s65, 5\ns_lshl_b32 s66, s31, 8\ns_add_u32 s65, s65, s66\ns_mul_i32 s65, s65, 1152')
        e('s_add_u32 s44, s44, s65\ns_addc_u32 s45, s45, 0\ns_sub_u32 s46, %d, s65\ns_mov_b32 s47, 0x20000'%(4096*1152))
        e('s_mul_i32 s65, s30, %d'%(8*1152))
        e('v_lshrrev_b32 v26, 4, v0\nv_mul_u32_u24 v26, 2304, v26\nv_and_b32 v27, 15, v0\nv_lshl_add_u32 v26, v27, 4, v26')
        for rg in range(2):
            for cb in range(5):
                r=56+(rg*5+cb)*4
                e('buffer_load_dwordx4 v[%d:%d], v26, s[44:47], s65 offen offset:%d nt'%(r,r+3,rg*1152+cb*256))
    def q_operand(s,first):
        e=s.e
        if first: e('v_bfe_u32 v19, v0, 3, 1\nv_lshlrev_b32 v19, 8, v19\nv_lshrrev_b32 v24, 4, v0\nv_lshl_add_u32 v19, v24, 4, v19')
        else: e('s_add_u32 s65, s62, 1\ns_lshl_b32 s65, s65, 8\nv_lshrrev_b32 v19, 4, v0\nv_lshl_add_u32 v19, v19, 4, s65')
        for i in range(4): e('ds_read_b128 v[%d:%d], v19 offset:%d'%(40+4*i,43+4*i,L_Q+64*i))
        e('v_mov_b32 v12, 0\nv_mov_b32 v13, 0\nv_mov_b32 v14, 0\nv_mov_b32 v15, 0\nv_mov_b32 v16, 0xff800000\nv_mov_b32 v17, 0xff800000\nv_mov_b32 v18, 0')
        e('s_waitcnt lgkmcnt(0)')
    def tile(s,sl,n,rare):
        e=s.e
        kb=s.RING+sl*32; vb=kb+16
        e('s_waitcnt vmcnt(%d)'%n)
        for i in range(4):
            e('v_mfma_f32_16x16x32_bf16 v[8:11], v[%d:%d], v[%d:%d], %s'%(kb+4*i,kb+4*i+3,40+4*i,43+4*i,'0' if i==0 else 'v[8:11]'))
        s.issueK(sl)
        e('s_nop 3')
        La=s.lab('rare'); Lb=s.lab('back'); rare.append((La,Lb))
        e('v_max3_f32 v19, v8, v9, v10\nv_max_f32 v19, v19, v11\nv_cmp_gt_f32 vcc, v19, v16\ns_cbranch_vccnz %s\n%s:'%(La,Lb))
        for r in range(4): e('v_fma_f32 v%d, v%d, s67, -v17'%(20+r,8+r))
        for r in range(4): e('v_exp_f32 v%d, v%d'%(20+r,20+r))
        e('v_add_f32 v18, v18, v20\nv_cvt_pk_bf16_f32 v20, v20, v20')
        for r in range(1,4): e('v_add_f32 v18, v18, v%d\nv_cvt_pk_bf16_f32 v%d, v%d, v%d'%(20+r,20+r,20+r,20+r))
        for r in range(4):
            for q in range(4): e('v_and_b32 v%d, v%d, v%d'%(24+4*r+q,20+r,4+q))
        e('s_waitcnt vmcnt(%d)'%n)
        e('s_nop 0')
        for r in range(4):
            e('v_mfma_f32_16x16x32_bf16 v[12:15], v[%d:%d], v[%d:%d], v[12:15]'%(24+4*r,27+4*r,vb+4*r,vb+4*r+3))
        s.issueV(sl)
    def att_loop(s,wo_prefetch):
        e=s.e; R=s.o['R']; n=4+8*(R-1); P=s.o.get('P',0); C=s.o.get('C',2); NI=64//R
        Lr=s.lab('round'); Ll=s.lab('loop'); Ln=s.lab('nosw'); rare=[]; Lfl=s.lab('flush'); Ldyn=s.lab('dyn')
        e('s_mov_b32 s62, 0\ns_mov_b32 s67, 0x%x'%CSC)
        s.q_operand(True)
        e('%s:\ns_mov_b32 s63, %d'%(Lr,NI))
        if P: e('s_cmp_eq_u32 s62, 2\ns_cselect_b32 s63, %d, s63\ns_cselect_b32 s76, 0, 1'%(NI-1-P))
        else: e('s_mov_b32 s76, 1')
        e('%s:'%Ll)
        e('s_cmp_lg_u32 s63, s76\ns_cbranch_scc1 %s'%Ln)
        e('s_mov_b32 s32, s52\ns_mov_b32 s33, s53\ns_mov_b32 s36, s54\ns_mov_b32 s37, s55\ns_mov_b64 s[52:53], s[56:57]\ns_mov_b64 s[54:55], s[58:59]\ns_mov_b32 s61, s60')
        e('s_cmp_lt_u32 s62, 2\ns_cselect_b32 s34, s34, 0\ns_mov_b32 s38, s34')
        e('%s:'%Ln)
        for sl in range(R): s.tile(sl,n,rare)
        e('s_sub_u32 s63, s63, 1\ns_cmp_lg_u32 s63, 0\ns_cbranch_scc1 %s'%Ll)
        if P:
            TK=s.RING+32*R; total=64*P*R//C; Lp=s.lab('dloop'); LA=s.o.get('LA',2); NS=R//C
            assert LA in (1,2) and (LA==1 or NS%2==0)
            e('s_cmp_lg_u32 s62, 2\ns_cbranch_scc1 %s'%Lfl)
            e('s_lshl_b32 s77, s64, 2\ns_add_u32 s77, s77, s30\ns_mov_b32 s80, 0x7fffffff')
            e('s_lshl_b32 s81, s31, 8\ns_add_u32 s81, s81, %d\nv_mov_b32 v%d, 0'%(WS_CNT,TK+2))
            if LA==2: e('s_add_u32 s65, s77, 64\nv_mov_b32 v%d, s65'%(TK+1))
            e('%s:'%Lp)
            for h in range(NS):
                tk=TK+(h%2 if LA==2 else 0); tkn=TK+((h+1)%2 if LA==2 else 0)
                e('s_cmp_lt_u32 s77, %d\ns_cselect_b32 s34, 0x1000000, 0\ns_cselect_b32 s65, s80, %d\ns_mov_b32 s38, s34\ns_min_u32 s80, s80, s65'%(total,R//C))
                e('s_cmp_eq_u32 s80, 0\ns_cbranch_scc1 %s\ns_sub_u32 s80, s80, 1'%Lfl)
                e('v_mov_b32 v%d, 1\ns_lshr_b32 s65, s77, 6\ns_and_b32 s65, s65, 63\ns_mul_i32 s65, s65, %d\ns_add_u32 s61, s65, %d'%(tk,C*s.step,(NI-P)*R*s.step))
                if s.o['pattern']=='wg': e('s_bfe_u32 s65, s77, 0x40002\ns_lshl_b32 s65, s65, 20\ns_add_u32 s61, s61, s65\ns_and_b32 s65, s77, 3\ns_lshl_b32 s65, s65, 12\ns_add_u32 s61, s61, s65')
                else: e('s_and_b32 s65, s77, 63\ns_lshl_b32 s65, s65, 12\ns_add_u32 s61, s61, s65')
                e('s_mov_b64 exec, 1\nbuffer_atomic_add v%d, v%d, s[40:43], s81 offen sc0 sc1\ns_mov_b64 exec, -1'%(tk,TK+2))
                for sl in range(h*C,h*C+C): s.tile(sl,n+1,rare)
                e('s_waitcnt vmcnt(%d)\nv_readfirstlane_b32 s77, v%d'%(8*C if LA==1 else 16*C+1,tkn))
                if s.o['stamp']: e('s_add_u32 s95, s95, 1')
            e('s_branch %s'%Lp)
        e('%s:'%Lfl)
        e('v_mov_b32 v19, v18\ns_nop 1\nv_permlane32_swap_b32 v18, v19\nv_add_f32 v18, v18, v19\nv_mov_b32 v19, v18\ns_nop 1\nv_permlane16_swap_b32 v18, v19\nv_add_f32 v18, v18, v19')
        e('s_lshl_b32 s65, s62, 2\ns_add_u32 s65, s65, s30\ns_mul_i32 s65, s65, 1040')
        e('v_lshrrev_b32 v19, 5, v0\nv_lshlrev_b32 v19, 9, v19\nv_and_b32 v20, 15, v0\nv_lshl_add_u32 v19, v20, 5, v19\nv_bfe_u32 v20, v0, 4, 1\nv_lshl_add_u32 v19, v20, 4, v19\nv_add_u32 v19, s65, v19')
        e('v_bfe_u32 v20, v0, 3, 1\nv_lshl_add_u32 v20, v20, 3, s65\nv_mov_b32 v22, v17\nv_mov_b32 v23, v18')
        e('ds_write_b128 v19, v[12:15] offset:%d\nds_write_b64 v20, v[22:23] offset:%d'%(L_PART,L_PART+1024))
        Ld=s.lab('done')
        e('s_add_u32 s62, s62, 1\ns_cmp_eq_u32 s62, 3\ns_cbranch_scc1 %s'%Ld)
        e('s_waitcnt lgkmcnt(0)')
        if wo_prefetch:
            Lw=s.lab('nowo')
            e('s_cmp_lg_u32 s62, 1\ns_cbranch_scc1 %s'%Lw); s.wo_issue(); e('%s:'%Lw)
        s.q_operand(False)
        e('s_branch %s'%Lr)
        for La,Lb in rare:
            e('%s:'%La)
            e('v_max_f32 v19, v19, v16\nv_mov_b32 v24, v19\ns_nop 1\nv_permlane32_swap_b32 v19, v24\nv_max_f32 v19, v19, v24\nv_mov_b32 v24, v19\ns_nop 1\nv_permlane16_swap_b32 v19, v24\nv_max_f32 v16, v19, v24')
            e('v_mul_f32 v24, s67, v16\nv_sub_f32 v25, v17, v24\nv_exp_f32 v25, v25\nv_mov_b32 v17, v24\ns_nop 0\nv_mul_f32 v18, v18, v25')
            e('v_mov_b32_dpp v26, v25 row_newbcast:0 row_mask:0x3 bank_mask:0xf\nv_mov_b32_dpp v26, v25 row_newbcast:8 row_mask:0xc bank_mask:0xf')
            for r in range(4): e('v_mul_f32 v%d, v%d, v26'%(12+r,12+r))
            e('s_branch %s'%Lb)
        e('%s:'%Ld)
    def wg_combine(s):
        e=s.e
        e('s_sub_u32 s65, s30, 1\ns_max_i32 s65, s65, 0\ns_mul_i32 s65, s65, 4160\ns_cmp_eq_u32 s30, 1\ns_cselect_b32 s66, 512, 0\ns_cselect_b32 s68, 8, 0\ns_add_u32 s66, s66, s65\ns_add_u32 s68, s68, s65')
        e('v_lshl_add_u32 v19, v0, 3, s66\nv_mov_b32 v20, s68')
        for i in range(4):
            e('ds_read_b64 v[%d:%d], v19 offset:%d\nds_read_b64 v[%d:%d], v20 offset:%d'%(24+2*i,25+2*i,L_PART+i*1040,32+2*i,33+2*i,L_PART+1024+i*1040))
        e('s_lshl_b32 s65, s31, 2\ns_add_u32 s65, s65, s30\ns_lshl_b32 s65, s65, 4\ns_add_u32 s65, s65, s64')
        e('s_lshl_b32 s66, s65, 10\ns_add_u32 s66, s66, %d\ns_lshl_b32 s65, s65, 4\ns_add_u32 s65, s65, %d'%(WS_PO,WS_PML))
        e('v_lshlrev_b32 v19, 4, v0\nv_mov_b32 v20, 0\nv_mov_b32 v13, s73\nv_mov_b32 v15, s73\nv_mov_b32 v41, s73\nv_mov_b32 v43, s73')
        e('s_waitcnt lgkmcnt(0)')
        e('v_max3_f32 v40, v32, v34, v36\nv_max_f32 v40, v40, v38')
        for i in range(4): e('v_sub_f32 v%d, v%d, v40'%(32+2*i,32+2*i))
        for i in range(4): e('v_exp_f32 v%d, v%d'%(32+2*i,32+2*i))
        e('s_nop 0\nv_mul_f32 v12, v32, v24\nv_mul_f32 v14, v32, v25\nv_mul_f32 v42, v32, v33')
        for i in range(1,4): e('v_fmac_f32 v12, v%d, v%d\nv_fmac_f32 v14, v%d, v%d\nv_fmac_f32 v42, v%d, v%d'%(32+2*i,24+2*i,32+2*i,25+2*i,32+2*i,33+2*i))
        e('buffer_store_dwordx4 v[12:15], v19, s[40:43], s66 offen sc1')
        e('s_mov_b64 exec, 1\nbuffer_store_dwordx4 v[40:43], v20, s[40:43], s65 offen sc1\ns_mov_b64 exec, -1')
    def tagpoll(s,loads,tagregs,tmp):
        e=s.e; L=s.lab('poll'); Lx=s.lab('pollx')
        e('s_mov_b32 s72, 0x200000\n%s:'%L)
        for l in loads: e(l)
        e('s_waitcnt vmcnt(0)')
        e('v_xor_b32 v%d, s73, v%d'%(tmp,tagregs[0]))
        for t in tagregs[1:]: e('v_xor_b32 v%d, s73, v%d\nv_or_b32 v%d, v%d, v%d'%(tmp+1,t,tmp,tmp,tmp+1))
        e('v_cmp_ne_u32 vcc, 0, v%d\ns_cbranch_vccz %s'%(tmp,Lx))
        if s.o.get('sleep'): e('s_sleep %d'%s.o['sleep'])
        e('s_sub_u32 s72, s72, 1\ns_cmp_lg_u32 s72, 0\ns_cbranch_scc1 %s\n%s:'%(L,Lx))
    def team_loads(s):
        e=s.e
        e('s_lshr_b32 s65, s64, 2\ns_lshl_b32 s66, s31, 2\ns_add_u32 s65, s65, s66')
        e('s_lshl_b32 s66, s65, 14\ns_and_b32 s68, s64, 3\ns_lshl_b32 s68, s68, 8\ns_add_u32 s66, s66, s68\ns_lshl_b32 s68, s30, 6\ns_add_u32 s66, s66, s68\ns_add_u32 s66, s66, %d'%WS_PO)
        e('s_lshl_b32 s65, s65, 8\ns_add_u32 s65, s65, %d'%WS_PML)
        e('v_and_b32 v19, 15, v0\nv_lshlrev_b32 v20, 4, v19\nv_lshlrev_b32 v19, 10, v19\nv_lshrrev_b32 v21, 4, v0\nv_lshl_add_u32 v19, v21, 4, v19')
        s.tagpoll(['buffer_load_dwordx4 v[24:27], v20, s[40:43], s65 offen sc1','buffer_load_dwordx4 v[28:31], v19, s[40:43], s66 offen sc1'],[25,27,29,31],32)
    def rowred(s,op,regs):
        for ror in (8,4,2,1):
            s.e('s_nop 1')
            for r in regs: s.e('%s_dpp v%d, v%d, v%d row_ror:%d row_mask:0xf bank_mask:0xf'%(op,r,r,r,ror))
    def team_proj(s):
        e=s.e
        e('v_mov_b32 v21, v24'); s.rowred('v_max_f32',[21])
        e('v_sub_f32 v24, v24, v21\nv_exp_f32 v24, v24\ns_nop 0\nv_mul_f32 v26, v26, v24\nv_mul_f32 v28, v28, v24\nv_mul_f32 v30, v30, v24')
        s.rowred('v_add_f32',[26,28,30])
        e('v_rcp_f32 v26, v26\ns_nop 0\nv_mul_f32 v28, v28, v26\nv_mul_f32 v30, v30, v26\nv_cvt_pk_bf16_f32 v28, v28, v28\nv_cvt_pk_bf16_f32 v30, v30, v30')
        for rg in range(2):
            for q in range(4): e('v_and_b32 v%d, v%d, v%d'%(32+4*rg+q,28+2*rg,4+q))
        e('s_nop 1')
        for rg in range(2):
            for cb in range(5):
                r=56+(rg*5+cb)*4; d=100+4*cb
                e('v_mfma_f32_16x16x32_bf16 v[%d:%d], v[%d:%d], v[%d:%d], %s'%(d,d+3,32+4*rg,35+4*rg,r,r+3,'0' if rg==0 else 'v[%d:%d]'%(d,d+3)))
        e('s_mul_i32 s65, s30, 2560\nv_and_b32 v19, 15, v0\nv_lshl_add_u32 v19, v19, 5, s65\nv_bfe_u32 v20, v0, 4, 1\nv_lshl_add_u32 v19, v20, 4, v19')
        e('s_nop 4\ns_mov_b32 exec_hi, 0')
        for cb in range(5): e('ds_write_b128 v19, v[%d:%d] offset:%d'%(100+4*cb,103+4*cb,L_YL+cb*512))
        e('s_mov_b64 exec, -1')
        e('s_cmp_lt_u32 s64, 8\ns_cselect_b32 s69, 1, 0\ns_mul_i32 s65, s69, %d\ns_and_b32 s66, s64, 7\ns_lshl_b32 s68, s31, 3\ns_add_u32 s66, s66, s68\ns_lshl_b32 s66, s66, 6\ns_add_u32 s65, s65, s66\ns_add_u32 s65, s65, %d'%(72*8192,WS_Y))
        e('v_lshlrev_b32 v19, 4, v3\nv_lshrrev_b32 v20, 1, v3\nv_lshlrev_b32 v20, 13, v20\nv_and_b32 v21, 1, v3\nv_lshl_add_u32 v20, v21, 5, v20')
        e('v_mov_b32 v41, s73\nv_mov_b32 v43, s73\nv_mov_b32 v45, s73\nv_mov_b32 v47, s73')
        e('s_waitcnt lgkmcnt(0)\ns_barrier')
        Ls=s.lab('noy')
        e('v_cmp_gt_u32 vcc, 144, v3\ns_and_saveexec_b64 s[70:71], vcc\ns_cbranch_execz %s'%Ls)
        for w in range(4): e('ds_read_b128 v[%d:%d], v19 offset:%d'%(24+4*w,27+4*w,L_YL+w*2560))
        e('s_waitcnt lgkmcnt(0)')
        for r in range(4): e('v_add_f32 v%d, v%d, v%d\nv_add_f32 v%d, v%d, v%d'%(24+r,24+r,28+r,32+r,32+r,36+r))
        for r in range(4): e('v_add_f32 v%d, v%d, v%d'%(40+2*r,24+r,32+r))
        e('buffer_store_dwordx4 v[40:43], v20, s[40:43], s65 offen sc1\nbuffer_store_dwordx4 v[44:47], v20, s[40:43], s65 offen offset:16 sc1')
        e('%s:\ns_mov_b64 exec, s[70:71]'%Ls)
    def final(s):
        e=s.e
        e('s_cmp_ge_u32 s3, 144\ns_cbranch_scc1 %s'%s.end)
        e('s_lshl_b32 s65, s3, 13\ns_add_u32 s65, s65, %d\ns_add_u32 s66, s65, 4096\nv_lshlrev_b32 v19, 4, v3'%WS_Y)
        e('s_mov_b32 s44, s24\ns_mov_b32 s45, s25\ns_mov_b32 s46, 2304\ns_mov_b32 s47, 0x20000')
        e('s_lshl_b32 s68, s30, 5\nv_and_b32 v21, 3, v0\nv_lshl_add_u32 v21, v21, 3, s68')
        s.tagpoll(['buffer_load_dwordx4 v[24:27], v19, s[40:43], s65 offen sc1','buffer_load_dwordx4 v[28:31], v19, s[40:43], s66 offen sc1'],[25,27,29,31],32)
        e('v_add_f32 v24, v24, v28\nv_add_f32 v25, v26, v30')
        for ror in (4,8):
            e('s_nop 1')
            for r in range(2): e('v_add_f32_dpp v%d, v%d, v%d row_ror:%d row_mask:0xf bank_mask:0xf'%(24+r,24+r,24+r,ror))
        for sw in ('32','16'):
            for r in range(2): e('v_mov_b32 v%d, v%d'%(28+r,24+r))
            e('s_nop 1')
            for r in range(2): e('v_permlane%s_swap_b32 v%d, v%d'%(sw,24+r,28+r))
            for r in range(2): e('v_add_f32 v%d, v%d, v%d'%(24+r,24+r,28+r))
        e('s_mov_b64 exec, 0xf\nds_write_b64 v21, v[24:25] offset:%d\ns_mov_b64 exec, -1'%L_FL)
        e('s_waitcnt lgkmcnt(0)\ns_barrier')
        e('s_cmp_lg_u32 s30, 0\ns_cbranch_scc1 %s'%s.end)
        e('s_mov_b64 exec, 0xff\nv_lshlrev_b32 v19, 2, v0')
        for w in range(4): e('ds_read_b32 v%d, v19 offset:%d'%(24+w,L_FL+32*w))
        e('s_lshl_b32 s65, s3, 4\nv_lshlrev_b32 v19, 1, v0\ns_waitcnt lgkmcnt(0)')
        e('v_add_f32 v24, v24, v25\nv_add_f32 v26, v26, v27\nv_add_f32 v24, v24, v26\nv_cvt_pk_bf16_f32 v24, v24, v24')
        e('buffer_store_short v24, v19, s[44:47], s65 offen')
        L=s.lab('noep')
        e('s_cmp_lg_u32 s3, 0\ns_cbranch_scc1 %s'%L)
        e('s_mov_b64 exec, 1\nv_mov_b32 v19, %d\nv_mov_b32 v20, s73\nbuffer_store_dword v20, v19, s[40:43], 0 offen sc1\n%s:'%(WS_E,L))
    def dryify(s,t0):
        lines='\n'.join(s.t[t0:]).split('\n'); out=[]; i=0
        while i<len(lines):
            l=lines[i]
            if l.startswith('buffer_') or l=='s_barrier':
                j=i
                while j<len(lines) and (lines[j].startswith('buffer_') or lines[j]=='s_barrier'): j+=1
                L=s.lab('skip'); out.append('s_cbranch_execz %s'%L); out+=lines[i:j]; out.append('%s:'%L); i=j; continue
            m=re.match(r's_mov_b64 exec, (-1|1|0x[0-9a-f]+)$',l)
            if m: l='s_and_b64 exec, s[82:83], %s'%m.group(1)
            if l.startswith('s_and_saveexec_b64') and lines[i+1].startswith('s_cbranch_execz'):
                out.append(l); tgt=lines[i+1].split()[1]; L=s.lab('fall')
                out.append('s_cmp_eq_u32 s82, 0\ns_cbranch_scc1 %s\ns_cbranch_execz %s\n%s:'%(L,tgt,L)); i+=2; continue
            out.append(l); i+=1
        s.t[t0:]=out
    def stamp(s,slot,kidx=0,first=False):
        if not s.o['stamp']: return
        e=s.e
        e('s_memrealtime s[92:93]\ns_getreg_b32 s94, hwreg(HW_REG_XCC_ID)\ns_waitcnt lgkmcnt(0)')
        e('s_add_u32 s84, s28, 0x60000000\ns_addc_u32 s85, s29, 0\ns_mov_b32 s86, 0x1000000\ns_mov_b32 s87, 0x20000')
        e('s_lshl_b32 s88, s2, 3\ns_add_u32 s88, s88, s30\ns_lshl_b32 s88, s88, 6\ns_add_u32 s88, s88, %d'%(slot*4))
        e('s_mov_b64 s[78:79], exec\ns_mov_b64 exec, 1\nv_mov_b32 v252, 0\nv_mov_b32 v253, s92')
        e('buffer_store_dword v253, v252, s[84:87], s88 offen')
        if first: e('v_mov_b32 v254, s90\nv_mov_b32 v255, s94\nbuffer_store_dwordx2 v[254:255], v252, s[84:87], s88 offen offset:4')
        if slot==4: e('v_mov_b32 v253, s95\nbuffer_store_dword v253, v252, s[84:87], s88 offen offset:44')
        e('s_mov_b64 exec, s[78:79]')
    def fused(s):
        e=s.e; R=s.o['R']
        k=s.px+NAME+'_kernel' if not s.px else s.px+'fused_kernel'
        s.head(k,256)
        Lsvc=s.lab('svc')
        e('s_mov_b64 s[82:83], -1\ns_cmp_eq_u32 s30, 4\ns_cbranch_scc1 %s'%Lsvc)
        s.q_issue(56,40)
        s.att_setup()
        halves=[]
        for sl in range(R): halves+= [lambda sl=sl: s.issueK(sl), lambda sl=sl: s.issueV(sl)]
        pre,hk,thr=s.o.get('fill',(2,(2,6),8))
        for h in halves[:pre]: h()
        hooks={i:halves[pre+n] for n,i in enumerate(hk) if pre+n<len(halves)}
        s.q_compute(56,40,24,20,4*pre,hooks)
        e('s_barrier')
        e('s_add_u32 s73, s73, 0x%x'%TAGINC)
        s.stamp(0,first=True)
        s.masks()
        for h in halves[pre+len(hooks):]:
            e('s_waitcnt vmcnt(%d)'%thr); h()
        s.stamp(11)
        e('s_barrier')
        s.stamp(3)
        s.att_loop(True); s.stamp(4)
        e('s_waitcnt lgkmcnt(0)\ns_barrier')
        Ltail=s.lab('tail'); e('%s:'%Ltail); t0=len(s.t)
        s.wg_combine(); s.stamp(5)
        s.team_loads(); s.stamp(6)
        s.team_proj(); s.stamp(7); s.final(); s.stamp(10)
        if s.o.get('dry'): s.dryify(t0)
        e('s_endpgm')
        e('%s:\ns_setprio 3\ns_waitcnt lgkmcnt(0)\ns_add_u32 s73, s73, 0x%x'%(Lsvc,TAGINC))
        if s.o.get('P'):
            L=s.lab('notlead')
            e('s_cmp_lg_u32 s64, 0\ns_cbranch_scc1 %s'%L)
            e('s_lshl_b32 s65, s31, 8\ns_add_u32 s65, s65, %d\nv_mov_b32 v19, 0\nv_mov_b32 v20, %d\ns_mov_b64 exec, 1'%(WS_CNT,64*s.o.get('LA',2)))
            e('buffer_store_dword v20, v19, s[40:43], s65 offen sc1\ns_mov_b64 exec, -1\ns_waitcnt vmcnt(0)\n%s:'%L)
        e('s_barrier')
        s.q_finish(24,'sc1')
        s.stamp(12)
        e('s_lshl_b32 s65, s31, 11\nv_lshlrev_b32 v19, 5, v0\nv_lshlrev_b32 v21, 4, v0')
        s.tagpoll(['buffer_load_dwordx4 v[24:27], v19, s[40:43], s65 offen sc1','buffer_load_dwordx4 v[28:31], v19, s[40:43], s65 offen offset:16 sc1'],[25,27,29,31],32)
        e('v_mov_b32 v25, v26\nv_mov_b32 v26, v28\nv_mov_b32 v27, v30')
        e('ds_write_b128 v21, v[24:27] offset:%d\ns_waitcnt lgkmcnt(0)'%L_Q)
        s.stamp(13)
        e('s_barrier')
        if s.o.get('dry'): e('s_setprio 0\nv_mov_b32 v19, 0\nv_mov_b32 v20, 0\nv_mov_b32 v21, 0\ns_mov_b64 s[82:83], 0\ns_mov_b64 exec, 0\ns_mov_b32 s3, 0\ns_mov_b32 s30, 0\ns_branch %s'%Ltail)
        nv=s.RING+32*R+(3 if s.o.get('P') else 0)
        s.tail(k,nv)
        launch='; @launch grid=(256,1,1) block=(320,1,1) lds=%d'%LDS_SIZE
        return launch,'%s:256:320:%d'%(k,LDS_SIZE),[(k,nv,320)]
    def build(s):
        launch,spec,ks=getattr(s,s.o['mode'])()
        return HDR+launch+'\n.amdgcn_target "amdgcn-amd-amdhsa--gfx950"\n'+'\n'.join(s.t)+'\n',spec,ks
def write(path,**o):
    t,spec,ks=G(**o).build(); open(path,'w').write(t); return spec,ks
if __name__=='__main__':
    o=eval('dict(%s)'%(sys.argv[2] if len(sys.argv)>2 else ''))
    print(write(sys.argv[1],**o))
```

```python
import sys, re, math, struct
NAME='concat_heads__mha_block_cached__gqa_block_cached__decode'
HDR=open('cdna_kernels/%s.s.ref'%NAME).read().split('; Override launch')[0]

WS_Q=0; WS_PO=0x10000; WS_PML=0x110000; WS_Y=0x120000; WS_E=0x240000; WS_CNT=0x241000; WS_SIZE=0x250000
TAGINC=0x9E3779B1
L_Q=0; L_QR=1024; L_PART=3072; L_YL=16384; L_FL=16384+4*2560; LDS_SIZE=L_FL+256
CSC=struct.unpack('<I',struct.pack('<f',math.log2(math.e)/math.sqrt(128)))[0]

class G:
    def __init__(s, **o):
        s.o=dict(mode='fused', pattern='wg', kfl='nt', vfl='nt', R=4, stamp=False, xcd=False); s.o.update(o)
        s.t=[]; s.uid=0; s.px=s.o.get('prefix','')
    def e(s,x): s.t.append(x)
    def lab(s,n): s.uid+=1; return 'L_%s%s_%d'%(s.px,n,s.uid)
    def head(s,name,nwg):
        s.e('.text\n.globl %s\n.p2align 8\n.type %s,@function\n%s:'%(name,name,name))
        s.end=s.lab('end')
        s.e('s_cmp_ge_u32 s2, %d\ns_cbranch_scc1 %s'%(nwg,s.end))
        s.e('s_load_dwordx16 s[4:19], s[0:1], 0\ns_load_dwordx8 s[20:27], s[0:1], 64\ns_load_dwordx2 s[28:29], s[0:1], 96')
        if s.o['stamp']: s.e('s_memrealtime s[90:91]\ns_mov_b32 s95, 0')
        s.e('v_lshrrev_b32 v1, 6, v0\nv_mov_b32 v3, v0\nv_and_b32 v0, 63, v0')
        s.e('v_readfirstlane_b32 s30, v1')
        if s.o['xcd']:
            s.e('s_and_b32 s31, s2, 7\ns_lshr_b32 s3, s2, 3\ns_lshl_b32 s31, s31, 5\ns_add_u32 s3, s3, s31')
        else: s.e('s_mov_b32 s3, s2')
        s.e('s_lshr_b32 s31, s3, 4\ns_and_b32 s64, s3, 15')
        s.e('s_waitcnt lgkmcnt(0)')
        s.e('s_mov_b32 s40, s28\ns_mov_b32 s41, s29\ns_mov_b32 s42, %d\ns_mov_b32 s43, 0x20000'%WS_SIZE)
        s.e('s_add_u32 s74, s28, %d\ns_addc_u32 s75, s29, 0\ns_load_dword s73, s[74:75], 0'%WS_E)
    def tail(s,name,nv,ns=96):
        if s.o['stamp']: nv=256
        s.e('%s:\ns_endpgm'%s.end)
        s.e('.section .rodata,"a"\n.p2align 6\n.amdhsa_kernel %s\n  .amdhsa_next_free_vgpr %d\n  .amdhsa_next_free_sgpr %d\n  .amdhsa_accum_offset %d\n  .amdhsa_group_segment_fixed_size 0\n  .amdhsa_kernarg_size 104\n  .amdhsa_user_sgpr_count 2\n  .amdhsa_user_sgpr_kernarg_segment_ptr 1\n  .amdhsa_system_sgpr_workgroup_id_x 1\n.end_amdhsa_kernel'%(name,nv,ns,(nv+3)//4*4))
    def q_issue(s,wb,xb):
        e=s.e
        if s.o.get('qpair',1): e('s_and_b32 s65, s64, 4\ns_cmp_eq_u32 s65, 0')
        else: e('s_cmp_lt_u32 s64, 8')
        e('s_cselect_b32 s44, s20, s10\ns_cselect_b32 s45, s21, s11\ns_cselect_b32 s48, s14, s4\ns_cselect_b32 s49, s15, s5')
        e('s_mov_b32 s46, %d\ns_mov_b32 s47, 0x20000\ns_mov_b32 s50, 1152\ns_mov_b32 s51, 0x20000'%(576*8192))
        if s.o.get('qpair',1): e('s_and_b32 s65, s64, 3\ns_lshl_b32 s65, s65, 7\ns_lshr_b32 s66, s64, 3\ns_lshl_b32 s66, s66, 6\ns_add_u32 s65, s65, s66\ns_lshl_b32 s66, s31, 9\ns_add_u32 s65, s65, s66')
        else: e('s_and_b32 s65, s64, 7\ns_lshl_b32 s65, s65, 6\ns_lshl_b32 s66, s31, 9\ns_add_u32 s65, s65, s66')
        e('v_lshrrev_b32 v4, 2, v3\nv_and_b32 v5, 3, v3\nv_lshlrev_b32 v5, 4, v5\nv_lshl_add_u32 v5, v4, 13, v5\nv_lshlrev_b32 v4, 1, v4')
        for i in range(9):
            e('buffer_load_ushort v%d, v4, s[48:51], 0 offen offset:%d'%(xb+i,i*128))
        for i in range(9):
            e('buffer_load_dwordx4 v[%d:%d], v5, s[44:47], s65 offen %s'%(wb+4*i,wb+4*i+3,s.o.get('qfl','nt')))
            if i<8: e('s_add_u32 s65, s65, %d'%(64*8192))
    def q_compute(s,wb,xb,ab,tb,newer,hooks={}):
        e=s.e
        for j in range(8): e('v_mov_b32 v%d, 0'%(ab+j))
        for i in range(9):
            e('s_waitcnt vmcnt(%d)'%(newer+8-i))
            if i in hooks: hooks[i](); newer+=4
            e('v_lshlrev_b32 v%d, 16, v%d'%(xb+i,xb+i))
            for d in range(4):
                e('v_lshlrev_b32 v%d, 16, v%d\nv_and_b32 v%d, 0xffff0000, v%d'%(tb,wb+4*i+d,tb+1,wb+4*i+d))
                e('v_fmac_f32 v%d, v%d, v%d\nv_fmac_f32 v%d, v%d, v%d'%(ab+2*d,xb+i,tb,ab+2*d+1,xb+i,tb+1))
        for ror in (4,8):
            e('s_nop 1')
            for j in range(8): e('v_add_f32_dpp v%d, v%d, v%d row_ror:%d row_mask:0xf bank_mask:0xf'%(ab+j,ab+j,ab+j,ror))
        e('v_lshrrev_b32 v%d, 4, v3\nv_and_b32 v%d, 3, v3\nv_lshlrev_b32 v%d, 5, v%d\nv_lshl_add_u32 v%d, v%d, 7, v%d'%(tb,tb+1,tb+1,tb+1,tb,tb,tb+1))
        e('ds_write_b128 v%d, v[%d:%d] offset:%d\nds_write_b128 v%d, v[%d:%d] offset:%d'%(tb,ab,ab+3,L_QR,tb,ab+4,ab+7,L_QR+16))
        e('s_waitcnt lgkmcnt(0)')
    def q_finish(s,tb,fl):
        e=s.e
        e('v_and_b32 v%d, 31, v0\nv_lshlrev_b32 v%d, 2, v%d\nv_lshrrev_b32 v%d, 5, v0\nv_lshl_add_u32 v%d, v%d, 10, v%d'%(tb,tb,tb,tb+1,tb,tb+1,tb))
        for p in range(8): e('ds_read_b32 v%d, v%d offset:%d'%(tb+2+p,tb,L_QR+p*128))
        if s.o.get('qpair',1): e('s_and_b32 s65, s64, 7\ns_lshl_b32 s65, s65, 1\ns_lshr_b32 s66, s64, 3\ns_add_u32 s65, s65, s66\ns_lshl_b32 s66, s31, 4\ns_add_u32 s65, s65, s66\ns_lshl_b32 s65, s65, 7')
        else: e('s_lshl_b32 s65, s3, 7')
        e('v_and_b32 v%d, 31, v0\nv_lshlrev_b32 v%d, 2, v%d'%(tb,tb,tb))
        e('s_waitcnt lgkmcnt(0)')
        for a,b in ((0,1),(2,3),(4,5),(6,7),(0,2),(4,6),(0,4)): e('v_add_f32 v%d, v%d, v%d'%(tb+2+a,tb+2+a,tb+2+b))
        e('v_mov_b32 v%d, v%d\ns_nop 1\nv_permlane32_swap_b32 v%d, v%d\nv_add_f32 v%d, v%d, v%d'%(tb+3,tb+2,tb+2,tb+3,tb+2,tb+2,tb+3))
        e('s_nop 1\nv_mov_b32_dpp v%d, v%d quad_perm:[1,0,3,2] row_mask:0xf bank_mask:0xf'%(tb+3,tb+2))
        e('v_cvt_pk_bf16_f32 v%d, v%d, v%d\nv_mov_b32 v%d, s73'%(tb+2,tb+2,tb+3,tb+3))
        e('s_mov_b32 exec_lo, 0x55555555\ns_mov_b32 exec_hi, 0')
        e('buffer_store_dwordx2 v[%d:%d], v%d, s[40:43], s65 offen %s'%(tb+2,tb+3,tb,fl))
        e('s_mov_b64 exec, -1')
    RING=96
    def att_setup(s):
        e=s.e
        e('s_lshl_b32 s65, s31, 24\ns_add_u32 s32, s16, s65\ns_addc_u32 s33, s17, 0\ns_add_u32 s36, s18, s65\ns_addc_u32 s37, s19, 0')
        e('s_lshl_b32 s65, s31, 25\ns_add_u32 s52, s6, s65\ns_addc_u32 s53, s7, 0\ns_add_u32 s54, s8, s65\ns_addc_u32 s55, s9, 0')
        e('s_add_u32 s56, s52, 0x1000000\ns_addc_u32 s57, s53, 0\ns_add_u32 s58, s54, 0x1000000\ns_addc_u32 s59, s55, 0')
        e('s_mov_b32 s34, 0x1000000\ns_mov_b32 s35, 0x20000\ns_mov_b32 s38, 0x1000000\ns_mov_b32 s39, 0x20000')
        if s.o['pattern']=='wg': e('s_lshl_b32 s60, s64, 20'); s.step=16384
        else: e('s_lshl_b32 s60, s64, 14'); s.step=262144
        e('s_lshl_b32 s65, s30, 12\ns_add_u32 s60, s60, s65\ns_mov_b32 s61, s60')
        if s.o.get('xm'):
            s.xorval('s64'); e('s_xor_b32 s69, s61, s68')
        e('v_and_b32 v1, 3, v0\nv_lshlrev_b32 v1, 10, v1\nv_bfe_u32 v2, v0, 2, 2\nv_lshl_add_u32 v1, v2, 8, v1\nv_lshrrev_b32 v2, 4, v0\nv_lshl_add_u32 v1, v2, 4, v1')
        e('v_lshlrev_b32 v2, 4, v0')
    def xorval(s,m):
        a,b=s.o['xm']
        s.e('s_mul_i32 s68, %s, %d\ns_mul_i32 s66, s31, %d\ns_add_u32 s68, s68, s66\ns_and_b32 s68, s68, 63\ns_mul_i32 s68, s68, %d'%(m,a,b,s.step))
    def masks(s):
        e=s.e
        e('v_and_b32 v8, 1, v0\nv_cmp_eq_u32 vcc, 1, v8\nv_mov_b32 v9, 0xffff\nv_mov_b32 v10, 0xffff0000\nv_cndmask_b32 v9, v9, v10, vcc\nv_bfe_u32 v8, v0, 1, 2')
        for q in range(4): e('v_cmp_eq_u32 vcc, %d, v8\ns_nop 1\nv_cndmask_b32 v%d, 0, v9, vcc'%(q,4+q))
    def issueK(s,sl):
        for i in range(4):
            r=s.RING+sl*32+4*i
            s.e('buffer_load_dwordx4 v[%d:%d], v1, s[32:35], %s offen offset:%d %s'%(r,r+3,'s69' if s.o.get('xm') else 's61',64*i,s.o['kfl']))
    def issueV(s,sl):
        for i in range(4):
            r=s.RING+sl*32+16+4*i
            s.e('buffer_load_dwordx4 v[%d:%d], v2, s[36:39], %s offen offset:%d %s'%(r,r+3,'s69' if s.o.get('xm') else 's61',1024*i,s.o['vfl']))
        s.e('s_add_u32 s61, s61, %d'%s.step)
        if s.o.get('xm'): s.e('s_xor_b32 s69, s61, s68')
    def wo_issue(s):
        e=s.e
        e('s_cmp_lt_u32 s64, 8\ns_cselect_b32 s44, s22, s12\ns_cselect_b32 s45, s23, s13')
        e('s_and_b32 s65, s64, 7\ns_lshl_b32 s65, s65, 5\ns_lshl_b32 s66, s31, 8\ns_add_u32 s65, s65, s66\ns_mul_i32 s65, s65, 1152')
        e('s_add_u32 s44, s44, s65\ns_addc_u32 s45, s45, 0\ns_sub_u32 s46, %d, s65\ns_mov_b32 s47, 0x20000'%(4096*1152))
        e('s_mul_i32 s65, s30, %d'%(8*1152))
        e('v_lshrrev_b32 v26, 4, v0\nv_mul_u32_u24 v26, 2304, v26\nv_and_b32 v27, 15, v0\nv_lshl_add_u32 v26, v27, 4, v26')
        for cb in range(5):
            if cb==4: e('s_mov_b32 exec_lo, 0x00ff00ff\ns_mov_b32 exec_hi, 0x00ff00ff')
            for rg in range(2):
                r=56+(rg*5+cb)*4
                e('buffer_load_dwordx4 v[%d:%d], v26, s[44:47], s65 offen offset:%d nt'%(r,r+3,rg*1152+cb*256))
        e('s_mov_b64 exec, -1')
    def q_operand(s,first):
        e=s.e
        if first: e('v_bfe_u32 v19, v0, 3, 1\nv_lshlrev_b32 v19, 8, v19\nv_lshrrev_b32 v24, 4, v0\nv_lshl_add_u32 v19, v24, 4, v19')
        else: e('s_add_u32 s65, s62, 1\ns_lshl_b32 s65, s65, 8\nv_lshrrev_b32 v19, 4, v0\nv_lshl_add_u32 v19, v19, 4, s65')
        for i in range(4): e('ds_read_b128 v[%d:%d], v19 offset:%d'%(40+4*i,43+4*i,L_Q+64*i))
        e('v_mov_b32 v12, 0\nv_mov_b32 v13, 0\nv_mov_b32 v14, 0\nv_mov_b32 v15, 0\nv_mov_b32 v16, 0xff800000\nv_mov_b32 v17, 0xff800000\nv_mov_b32 v18, 0')
        e('s_waitcnt lgkmcnt(0)')
    def tile(s,sl,n,rare):
        e=s.e
        kb=s.RING+sl*32; vb=kb+16
        e('s_waitcnt vmcnt(%d)'%n)
        for i in range(4):
            e('v_mfma_f32_16x16x32_bf16 v[8:11], v[%d:%d], v[%d:%d], %s'%(kb+4*i,kb+4*i+3,40+4*i,43+4*i,'0' if i==0 else 'v[8:11]'))
        s.issueK(sl)
        e('s_nop 3')
        La=s.lab('rare'); Lb=s.lab('back'); rare.append((La,Lb))
        e('v_max3_f32 v19, v8, v9, v10\nv_max_f32 v19, v19, v11\nv_cmp_gt_f32 vcc, v19, v16\ns_cbranch_vccnz %s\n%s:'%(La,Lb))
        for r in range(4): e('v_fma_f32 v%d, v%d, s67, -v17'%(20+r,8+r))
        for r in range(4): e('v_exp_f32 v%d, v%d'%(20+r,20+r))
        e('v_add_f32 v18, v18, v20\nv_cvt_pk_bf16_f32 v20, v20, v20')
        for r in range(1,4): e('v_add_f32 v18, v18, v%d\nv_cvt_pk_bf16_f32 v%d, v%d, v%d'%(20+r,20+r,20+r,20+r))
        for r in range(4):
            for q in range(4): e('v_and_b32 v%d, v%d, v%d'%(24+4*r+q,20+r,4+q))
        e('s_waitcnt vmcnt(%d)'%n)
        e('s_nop 0')
        for r in range(4):
            e('v_mfma_f32_16x16x32_bf16 v[12:15], v[%d:%d], v[%d:%d], v[12:15]'%(24+4*r,27+4*r,vb+4*r,vb+4*r+3))
        s.issueV(sl)
    def att_loop(s,wo_prefetch):
        e=s.e; R=s.o['R']; n=4+8*(R-1); P=s.o.get('P',0); C=s.o.get('C',2); NI=64//R
        Lr=s.lab('round'); Ll=s.lab('loop'); Ln=s.lab('nosw'); rare=[]; Lfl=s.lab('flush'); Ldyn=s.lab('dyn')
        e('s_mov_b32 s62, 0\ns_mov_b32 s67, 0x%x'%CSC)
        s.q_operand(True)
        e('%s:\ns_mov_b32 s63, %d'%(Lr,NI))
        if P: e('s_cmp_eq_u32 s62, 2\ns_cselect_b32 s63, %d, s63\ns_cselect_b32 s76, 0, 1'%(NI-1-P))
        else: e('s_mov_b32 s76, 1')
        e('%s:'%Ll)
        e('s_cmp_lg_u32 s63, s76\ns_cbranch_scc1 %s'%Ln)
        e('s_mov_b32 s32, s52\ns_mov_b32 s33, s53\ns_mov_b32 s36, s54\ns_mov_b32 s37, s55\ns_mov_b64 s[52:53], s[56:57]\ns_mov_b64 s[54:55], s[58:59]\ns_mov_b32 s61, s60')
        if s.o.get('xm'): e('s_xor_b32 s69, s61, s68')
        e('s_cmp_lt_u32 s62, 2\ns_cselect_b32 s34, s34, 0\ns_mov_b32 s38, s34')
        e('%s:'%Ln)
        for sl in range(R): s.tile(sl,n,rare)
        e('s_sub_u32 s63, s63, 1\ns_cmp_lg_u32 s63, 0\ns_cbranch_scc1 %s'%Ll)
        if P:
            TK=s.RING+32*R; Lp=s.lab('dloop'); LA=s.o.get('LA',2); NS=R//C; PL=s.o.get('perlane',0)
            G_=16 if PL else 64; total=G_*P*R//C; sh=4 if PL else 6
            assert LA in (1,2) and (LA==1 or NS%2==0)
            e('s_cmp_lg_u32 s62, 2\ns_cbranch_scc1 %s'%Lfl)
            if PL: e('s_mov_b32 s77, s64\ns_lshl_b32 s81, s31, 2\ns_add_u32 s81, s81, s30\ns_lshl_b32 s81, s81, 8\ns_lshl_b32 s89, s30, 12\ns_add_u32 s89, s89, %d'%((NI-P)*R*s.step))
            else: e('s_lshl_b32 s77, s64, 2\ns_add_u32 s77, s77, s30\ns_lshl_b32 s81, s31, 10')
            e('s_mov_b32 s80, 0x7fffffff\ns_add_u32 s81, s81, %d\nv_mov_b32 v%d, 0'%(WS_CNT,TK+2))
            if LA==2: e('s_add_u32 s65, s77, %d\nv_mov_b32 v%d, s65'%(G_,TK+1))
            s.stamp(14)
            e('%s:'%Lp)
            msh=20 if s.o['pattern']=='wg' else 14
            for h in range(NS):
                tk=TK+(h%2 if LA==2 else 0); tkn=TK+((h+1)%2 if LA==2 else 0)
                e('s_cmp_lt_u32 s77, %d\ns_cselect_b32 s34, 0x1000000, 0\ns_cselect_b32 s65, s80, %d\ns_mov_b32 s38, s34\ns_min_u32 s80, s80, s65'%(total,R//C))
                e('s_cmp_eq_u32 s80, 0\ns_cbranch_scc1 %s\ns_sub_u32 s80, s80, 1'%Lfl)
                e('v_mov_b32 v%d, 1\ns_lshr_b32 s65, s77, %d\ns_and_b32 s65, s65, 63\ns_mul_i32 s65, s65, %d'%(tk,sh,C*s.step))
                if PL: e('s_add_u32 s61, s65, s89\ns_and_b32 s65, s77, 15')
                else: e('s_add_u32 s61, s65, %d\ns_and_b32 s65, s77, 3\ns_lshl_b32 s65, s65, 12\ns_add_u32 s61, s61, s65\ns_bfe_u32 s65, s77, 0x40002'%((NI-P)*R*s.step))
                if s.o.get('xm'): s.xorval('s65')
                e('s_lshl_b32 s65, s65, %d\ns_add_u32 s61, s61, s65'%msh)
                if s.o.get('xm'): e('s_xor_b32 s69, s61, s68')
                e('s_mov_b64 exec, 1\nbuffer_atomic_add v%d, v%d, s[40:43], s81 offen sc0 sc1\ns_mov_b64 exec, -1'%(tk,TK+2))
                for sl in range(h*C,h*C+C): s.tile(sl,n+1,rare)
                e('s_waitcnt vmcnt(%d)\nv_readfirstlane_b32 s77, v%d'%(8*C if LA==1 else 16*C+1,tkn))
                if s.o['stamp']: e('s_add_u32 s95, s95, 1')
            e('s_branch %s'%Lp)
        e('%s:'%Lfl)
        e('v_mov_b32 v19, v18\ns_nop 1\nv_permlane32_swap_b32 v18, v19\nv_add_f32 v18, v18, v19\nv_mov_b32 v19, v18\ns_nop 1\nv_permlane16_swap_b32 v18, v19\nv_add_f32 v18, v18, v19')
        e('s_lshl_b32 s65, s62, 2\ns_add_u32 s65, s65, s30\ns_mul_i32 s65, s65, 1040')
        e('v_lshrrev_b32 v19, 5, v0\nv_lshlrev_b32 v19, 9, v19\nv_and_b32 v20, 15, v0\nv_lshl_add_u32 v19, v20, 5, v19\nv_bfe_u32 v20, v0, 4, 1\nv_lshl_add_u32 v19, v20, 4, v19\nv_add_u32 v19, s65, v19')
        e('v_bfe_u32 v20, v0, 3, 1\nv_lshl_add_u32 v20, v20, 3, s65\nv_mov_b32 v22, v17\nv_mov_b32 v23, v18')
        e('ds_write_b128 v19, v[12:15] offset:%d\nds_write_b64 v20, v[22:23] offset:%d'%(L_PART,L_PART+1024))
        Ld=s.lab('done')
        e('s_add_u32 s62, s62, 1\ns_cmp_eq_u32 s62, 3\ns_cbranch_scc1 %s'%Ld)
        e('s_waitcnt lgkmcnt(0)')
        if s.o['stamp']:
            La=s.lab('st'); Lb=s.lab('st')
            e('s_cmp_eq_u32 s62, 1\ns_cbranch_scc1 %s'%La); s.stamp(9); e('s_branch %s\n%s:'%(Lb,La)); s.stamp(8); e('%s:'%Lb)
        if wo_prefetch:
            Lw=s.lab('nowo')
            e('s_cmp_lg_u32 s62, 1\ns_cbranch_scc1 %s'%Lw); s.wo_issue(); e('%s:'%Lw)
        s.q_operand(False)
        e('s_branch %s'%Lr)
        for La,Lb in rare:
            e('%s:'%La)
            e('v_max_f32 v19, v19, v16\nv_mov_b32 v24, v19\ns_nop 1\nv_permlane32_swap_b32 v19, v24\nv_max_f32 v19, v19, v24\nv_mov_b32 v24, v19\ns_nop 1\nv_permlane16_swap_b32 v19, v24\nv_max_f32 v16, v19, v24')
            e('v_mul_f32 v24, s67, v16\nv_sub_f32 v25, v17, v24\nv_exp_f32 v25, v25\nv_mov_b32 v17, v24\ns_nop 0\nv_mul_f32 v18, v18, v25')
            e('v_mov_b32_dpp v26, v25 row_newbcast:0 row_mask:0x3 bank_mask:0xf\nv_mov_b32_dpp v26, v25 row_newbcast:8 row_mask:0xc bank_mask:0xf')
            for r in range(4): e('v_mul_f32 v%d, v%d, v26'%(12+r,12+r))
            e('s_branch %s'%Lb)
        e('%s:'%Ld)
    def wg_combine(s):
        e=s.e
        e('s_sub_u32 s65, s30, 1\ns_max_i32 s65, s65, 0\ns_mul_i32 s65, s65, 4160\ns_cmp_eq_u32 s30, 1\ns_cselect_b32 s66, 512, 0\ns_cselect_b32 s68, 8, 0\ns_add_u32 s66, s66, s65\ns_add_u32 s68, s68, s65')
        e('v_lshl_add_u32 v19, v0, 3, s66\nv_mov_b32 v20, s68')
        for i in range(4):
            e('ds_read_b64 v[%d:%d], v19 offset:%d\nds_read_b64 v[%d:%d], v20 offset:%d'%(24+2*i,25+2*i,L_PART+i*1040,32+2*i,33+2*i,L_PART+1024+i*1040))
        e('s_lshl_b32 s65, s31, 2\ns_add_u32 s65, s65, s30\ns_lshl_b32 s65, s65, 4\ns_add_u32 s65, s65, s64')
        e('s_lshl_b32 s66, s65, 10\ns_add_u32 s66, s66, %d\ns_lshl_b32 s65, s65, 4\ns_add_u32 s65, s65, %d'%(WS_PO,WS_PML))
        e('v_lshlrev_b32 v19, 4, v0\nv_mov_b32 v20, 0\nv_mov_b32 v13, s73\nv_mov_b32 v15, s73\nv_mov_b32 v41, s73\nv_mov_b32 v43, s73')
        e('s_waitcnt lgkmcnt(0)')
        e('v_max3_f32 v40, v32, v34, v36\nv_max_f32 v40, v40, v38')
        for i in range(4): e('v_sub_f32 v%d, v%d, v40'%(32+2*i,32+2*i))
        for i in range(4): e('v_exp_f32 v%d, v%d'%(32+2*i,32+2*i))
        e('s_nop 0\nv_mul_f32 v12, v32, v24\nv_mul_f32 v14, v32, v25\nv_mul_f32 v42, v32, v33')
        for i in range(1,4): e('v_fmac_f32 v12, v%d, v%d\nv_fmac_f32 v14, v%d, v%d\nv_fmac_f32 v42, v%d, v%d'%(32+2*i,24+2*i,32+2*i,25+2*i,32+2*i,33+2*i))
        e('buffer_store_dwordx4 v[12:15], v19, s[40:43], s66 offen sc1')
        e('s_mov_b64 exec, 1\nbuffer_store_dwordx4 v[40:43], v20, s[40:43], s65 offen sc1\ns_mov_b64 exec, -1')
    def tagpoll(s,loads,tagregs,tmp):
        e=s.e; L=s.lab('poll'); Lx=s.lab('pollx')
        e('s_mov_b32 s72, 0x200000\n%s:'%L)
        for l in loads: e(l)
        e('s_waitcnt vmcnt(0)')
        e('v_xor_b32 v%d, s73, v%d'%(tmp,tagregs[0]))
        for t in tagregs[1:]: e('v_xor_b32 v%d, s73, v%d\nv_or_b32 v%d, v%d, v%d'%(tmp+1,t,tmp,tmp,tmp+1))
        e('v_cmp_ne_u32 vcc, 0, v%d\ns_cbranch_vccz %s'%(tmp,Lx))
        if s.o.get('sleep'): e('s_sleep %d'%s.o['sleep'])
        e('s_sub_u32 s72, s72, 1\ns_cmp_lg_u32 s72, 0\ns_cbranch_scc1 %s\n%s:'%(L,Lx))
    def team_loads(s):
        e=s.e
        e('s_lshr_b32 s65, s64, 2\ns_lshl_b32 s66, s31, 2\ns_add_u32 s65, s65, s66')
        e('s_lshl_b32 s66, s65, 14\ns_and_b32 s68, s64, 3\ns_lshl_b32 s68, s68, 8\ns_add_u32 s66, s66, s68\ns_lshl_b32 s68, s30, 6\ns_add_u32 s66, s66, s68\ns_add_u32 s66, s66, %d'%WS_PO)
        e('s_lshl_b32 s65, s65, 8\ns_add_u32 s65, s65, %d'%WS_PML)
        e('v_and_b32 v19, 15, v0\nv_lshlrev_b32 v20, 4, v19\nv_lshlrev_b32 v19, 10, v19\nv_lshrrev_b32 v21, 4, v0\nv_lshl_add_u32 v19, v21, 4, v19')
        s.tagpoll(['buffer_load_dwordx4 v[24:27], v20, s[40:43], s65 offen sc1','buffer_load_dwordx4 v[28:31], v19, s[40:43], s66 offen sc1'],[25,27,29,31],32)
    def rowred(s,op,regs):
        for ror in (8,4,2,1):
            s.e('s_nop 1')
            for r in regs: s.e('%s_dpp v%d, v%d, v%d row_ror:%d row_mask:0xf bank_mask:0xf'%(op,r,r,r,ror))
    def team_proj(s):
        e=s.e
        e('v_mov_b32 v21, v24'); s.rowred('v_max_f32',[21])
        e('v_sub_f32 v24, v24, v21\nv_exp_f32 v24, v24\ns_nop 0\nv_mul_f32 v26, v26, v24\nv_mul_f32 v28, v28, v24\nv_mul_f32 v30, v30, v24')
        s.rowred('v_add_f32',[26,28,30])
        e('v_rcp_f32 v26, v26\ns_nop 0\nv_mul_f32 v28, v28, v26\nv_mul_f32 v30, v30, v26\nv_cvt_pk_bf16_f32 v28, v28, v28\nv_cvt_pk_bf16_f32 v30, v30, v30')
        for rg in range(2):
            for q in range(4): e('v_and_b32 v%d, v%d, v%d'%(32+4*rg+q,28+2*rg,4+q))
        e('s_nop 1')
        for rg in range(2):
            for cb in range(5):
                r=56+(rg*5+cb)*4; d=100+4*cb
                e('v_mfma_f32_16x16x32_bf16 v[%d:%d], v[%d:%d], v[%d:%d], %s'%(d,d+3,32+4*rg,35+4*rg,r,r+3,'0' if rg==0 else 'v[%d:%d]'%(d,d+3)))
        e('s_mul_i32 s65, s30, 2560\nv_and_b32 v19, 15, v0\nv_lshl_add_u32 v19, v19, 5, s65\nv_bfe_u32 v20, v0, 4, 1\nv_lshl_add_u32 v19, v20, 4, v19')
        e('s_nop 4\ns_mov_b32 exec_hi, 0')
        for cb in range(5): e('ds_write_b128 v19, v[%d:%d] offset:%d'%(100+4*cb,103+4*cb,L_YL+cb*512))
        e('s_mov_b64 exec, -1')
        e('s_cmp_lt_u32 s64, 8\ns_cselect_b32 s69, 1, 0\ns_mul_i32 s65, s69, %d\ns_and_b32 s66, s64, 7\ns_lshl_b32 s68, s31, 3\ns_add_u32 s66, s66, s68\ns_lshl_b32 s66, s66, 6\ns_add_u32 s65, s65, s66\ns_add_u32 s65, s65, %d'%(72*8192,WS_Y))
        e('v_lshlrev_b32 v19, 4, v3\nv_lshrrev_b32 v20, 1, v3\nv_lshlrev_b32 v20, 13, v20\nv_and_b32 v21, 1, v3\nv_lshl_add_u32 v20, v21, 5, v20')
        e('v_mov_b32 v41, s73\nv_mov_b32 v43, s73\nv_mov_b32 v45, s73\nv_mov_b32 v47, s73')
        e('s_waitcnt lgkmcnt(0)\ns_barrier')
        Ls=s.lab('noy')
        e('v_cmp_gt_u32 vcc, 144, v3\ns_and_saveexec_b64 s[70:71], vcc\ns_cbranch_execz %s'%Ls)
        for w in range(4): e('ds_read_b128 v[%d:%d], v19 offset:%d'%(24+4*w,27+4*w,L_YL+w*2560))
        e('s_waitcnt lgkmcnt(0)')
        for r in range(4): e('v_add_f32 v%d, v%d, v%d\nv_add_f32 v%d, v%d, v%d'%(24+r,24+r,28+r,32+r,32+r,36+r))
        for r in range(4): e('v_add_f32 v%d, v%d, v%d'%(40+2*r,24+r,32+r))
        e('buffer_store_dwordx4 v[40:43], v20, s[40:43], s65 offen sc1\nbuffer_store_dwordx4 v[44:47], v20, s[40:43], s65 offen offset:16 sc1')
        e('%s:\ns_mov_b64 exec, s[70:71]'%Ls)
    def final(s):
        e=s.e
        e('s_cmp_ge_u32 s3, 144\ns_cbranch_scc1 %s'%s.end)
        e('s_lshl_b32 s65, s3, 13\ns_add_u32 s65, s65, %d\ns_add_u32 s66, s65, 4096\nv_lshlrev_b32 v19, 4, v3'%WS_Y)
        e('s_mov_b32 s44, s24\ns_mov_b32 s45, s25\ns_mov_b32 s46, 2304\ns_mov_b32 s47, 0x20000')
        e('s_lshl_b32 s68, s30, 5\nv_and_b32 v21, 3, v0\nv_lshl_add_u32 v21, v21, 3, s68')
        s.tagpoll(['buffer_load_dwordx4 v[24:27], v19, s[40:43], s65 offen sc1','buffer_load_dwordx4 v[28:31], v19, s[40:43], s66 offen sc1'],[25,27,29,31],32)
        if s.o['stamp']: e('s_sub_u32 s95, 0x200000, s72'); s.stamp(12,cnt=True)
        e('v_add_f32 v24, v24, v28\nv_add_f32 v25, v26, v30')
        for ror in (4,8):
            e('s_nop 1')
            for r in range(2): e('v_add_f32_dpp v%d, v%d, v%d row_ror:%d row_mask:0xf bank_mask:0xf'%(24+r,24+r,24+r,ror))
        for sw in ('32','16'):
            for r in range(2): e('v_mov_b32 v%d, v%d'%(28+r,24+r))
            e('s_nop 1')
            for r in range(2): e('v_permlane%s_swap_b32 v%d, v%d'%(sw,24+r,28+r))
            for r in range(2): e('v_add_f32 v%d, v%d, v%d'%(24+r,24+r,28+r))
        e('s_mov_b64 exec, 0xf\nds_write_b64 v21, v[24:25] offset:%d\ns_mov_b64 exec, -1'%L_FL)
        e('s_waitcnt lgkmcnt(0)\ns_barrier')
        e('s_cmp_lg_u32 s30, 0\ns_cbranch_scc1 %s'%s.end)
        e('s_mov_b64 exec, 0xff\nv_lshlrev_b32 v19, 2, v0')
        for w in range(4): e('ds_read_b32 v%d, v19 offset:%d'%(24+w,L_FL+32*w))
        e('s_lshl_b32 s65, s3, 4\nv_lshlrev_b32 v19, 1, v0\ns_waitcnt lgkmcnt(0)')
        e('v_add_f32 v24, v24, v25\nv_add_f32 v26, v26, v27\nv_add_f32 v24, v24, v26\nv_cvt_pk_bf16_f32 v24, v24, v24')
        e('buffer_store_short v24, v19, s[44:47], s65 offen')
        L=s.lab('noep')
        e('s_cmp_lg_u32 s3, 0\ns_cbranch_scc1 %s'%L)
        e('s_mov_b64 exec, 1\nv_mov_b32 v19, %d\nv_mov_b32 v20, s73\nbuffer_store_dword v20, v19, s[40:43], 0 offen sc1\n%s:'%(WS_E,L))
    def dryify(s,t0):
        lines='\n'.join(s.t[t0:]).split('\n'); out=[]; i=0
        while i<len(lines):
            l=lines[i]
            if l.startswith('buffer_') or l=='s_barrier':
                j=i
                while j<len(lines) and (lines[j].startswith('buffer_') or lines[j]=='s_barrier'): j+=1
                L=s.lab('skip'); out.append('s_cbranch_execz %s'%L); out+=lines[i:j]; out.append('%s:'%L); i=j; continue
            m=re.match(r's_mov_b64 exec, (-1|1|0x[0-9a-f]+)$',l)
            if m: l='s_and_b64 exec, s[82:83], %s'%m.group(1)
            if l.startswith('s_and_saveexec_b64') and lines[i+1].startswith('s_cbranch_execz'):
                out.append(l); tgt=lines[i+1].split()[1]; L=s.lab('fall')
                out.append('s_cmp_eq_u32 s82, 0\ns_cbranch_scc1 %s\ns_cbranch_execz %s\n%s:'%(L,tgt,L)); i+=2; continue
            out.append(l); i+=1
        s.t[t0:]=out
    def stamp(s,slot,kidx=0,first=False,cnt=False):
        if not s.o['stamp']: return
        e=s.e
        e('s_memrealtime s[92:93]\ns_getreg_b32 s94, hwreg(HW_REG_XCC_ID)\ns_waitcnt lgkmcnt(0)')
        e('s_add_u32 s84, s28, 0x60000000\ns_addc_u32 s85, s29, 0\ns_mov_b32 s86, 0x1000000\ns_mov_b32 s87, 0x20000')
        e('s_lshl_b32 s88, s2, 3\ns_add_u32 s88, s88, s30\ns_lshl_b32 s88, s88, 6\ns_add_u32 s88, s88, %d'%(slot*4))
        e('s_mov_b64 s[78:79], exec\ns_mov_b64 exec, 1\nv_mov_b32 v252, 0\nv_mov_b32 v253, s92')
        e('buffer_store_dword v253, v252, s[84:87], s88 offen')
        if first: e('v_mov_b32 v254, s90\nv_mov_b32 v255, s94\nbuffer_store_dwordx2 v[254:255], v252, s[84:87], s88 offen offset:4')
        if cnt: e('v_mov_b32 v253, s95\nbuffer_store_dword v253, v252, s[84:87], s88 offen offset:4')
        if slot==4: e('v_mov_b32 v253, s95\nbuffer_store_dword v253, v252, s[84:87], s88 offen offset:44')
        e('s_mov_b64 exec, s[78:79]')
    def fused(s):
        e=s.e; R=s.o['R']
        k=s.px+NAME+'_kernel' if not s.px else s.px+'fused_kernel'
        s.head(k,256)
        Lsvc=s.lab('svc')
        e('s_mov_b64 s[82:83], -1\ns_cmp_eq_u32 s30, 4\ns_cbranch_scc1 %s'%Lsvc)
        s.q_issue(56,40)
        s.att_setup()
        halves=[]
        for sl in range(R): halves+= [lambda sl=sl: s.issueK(sl), lambda sl=sl: s.issueV(sl)]
        pre,hk,thr=s.o.get('fill',(2,(2,6),8))
        for h in halves[:pre]: h()
        hooks={i:halves[pre+n] for n,i in enumerate(hk) if pre+n<len(halves)}
        s.q_compute(56,40,24,20,4*pre,hooks)
        e('s_barrier')
        e('s_add_u32 s73, s73, 0x%x'%TAGINC)
        s.stamp(0,first=True)
        s.masks()
        for h in halves[pre+len(hooks):]:
            e('s_waitcnt vmcnt(%d)'%thr); h()
        s.stamp(11)
        e('s_barrier')
        s.stamp(3)
        s.att_loop(True); s.stamp(4)
        e('s_waitcnt lgkmcnt(0)\ns_barrier')
        Ltail=s.lab('tail'); e('%s:'%Ltail); t0=len(s.t)
        s.wg_combine(); s.stamp(5)
        s.team_loads(); s.stamp(6)
        s.team_proj(); s.stamp(7); s.final(); s.stamp(10)
        if s.o.get('dry'): s.dryify(t0)
        e('s_endpgm')
        e('%s:\ns_setprio 3\ns_waitcnt lgkmcnt(0)\ns_add_u32 s73, s73, 0x%x'%(Lsvc,TAGINC))
        if s.o.get('P'):
            L=s.lab('notlead')
            e('s_cmp_lg_u32 s64, 0\ns_cbranch_scc1 %s'%L)
            e('s_lshl_b32 s65, s31, 10\ns_add_u32 s65, s65, %d\nv_lshlrev_b32 v19, 8, v0\nv_mov_b32 v20, %d\ns_mov_b64 exec, 0xf'%(WS_CNT,(16 if s.o.get('perlane') else 64)*s.o.get('LA',2)))
            e('buffer_store_dword v20, v19, s[40:43], s65 offen sc1\ns_mov_b64 exec, -1\ns_waitcnt vmcnt(0)\n%s:'%L)
        e('s_barrier')
        s.q_finish(24,'sc1')
        s.stamp(12)
        e('s_lshl_b32 s65, s31, 11\nv_lshlrev_b32 v19, 5, v0\nv_lshlrev_b32 v21, 4, v0')
        s.tagpoll(['buffer_load_dwordx4 v[24:27], v19, s[40:43], s65 offen sc1','buffer_load_dwordx4 v[28:31], v19, s[40:43], s65 offen offset:16 sc1'],[25,27,29,31],32)
        e('v_mov_b32 v25, v26\nv_mov_b32 v26, v28\nv_mov_b32 v27, v30')
        e('ds_write_b128 v21, v[24:27] offset:%d\ns_waitcnt lgkmcnt(0)'%L_Q)
        s.stamp(13)
        e('s_barrier')
        if s.o.get('dry'): e('s_setprio 0\nv_mov_b32 v19, 0\nv_mov_b32 v20, 0\nv_mov_b32 v21, 0\ns_mov_b64 s[82:83], 0\ns_mov_b64 exec, 0\ns_mov_b32 s3, 0\ns_mov_b32 s30, 0\ns_branch %s'%Ltail)
        nv=s.RING+32*R+(3 if s.o.get('P') else 0)
        s.tail(k,nv)
        launch='; @launch grid=(256,1,1) block=(320,1,1) lds=%d'%LDS_SIZE
        return launch,'%s:256:320:%d'%(k,LDS_SIZE),[(k,nv,320)]
    def build(s):
        launch,spec,ks=getattr(s,s.o['mode'])()
        return HDR+launch+'\n.amdgcn_target "amdgcn-amd-amdhsa--gfx950"\n'+'\n'.join(s.t)+'\n',spec,ks
def write(path,**o):
    t,spec,ks=G(**o).build(); open(path,'w').write(t); return spec,ks
if __name__=='__main__':
    o=eval('dict(%s)'%(sys.argv[2] if len(sys.argv)>2 else ''))
    print(write(sys.argv[1],**o))
```

```python
import sys, re, math, struct
NAME='concat_heads__mha_block_cached__gqa_block_cached__decode'
HDR=open('cdna_kernels/%s.s.ref'%NAME).read().split('; Override launch')[0]

WS_Q=0; WS_PO=0x10000; WS_PML=0x110000; WS_Y=0x120000; WS_E=0x240000; WS_CNT=0x241000; WS_SIZE=0x250000
TAGINC=0x9E3779B1
L_Q=0; L_QR=1024; L_PART=3072; L_YL=16384; L_FL=16384+4*2560; L_S=L_FL+256; LDS_SIZE=L_S+32768
CSC=struct.unpack('<I',struct.pack('<f',math.log2(math.e)/math.sqrt(128)))[0]

class G:
    def __init__(s, **o):
        s.o=dict(mode='fused', pattern='wg', kfl='nt', vfl='nt', R=4, stamp=False, xcd=False); s.o.update(o)
        s.t=[]; s.uid=0; s.px=s.o.get('prefix','')
    def e(s,x): s.t.append(x)
    def lab(s,n): s.uid+=1; return 'L_%s%s_%d'%(s.px,n,s.uid)
    def head(s,name,nwg):
        s.e('.text\n.globl %s\n.p2align 8\n.type %s,@function\n%s:'%(name,name,name))
        s.end=s.lab('end')
        s.e('s_cmp_ge_u32 s2, %d\ns_cbranch_scc1 %s'%(nwg,s.end))
        s.e('s_load_dwordx16 s[4:19], s[0:1], 0\ns_load_dwordx8 s[20:27], s[0:1], 64\ns_load_dwordx2 s[28:29], s[0:1], 96')
        if s.o['stamp']: s.e('s_memrealtime s[90:91]\ns_mov_b32 s95, 0')
        s.e('v_lshrrev_b32 v1, 6, v0\nv_mov_b32 v3, v0\nv_and_b32 v0, 63, v0')
        s.e('v_readfirstlane_b32 s30, v1')
        if s.o['xcd']:
            s.e('s_and_b32 s31, s2, 7\ns_lshr_b32 s3, s2, 3\ns_lshl_b32 s31, s31, 5\ns_add_u32 s3, s3, s31')
        else: s.e('s_mov_b32 s3, s2')
        s.e('s_lshr_b32 s31, s3, 4\ns_and_b32 s64, s3, 15')
        s.e('s_waitcnt lgkmcnt(0)')
        s.e('s_mov_b32 s40, s28\ns_mov_b32 s41, s29\ns_mov_b32 s42, %d\ns_mov_b32 s43, 0x20000'%WS_SIZE)
        s.e('s_add_u32 s74, s28, %d\ns_addc_u32 s75, s29, 0\ns_load_dword s73, s[74:75], 0'%WS_E)
    def tail(s,name,nv,ns=100):
        if s.o['stamp']: nv=256
        s.e('%s:\ns_endpgm'%s.end)
        s.e('.section .rodata,"a"\n.p2align 6\n.amdhsa_kernel %s\n  .amdhsa_next_free_vgpr %d\n  .amdhsa_next_free_sgpr %d\n  .amdhsa_accum_offset %d\n  .amdhsa_group_segment_fixed_size 0\n  .amdhsa_kernarg_size 104\n  .amdhsa_user_sgpr_count 2\n  .amdhsa_user_sgpr_kernarg_segment_ptr 1\n  .amdhsa_system_sgpr_workgroup_id_x 1\n.end_amdhsa_kernel'%(name,nv,ns,(nv+3)//4*4))
    def q_issue(s,wb,xb):
        e=s.e
        if s.o.get('qpair',1): e('s_and_b32 s65, s64, 4\ns_cmp_eq_u32 s65, 0')
        else: e('s_cmp_lt_u32 s64, 8')
        e('s_cselect_b32 s44, s20, s10\ns_cselect_b32 s45, s21, s11\ns_cselect_b32 s48, s14, s4\ns_cselect_b32 s49, s15, s5')
        e('s_mov_b32 s46, %d\ns_mov_b32 s47, 0x20000\ns_mov_b32 s50, 1152\ns_mov_b32 s51, 0x20000'%(576*8192))
        if s.o.get('qpair',1): e('s_and_b32 s65, s64, 3\ns_lshl_b32 s65, s65, 7\ns_lshr_b32 s66, s64, 3\ns_lshl_b32 s66, s66, 6\ns_add_u32 s65, s65, s66\ns_lshl_b32 s66, s31, 9\ns_add_u32 s65, s65, s66')
        else: e('s_and_b32 s65, s64, 7\ns_lshl_b32 s65, s65, 6\ns_lshl_b32 s66, s31, 9\ns_add_u32 s65, s65, s66')
        e('v_lshrrev_b32 v4, 2, v3\nv_and_b32 v5, 3, v3\nv_lshlrev_b32 v5, 4, v5\nv_lshl_add_u32 v5, v4, 13, v5\nv_lshlrev_b32 v4, 1, v4')
        for i in range(9):
            e('buffer_load_ushort v%d, v4, s[48:51], 0 offen offset:%d'%(xb+i,i*128))
        for i in range(9):
            e('buffer_load_dwordx4 v[%d:%d], v5, s[44:47], s65 offen %s'%(wb+4*i,wb+4*i+3,s.o.get('qfl','nt')))
            if i<8: e('s_add_u32 s65, s65, %d'%(64*8192))
    def q_compute(s,wb,xb,ab,tb,newer,hooks={}):
        e=s.e
        for j in range(8): e('v_mov_b32 v%d, 0'%(ab+j))
        for i in range(9):
            e('s_waitcnt vmcnt(%d)'%(newer+8-i))
            if i in hooks: hooks[i](); newer+=4
            e('v_lshlrev_b32 v%d, 16, v%d'%(xb+i,xb+i))
            for d in range(4):
                e('v_lshlrev_b32 v%d, 16, v%d\nv_and_b32 v%d, 0xffff0000, v%d'%(tb,wb+4*i+d,tb+1,wb+4*i+d))
                e('v_fmac_f32 v%d, v%d, v%d\nv_fmac_f32 v%d, v%d, v%d'%(ab+2*d,xb+i,tb,ab+2*d+1,xb+i,tb+1))
        for ror in (4,8):
            e('s_nop 1')
            for j in range(8): e('v_add_f32_dpp v%d, v%d, v%d row_ror:%d row_mask:0xf bank_mask:0xf'%(ab+j,ab+j,ab+j,ror))
        e('v_lshrrev_b32 v%d, 4, v3\nv_and_b32 v%d, 3, v3\nv_lshlrev_b32 v%d, 5, v%d\nv_lshl_add_u32 v%d, v%d, 7, v%d'%(tb,tb+1,tb+1,tb+1,tb,tb,tb+1))
        e('ds_write_b128 v%d, v[%d:%d] offset:%d\nds_write_b128 v%d, v[%d:%d] offset:%d'%(tb,ab,ab+3,L_QR,tb,ab+4,ab+7,L_QR+16))
        e('s_waitcnt lgkmcnt(0)')
    def q_finish(s,tb,fl):
        e=s.e
        e('v_and_b32 v%d, 31, v0\nv_lshlrev_b32 v%d, 2, v%d\nv_lshrrev_b32 v%d, 5, v0\nv_lshl_add_u32 v%d, v%d, 10, v%d'%(tb,tb,tb,tb+1,tb,tb+1,tb))
        for p in range(8): e('ds_read_b32 v%d, v%d offset:%d'%(tb+2+p,tb,L_QR+p*128))
        if s.o.get('qpair',1): e('s_and_b32 s65, s64, 7\ns_lshl_b32 s65, s65, 1\ns_lshr_b32 s66, s64, 3\ns_add_u32 s65, s65, s66\ns_lshl_b32 s66, s31, 4\ns_add_u32 s65, s65, s66\ns_lshl_b32 s65, s65, 7')
        else: e('s_lshl_b32 s65, s3, 7')
        e('v_and_b32 v%d, 31, v0\nv_lshlrev_b32 v%d, 2, v%d'%(tb,tb,tb))
        e('s_waitcnt lgkmcnt(0)')
        for a,b in ((0,1),(2,3),(4,5),(6,7),(0,2),(4,6),(0,4)): e('v_add_f32 v%d, v%d, v%d'%(tb+2+a,tb+2+a,tb+2+b))
        e('v_mov_b32 v%d, v%d\ns_nop 1\nv_permlane32_swap_b32 v%d, v%d\nv_add_f32 v%d, v%d, v%d'%(tb+3,tb+2,tb+2,tb+3,tb+2,tb+2,tb+3))
        e('s_nop 1\nv_mov_b32_dpp v%d, v%d quad_perm:[1,0,3,2] row_mask:0xf bank_mask:0xf'%(tb+3,tb+2))
        e('v_cvt_pk_bf16_f32 v%d, v%d, v%d\nv_mov_b32 v%d, s73'%(tb+2,tb+2,tb+3,tb+3))
        e('s_mov_b32 exec_lo, 0x55555555\ns_mov_b32 exec_hi, 0')
        e('buffer_store_dwordx2 v[%d:%d], v%d, s[40:43], s65 offen %s'%(tb+2,tb+3,tb,fl))
        e('s_mov_b64 exec, -1')
    RING=96
    def att_setup(s):
        e=s.e
        rot=s.o.get('rot',0)
        if rot==1: e('s_mul_i32 s96, s31, 11\ns_lshr_b32 s96, s96, 5\ns_mul_i32 s96, s96, 3\ns_sub_u32 s96, s31, s96')
        else: e('s_mov_b32 s96, 0')
        e('s_mov_b32 s97, s96\ns_lshl_b32 s66, s31, 1\ns_sub_u32 s66, s66, 1')
        for r,(kb,vb) in enumerate(((32,36),(52,54),(56,58))):
            e('s_add_u32 s65, s66, s97\ns_cmp_eq_u32 s97, 0\ns_cselect_b32 s65, s31, s65')
            e('s_cselect_b32 s%d, s16, s6\ns_cselect_b32 s%d, s17, s7\ns_cselect_b32 s%d, s18, s8\ns_cselect_b32 s%d, s19, s9'%(kb,kb+1,vb,vb+1))
            e('s_lshl_b32 s65, s65, 24\ns_add_u32 s%d, s%d, s65\ns_addc_u32 s%d, s%d, 0\ns_add_u32 s%d, s%d, s65\ns_addc_u32 s%d, s%d, 0'%(kb,kb,kb+1,kb+1,vb,vb,vb+1,vb+1))
            if r<2: e('s_add_u32 s97, s97, 1\ns_cmp_eq_u32 s97, 3\ns_cselect_b32 s97, 0, s97')
        e('s_mov_b32 s34, 0x1000000\ns_mov_b32 s35, 0x20000\ns_mov_b32 s38, 0x1000000\ns_mov_b32 s39, 0x20000')
        if s.o['pattern']=='wg': e('s_lshl_b32 s60, s64, 20'); s.step=16384
        else: e('s_lshl_b32 s60, s64, 14'); s.step=262144
        e('s_lshl_b32 s65, s30, 12\ns_add_u32 s60, s60, s65\ns_mov_b32 s61, s60')
        if s.o.get('xm'):
            s.xorval('s64'); e('s_xor_b32 s69, s61, s68')
        e('v_and_b32 v1, 3, v0\nv_lshlrev_b32 v1, 10, v1\nv_bfe_u32 v2, v0, 2, 2\nv_lshl_add_u32 v1, v2, 8, v1\nv_lshrrev_b32 v2, 4, v0\nv_lshl_add_u32 v1, v2, 4, v1')
        e('v_lshlrev_b32 v2, 4, v0')
    def xorval(s,m):
        a,b=s.o['xm']
        s.e('s_mul_i32 s68, %s, %d\ns_mul_i32 s66, s31, %d\ns_add_u32 s68, s68, s66\ns_and_b32 s68, s68, 63\ns_mul_i32 s68, s68, %d'%(m,a,b,s.step))
    def masks(s):
        e=s.e
        e('v_and_b32 v8, 1, v0\nv_cmp_eq_u32 vcc, 1, v8\nv_mov_b32 v9, 0xffff\nv_mov_b32 v10, 0xffff0000\nv_cndmask_b32 v9, v9, v10, vcc\nv_bfe_u32 v8, v0, 1, 2')
        for q in range(4): e('v_cmp_eq_u32 vcc, %d, v8\ns_nop 1\nv_cndmask_b32 v%d, 0, v9, vcc'%(q,4+q))
    def issueK(s,sl):
        for i in range(4):
            r=s.RING+sl*32+4*i
            s.e('buffer_load_dwordx4 v[%d:%d], v1, s[32:35], %s offen offset:%d %s'%(r,r+3,'s69' if s.o.get('xm') else 's61',64*i,s.o['kfl']))
    def issueV(s,sl):
        for i in range(4):
            r=s.RING+sl*32+16+4*i
            s.e('buffer_load_dwordx4 v[%d:%d], v2, s[36:39], %s offen offset:%d %s'%(r,r+3,'s69' if s.o.get('xm') else 's61',1024*i,s.o['vfl']))
        s.e('s_add_u32 s61, s61, %d'%s.step)
        if s.o.get('xm'): s.e('s_xor_b32 s69, s61, s68')
    def wo_issue(s):
        e=s.e
        e('s_cmp_lt_u32 s64, 8\ns_cselect_b32 s44, s22, s12\ns_cselect_b32 s45, s23, s13')
        e('s_and_b32 s65, s64, 7\ns_lshl_b32 s65, s65, 5\ns_lshl_b32 s66, s31, 8\ns_add_u32 s65, s65, s66\ns_mul_i32 s65, s65, 1152')
        e('s_add_u32 s44, s44, s65\ns_addc_u32 s45, s45, 0\ns_sub_u32 s46, %d, s65\ns_mov_b32 s47, 0x20000'%(4096*1152))
        e('s_mul_i32 s65, s30, %d'%(8*1152))
        e('v_lshrrev_b32 v26, 4, v0\nv_mul_u32_u24 v26, 2304, v26\nv_and_b32 v27, 15, v0\nv_lshl_add_u32 v26, v27, 4, v26')
        for cb in range(5):
            if cb==4: e('s_mov_b32 exec_lo, 0x00ff00ff\ns_mov_b32 exec_hi, 0x00ff00ff')
            for rg in range(2):
                r=56+(rg*5+cb)*4
                e('buffer_load_dwordx4 v[%d:%d], v26, s[44:47], s65 offen offset:%d nt'%(r,r+3,rg*1152+cb*256))
        e('s_mov_b64 exec, -1')
    def q_operand(s,first):
        e=s.e
        if not first: e('s_add_u32 s96, s96, 1\ns_cmp_eq_u32 s96, 3\ns_cselect_b32 s96, 0, s96')
        e('s_add_u32 s66, s96, 1\ns_lshl_b32 s66, s66, 8\ns_cmp_eq_u32 s96, 0\ns_cselect_b32 s65, 256, 0\ns_cselect_b32 s66, 0, s66')
        e('v_bfe_u32 v19, v0, 3, 1\nv_mul_u32_u24 v19, s65, v19\nv_lshrrev_b32 v24, 4, v0\nv_lshl_add_u32 v24, v24, 4, s66\nv_add_u32 v19, v19, v24')
        for i in range(4): e('ds_read_b128 v[%d:%d], v19 offset:%d'%(40+4*i,43+4*i,L_Q+64*i))
        e('v_mov_b32 v12, 0\nv_mov_b32 v13, 0\nv_mov_b32 v14, 0\nv_mov_b32 v15, 0\nv_mov_b32 v16, 0xff800000\nv_mov_b32 v17, 0xff800000\nv_mov_b32 v18, 0')
        e('s_waitcnt lgkmcnt(0)')
    def tile(s,sl,n,rare):
        e=s.e
        kb=s.RING+sl*32; vb=kb+16
        e('s_waitcnt vmcnt(%d)'%n)
        for i in range(4):
            e('v_mfma_f32_16x16x32_bf16 v[8:11], v[%d:%d], v[%d:%d], %s'%(kb+4*i,kb+4*i+3,40+4*i,43+4*i,'0' if i==0 else 'v[8:11]'))
        s.issueK(sl)
        e('s_nop 3')
        La=s.lab('rare'); Lb=s.lab('back'); rare.append((La,Lb))
        e('v_max3_f32 v19, v8, v9, v10\nv_max_f32 v19, v19, v11\nv_cmp_gt_f32 vcc, v19, v16\ns_cbranch_vccnz %s\n%s:'%(La,Lb))
        for r in range(4): e('v_fma_f32 v%d, v%d, s67, -v17'%(20+r,8+r))
        for r in range(4): e('v_exp_f32 v%d, v%d'%(20+r,20+r))
        e('v_add_f32 v18, v18, v20\nv_cvt_pk_bf16_f32 v20, v20, v20')
        for r in range(1,4): e('v_add_f32 v18, v18, v%d\nv_cvt_pk_bf16_f32 v%d, v%d, v%d'%(20+r,20+r,20+r,20+r))
        for r in range(4):
            for q in range(4): e('v_and_b32 v%d, v%d, v%d'%(24+4*r+q,20+r,4+q))
        e('s_waitcnt vmcnt(%d)'%n)
        e('s_nop 0')
        for r in range(4):
            e('v_mfma_f32_16x16x32_bf16 v[12:15], v[%d:%d], v[%d:%d], v[12:15]'%(24+4*r,27+4*r,vb+4*r,vb+4*r+3))
        s.issueV(sl)
    def att_loop(s,wo_prefetch):
        e=s.e; R=s.o['R']; n=4+8*(R-1); P=s.o.get('P',0); C=s.o.get('C',2); NI=64//R
        Lr=s.lab('round'); Ll=s.lab('loop'); Ln=s.lab('nosw'); rare=[]; Lfl=s.lab('flush'); Ldyn=s.lab('dyn')
        e('s_mov_b32 s62, 0\ns_mov_b32 s67, 0x%x'%CSC)
        s.q_operand(True)
        e('%s:\ns_mov_b32 s63, %d'%(Lr,NI))
        if P: e('s_cmp_eq_u32 s62, 2\ns_cselect_b32 s63, %d, s63\ns_cselect_b32 s76, 0, 1'%(NI-1-P))
        else: e('s_mov_b32 s76, 1')
        e('%s:'%Ll)
        e('s_cmp_lg_u32 s63, s76\ns_cbranch_scc1 %s'%Ln)
        e('s_mov_b32 s32, s52\ns_mov_b32 s33, s53\ns_mov_b32 s36, s54\ns_mov_b32 s37, s55\ns_mov_b64 s[52:53], s[56:57]\ns_mov_b64 s[54:55], s[58:59]\ns_mov_b32 s61, s60')
        if s.o.get('xm'): e('s_xor_b32 s69, s61, s68')
        e('s_cmp_lt_u32 s62, 2\ns_cselect_b32 s34, s34, 0\ns_mov_b32 s38, s34')
        e('%s:'%Ln)
        for sl in range(R): s.tile(sl,n,rare)
        e('s_sub_u32 s63, s63, 1\ns_cmp_lg_u32 s63, 0\ns_cbranch_scc1 %s'%Ll)
        if P:
            TK=s.RING+32*R; Lp=s.lab('dloop'); LA=s.o.get('LA',2); NS=R//C; PL=s.o.get('perlane',0)
            G_=16 if PL else 64; total=G_*P*R//C; sh=4 if PL else 6
            assert LA in (1,2) and (LA==1 or NS%2==0)
            e('s_cmp_lg_u32 s62, 2\ns_cbranch_scc1 %s'%Lfl)
            if PL: e('s_mov_b32 s77, s64\ns_lshl_b32 s81, s31, 2\ns_add_u32 s81, s81, s30\ns_lshl_b32 s81, s81, 8\ns_lshl_b32 s89, s30, 12\ns_add_u32 s89, s89, %d'%((NI-P)*R*s.step))
            else: e('s_lshl_b32 s77, s64, 2\ns_add_u32 s77, s77, s30\ns_lshl_b32 s81, s31, 10')
            e('s_mov_b32 s80, 0x7fffffff\ns_add_u32 s81, s81, %d\nv_mov_b32 v%d, 0'%(WS_CNT,TK+2))
            if LA==2: e('s_add_u32 s65, s77, %d\nv_mov_b32 v%d, s65'%(G_,TK+1))
            s.stamp(14)
            e('%s:'%Lp)
            msh=20 if s.o['pattern']=='wg' else 14
            for h in range(NS):
                tk=TK+(h%2 if LA==2 else 0); tkn=TK+((h+1)%2 if LA==2 else 0)
                e('s_cmp_lt_u32 s77, %d\ns_cselect_b32 s34, 0x1000000, 0\ns_cselect_b32 s65, s80, %d\ns_mov_b32 s38, s34\ns_min_u32 s80, s80, s65'%(total,R//C))
                e('s_cmp_eq_u32 s80, 0\ns_cbranch_scc1 %s\ns_sub_u32 s80, s80, 1'%Lfl)
                e('v_mov_b32 v%d, 1\ns_lshr_b32 s65, s77, %d\ns_and_b32 s65, s65, 63\ns_mul_i32 s65, s65, %d'%(tk,sh,C*s.step))
                if PL: e('s_add_u32 s61, s65, s89\ns_and_b32 s65, s77, 15')
                else: e('s_add_u32 s61, s65, %d\ns_and_b32 s65, s77, 3\ns_lshl_b32 s65, s65, 12\ns_add_u32 s61, s61, s65\ns_bfe_u32 s65, s77, 0x40002'%((NI-P)*R*s.step))
                if s.o.get('xm'): s.xorval('s65')
                e('s_lshl_b32 s65, s65, %d\ns_add_u32 s61, s61, s65'%msh)
                if s.o.get('xm'): e('s_xor_b32 s69, s61, s68')
                e('s_mov_b64 exec, 1\nbuffer_atomic_add v%d, v%d, s[40:43], s81 offen sc0 sc1\ns_mov_b64 exec, -1'%(tk,TK+2))
                for sl in range(h*C,h*C+C): s.tile(sl,n+1,rare)
                e('s_waitcnt vmcnt(%d)\nv_readfirstlane_b32 s77, v%d'%(8*C if LA==1 else 16*C+1,tkn))
                if s.o['stamp']: e('s_add_u32 s95, s95, 1')
            e('s_branch %s'%Lp)
        e('%s:'%Lfl)
        e('v_mov_b32 v19, v18\ns_nop 1\nv_permlane32_swap_b32 v18, v19\nv_add_f32 v18, v18, v19\nv_mov_b32 v19, v18\ns_nop 1\nv_permlane16_swap_b32 v18, v19\nv_add_f32 v18, v18, v19')
        e('s_lshl_b32 s65, s96, 2\ns_add_u32 s65, s65, s30\ns_mul_i32 s65, s65, 1040')
        e('v_lshrrev_b32 v19, 5, v0\nv_lshlrev_b32 v19, 9, v19\nv_and_b32 v20, 15, v0\nv_lshl_add_u32 v19, v20, 5, v19\nv_bfe_u32 v20, v0, 4, 1\nv_lshl_add_u32 v19, v20, 4, v19\nv_add_u32 v19, s65, v19')
        e('v_bfe_u32 v20, v0, 3, 1\nv_lshl_add_u32 v20, v20, 3, s65\nv_mov_b32 v22, v17\nv_mov_b32 v23, v18')
        e('ds_write_b128 v19, v[12:15] offset:%d\nds_write_b64 v20, v[22:23] offset:%d'%(L_PART,L_PART+1024))
        Ld=s.lab('done')
        e('s_add_u32 s62, s62, 1\ns_cmp_eq_u32 s62, 3\ns_cbranch_scc1 %s'%Ld)
        e('s_waitcnt lgkmcnt(0)')
        if s.o['stamp']:
            La=s.lab('st'); Lb=s.lab('st')
            e('s_cmp_eq_u32 s62, 1\ns_cbranch_scc1 %s'%La); s.stamp(9); e('s_branch %s\n%s:'%(Lb,La)); s.stamp(8); e('%s:'%Lb)
        if wo_prefetch:
            Lw=s.lab('nowo')
            e('s_cmp_lg_u32 s62, 1\ns_cbranch_scc1 %s'%Lw); s.wo_issue(); e('%s:'%Lw)
        s.q_operand(False)
        e('s_branch %s'%Lr)
        for La,Lb in rare:
            e('%s:'%La)
            e('v_max_f32 v19, v19, v16\nv_mov_b32 v24, v19\ns_nop 1\nv_permlane32_swap_b32 v19, v24\nv_max_f32 v19, v19, v24\nv_mov_b32 v24, v19\ns_nop 1\nv_permlane16_swap_b32 v19, v24\nv_max_f32 v16, v19, v24')
            e('v_mul_f32 v24, s67, v16\nv_sub_f32 v25, v17, v24\nv_exp_f32 v25, v25\nv_mov_b32 v17, v24\ns_nop 0\nv_mul_f32 v18, v18, v25')
            e('v_mov_b32_dpp v26, v25 row_newbcast:0 row_mask:0x3 bank_mask:0xf\nv_mov_b32_dpp v26, v25 row_newbcast:8 row_mask:0xc bank_mask:0xf')
            for r in range(4): e('v_mul_f32 v%d, v%d, v26'%(12+r,12+r))
            e('s_branch %s'%Lb)
        e('%s:'%Ld)
    VO=228; Q128=236; VS=244; MA0=245; S2=246; MA1=227; K128=250
    def ph_setup(s):
        e=s.e
        e('s_lshl_b32 s65, s31, 24\ns_add_u32 s32, s16, s65\ns_addc_u32 s33, s17, 0\ns_add_u32 s98, s18, s65\ns_addc_u32 s99, s19, 0')
        e('s_lshl_b32 s65, s31, 25\ns_add_u32 s52, s6, s65\ns_addc_u32 s53, s7, 0\ns_add_u32 s54, s8, s65\ns_addc_u32 s55, s9, 0')
        e('s_add_u32 s56, s52, 0x1000000\ns_addc_u32 s57, s53, 0\ns_add_u32 s58, s54, 0x1000000\ns_addc_u32 s59, s55, 0')
        e('s_mov_b32 s34, 0x1000000\ns_mov_b32 s35, 0x20000\ns_mov_b32 s36, s32\ns_mov_b32 s37, s33\ns_mov_b32 s38, 0x1000000\ns_mov_b32 s39, 0x20000')
        s.step=16384
        e('s_lshl_b32 s60, s64, 20\ns_lshl_b32 s65, s30, 12\ns_add_u32 s60, s60, s65\ns_mov_b32 s61, s60\ns_mov_b32 s76, 32768')
        e('v_and_b32 v1, 3, v0\nv_lshlrev_b32 v1, 10, v1\nv_bfe_u32 v2, v0, 2, 2\nv_lshl_add_u32 v1, v2, 8, v1\nv_lshrrev_b32 v2, 4, v0\nv_lshl_add_u32 v1, v2, 4, v1')
        k=s.K128
        e('v_lshlrev_b32 v%d, 4, v2\nv_and_b32 v2, 1, v0\nv_lshl_add_u32 v%d, v2, 6, v%d\nv_bfe_u32 v2, v0, 1, 1\nv_lshl_add_u32 v%d, v2, 10, v%d\nv_bfe_u32 v2, v0, 2, 2\nv_lshl_add_u32 v%d, v2, 8, v%d'%(k,k,k,k,k,k,k))
        e('v_lshlrev_b32 v2, 4, v0')
        s.ph_offs('K')
    def ph_offs(s,kind):
        e=s.e
        k128=[(s.K128,o) for o in (0,128,2048,2176)]; k64=[(1,64*i) for i in range(4)]; vl=[(2,1024*i) for i in range(4)]
        km=s.o.get('kmix','ab')
        ka={'a':k128,'b':k64}[km[0]]; kb={'a':k128,'b':k64}[km[1]]
        sets={'K':ka+[(r,o+16384) for r,o in kb],'V':vl+[(r,o+16384) for r,o in vl],'P':k64+vl}[kind]
        for i,(r,o) in enumerate(sets):
            e('v_add_u32 v%d, %d, v%d'%(s.VO+i,o,r) if o else 'v_mov_b32 v%d, v%d'%(s.VO+i,r))
    def ph_issue(s,sl,half):
        for i in range(4):
            r=s.RING+sl*32+half*16+4*i
            s.e('buffer_load_dwordx4 v[%d:%d], v%d, %s, s61 offen nt'%(r,r+3,s.VO+half*4+i,'s[36:39]' if half else 's[32:35]'))
        if half: s.e('s_add_u32 s61, s61, s76')
    def ph_switch(s,kind,a,b,start):
        e=s.e
        e('s_mov_b32 s32, s%d\ns_mov_b32 s33, s%d\ns_mov_b32 s36, s%d\ns_mov_b32 s37, s%d'%(a,a+1,b,b+1))
        e('s_add_u32 s61, s60, %d\ns_mov_b32 s76, %d'%(start,16384 if kind=='P' else 32768))
        s.ph_offs(kind)
    def ph_q(s,ty):
        e=s.e
        e('v_lshrrev_b32 v24, 4, v0\nv_lshlrev_b32 v24, 4, v24')
        if ty==0: e('v_bfe_u32 v19, v0, 3, 1\nv_lshl_add_u32 v24, v19, 8, v24')
        e('v_and_b32 v19, 1, v0\nv_lshl_add_u32 v25, v19, 6, v24')
        o=L_Q+(0 if ty==0 else (ty+1)*256)
        for i in range(4): e('ds_read_b128 v[%d:%d], v24 offset:%d'%(40+4*i,43+4*i,o+64*i))
        for c in range(2): e('ds_read_b128 v[%d:%d], v25 offset:%d'%(s.Q128+4*c,s.Q128+4*c+3,o+128*c))
        e('v_mov_b32 v16, 0xff800000')
        s.ph_saddr(ty)
        e('s_waitcnt lgkmcnt(0)')
    def ph_saddr(s,ty):
        e=s.e
        e('s_lshl_b32 s65, s30, 13\ns_add_u32 s65, s65, %d\nv_lshrrev_b32 v19, 4, v0\nv_lshl_add_u32 v%d, v19, 4, s65'%(L_S+(64 if ty==2 else 0),s.VS))
        if ty==0: e('v_bfe_u32 v19, v0, 3, 1\nv_lshl_add_u32 v%d, v19, 6, v%d'%(s.VS,s.VS))
    def ph_loop(s,niter,body,switch):
        e=s.e; L=s.lab('pl'); Ln=s.lab('pn')
        e('s_mov_b32 s63, %d\n%s:\ns_cmp_lg_u32 s63, 1\ns_cbranch_scc1 %s'%(niter,L,Ln))
        switch()
        e('%s:'%Ln)
        for sl in range(s.o['R']): body(sl)
        e('v_add_u32 v%d, %d, v%d\ns_sub_u32 s63, s63, 1\ns_cmp_lg_u32 s63, 0\ns_cbranch_scc1 %s'%(s.VS,256*s.o['R'],s.VS,L))
    def ph_kstep(s,sl):
        e=s.e; n=4+8*(s.o['R']-1); km=s.o.get('kmix','ab')
        for half in range(2):
            kb=s.RING+sl*32+16*half; S=8 if half==0 else 32
            e('s_waitcnt vmcnt(%d)'%n)
            if km[half]=='a':
                for c in range(2):
                    for rb in range(2):
                        d=24+4*rb; r=kb+4*(rb*2+c)
                        e('v_mfma_f32_16x16x32_bf16 v[%d:%d], v[%d:%d], v[%d:%d], %s'%(d,d+3,r,r+3,s.Q128+4*c,s.Q128+4*c+3,'0' if c==0 else 'v[%d:%d]'%(d,d+3)))
                s.ph_issue(sl,half); e('s_nop 3')
                for r in range(4): e('v_add_f32_dpp v%d, v%d, v%d quad_perm:[1,0,3,2] row_mask:0xf bank_mask:0xf'%(S+r,25+2*r,24+2*r))
            else:
                for i in range(4):
                    e('v_mfma_f32_16x16x32_bf16 v[%d:%d], v[%d:%d], v[%d:%d], %s'%(S,S+3,kb+4*i,kb+4*i+3,40+4*i,43+4*i,'0' if i==0 else 'v[%d:%d]'%(S,S+3)))
                s.ph_issue(sl,half); e('s_nop 3')
            e('v_max3_f32 v16, v%d, v%d, v16\nv_max3_f32 v16, v%d, v%d, v16'%(S,S+1,S+2,S+3))
            e('s_mov_b64 exec, s[70:71]\nds_write_b128 v%d, v[%d:%d] offset:%d\ns_mov_b64 exec, -1'%(s.VS,S,S+3,(sl*2+half)*128))
    def ph_kend(s,dst):
        e=s.e
        e('v_mov_b32 v19, v16\ns_nop 1\nv_permlane32_swap_b32 v16, v19\nv_max_f32 v16, v16, v19\nv_mov_b32 v19, v16\ns_nop 1\nv_permlane16_swap_b32 v16, v19\nv_max_f32 v16, v16, v19\ns_nop 1')
        e('v_mov_b32_dpp v%d, v16 row_newbcast:0 row_mask:0xf bank_mask:0x3\nv_mov_b32_dpp v%d, v16 row_newbcast:8 row_mask:0xf bank_mask:0xc'%(dst,dst))
    def ph_vstart(s,ty,src):
        e=s.e
        e('v_mov_b32 v16, v%d\nv_mul_f32 v17, s67, v%d\nv_mov_b32 v18, 0\nv_mov_b32 v12, 0\nv_mov_b32 v13, 0\nv_mov_b32 v14, 0\nv_mov_b32 v15, 0'%(src,src))
        s.ph_saddr(ty)
    def ph_vstep(s,sl):
        e=s.e; n=4+8*(s.o['R']-1)
        e('ds_read_b128 v[8:11], v%d offset:%d\nds_read_b128 v[%d:%d], v%d offset:%d'%(s.VS,sl*256,s.S2,s.S2+3,s.VS,sl*256+128))
        for half in range(2):
            vb=s.RING+sl*32+16*half; S=8 if half==0 else s.S2
            e('s_waitcnt lgkmcnt(%d)'%(1-half))
            for r in range(4): e('v_fma_f32 v%d, v%d, s67, -v17'%(20+r,S+r))
            for r in range(4): e('v_exp_f32 v%d, v%d'%(20+r,20+r))
            for r in range(4): e('v_add_f32 v18, v18, v%d\nv_cvt_pk_bf16_f32 v%d, v%d, v%d'%(20+r,20+r,20+r,20+r))
            for r in range(4):
                for q in range(4): e('v_and_b32 v%d, v%d, v%d'%(24+4*r+q,20+r,4+q))
            e('s_waitcnt vmcnt(%d)\ns_nop 0'%n)
            for r in range(4):
                e('v_mfma_f32_16x16x32_bf16 v[12:15], v[%d:%d], v[%d:%d], v[12:15]'%(24+4*r,27+4*r,vb+4*r,vb+4*r+3))
            s.ph_issue(sl,half)
    def flush(s,ty):
        e=s.e
        e('v_mov_b32 v19, v18\ns_nop 1\nv_permlane32_swap_b32 v18, v19\nv_add_f32 v18, v18, v19\nv_mov_b32 v19, v18\ns_nop 1\nv_permlane16_swap_b32 v18, v19\nv_add_f32 v18, v18, v19')
        e('s_mul_i32 s65, s30, 1040\ns_add_u32 s65, s65, %d'%(ty*4160))
        e('v_lshrrev_b32 v19, 5, v0\nv_lshlrev_b32 v19, 9, v19\nv_and_b32 v20, 15, v0\nv_lshl_add_u32 v19, v20, 5, v19\nv_bfe_u32 v20, v0, 4, 1\nv_lshl_add_u32 v19, v20, 4, v19\nv_add_u32 v19, s65, v19')
        e('v_bfe_u32 v20, v0, 3, 1\nv_lshl_add_u32 v20, v20, 3, s65\nv_mov_b32 v22, v17\nv_mov_b32 v23, v18')
        e('ds_write_b128 v19, v[12:15] offset:%d\nds_write_b64 v20, v[22:23] offset:%d\ns_waitcnt lgkmcnt(0)'%(L_PART,L_PART+1024))
    def att_phased(s):
        e=s.e; R=s.o['R']; P=s.o['P']; C=s.o.get('C',2); n=4+8*(R-1)
        NF=32//R; Ns=(64-R-P*R)//2; assert Ns%R==0 and 2*Ns+R+P*R==64; NS_=Ns//R
        e('s_mov_b32 s67, 0x%x\ns_mov_b32 s70, 0x01010101\ns_mov_b32 s71, 0x01010101'%CSC)
        s.ph_q(0); s.ph_loop(NF,s.ph_kstep,lambda: s.ph_switch('V',98,98,0)); s.ph_kend(s.MA0); s.stamp(8)
        s.ph_vstart(0,s.MA0); s.ph_loop(NF,s.ph_vstep,lambda: s.ph_switch('K',52,52,0)); s.flush(0); s.stamp(9)
        s.wo_issue()
        s.ph_q(1); s.ph_loop(NF,s.ph_kstep,lambda: s.ph_switch('K',56,56,0)); s.ph_kend(s.MA0)
        s.ph_q(2); s.ph_loop(NS_,s.ph_kstep,lambda: s.ph_switch('V',54,54,0)); s.ph_kend(s.MA1); s.stamp(13)
        s.ph_vstart(1,s.MA0); s.ph_loop(NF,s.ph_vstep,lambda: s.ph_switch('V',58,58,0)); s.flush(1)
        s.ph_vstart(2,s.MA1); s.ph_loop(NS_,s.ph_vstep,lambda: s.ph_switch('P',56,58,2*Ns*16384))
        s.issueK=lambda sl: s.ph_issue(sl,0); s.issueV=lambda sl: s.ph_issue(sl,1)
        rare=[]; Lfl=s.lab('flush'); TK=s.RING+32*R; Lp=s.lab('dloop'); NS=R//C; total=16*P*R//C
        e('s_mov_b32 s77, s64\ns_lshl_b32 s81, s31, 2\ns_add_u32 s81, s81, s30\ns_lshl_b32 s81, s81, 8\ns_lshl_b32 s89, s30, 12\ns_add_u32 s89, s89, %d'%((64-P*R)*16384))
        e('s_mov_b32 s80, 0x7fffffff\ns_add_u32 s81, s81, %d\nv_mov_b32 v%d, 0'%(WS_CNT,TK+2))
        s.stamp(14)
        e('%s:'%Lp)
        for h in range(NS):
            e('s_cmp_lt_u32 s77, %d\ns_cselect_b32 s34, 0x1000000, 0\ns_cselect_b32 s65, s80, %d\ns_mov_b32 s38, s34\ns_min_u32 s80, s80, s65'%(total,NS))
            e('s_cmp_eq_u32 s80, 0\ns_cbranch_scc1 %s\ns_sub_u32 s80, s80, 1'%Lfl)
            e('v_mov_b32 v%d, 1\ns_lshr_b32 s65, s77, 4\ns_and_b32 s65, s65, 63\ns_mul_i32 s65, s65, %d'%(TK,C*16384))
            e('s_add_u32 s61, s65, s89\ns_and_b32 s65, s77, 15\ns_lshl_b32 s65, s65, 20\ns_add_u32 s61, s61, s65')
            e('s_mov_b64 exec, 1\nbuffer_atomic_add v%d, v%d, s[40:43], s81 offen sc0 sc1\ns_mov_b64 exec, -1'%(TK,TK+2))
            for sl in range(h*C,h*C+C): s.tile(sl,n+1,rare)
            e('s_waitcnt vmcnt(%d)\nv_readfirstlane_b32 s77, v%d'%(8*C,TK))
            if s.o['stamp']: e('s_add_u32 s95, s95, 1')
        e('s_branch %s'%Lp)
        s.rare(rare)
        e('%s:'%Lfl); s.flush(2)
    def rare(s,rare):
        e=s.e
        for La,Lb in rare:
            e('%s:'%La)
            e('v_max_f32 v19, v19, v16\nv_mov_b32 v24, v19\ns_nop 1\nv_permlane32_swap_b32 v19, v24\nv_max_f32 v19, v19, v24\nv_mov_b32 v24, v19\ns_nop 1\nv_permlane16_swap_b32 v19, v24\nv_max_f32 v16, v19, v24')
            e('v_mul_f32 v24, s67, v16\nv_sub_f32 v25, v17, v24\nv_exp_f32 v25, v25\nv_mov_b32 v17, v24\ns_nop 0\nv_mul_f32 v18, v18, v25')
            e('v_mov_b32_dpp v26, v25 row_newbcast:0 row_mask:0x3 bank_mask:0xf\nv_mov_b32_dpp v26, v25 row_newbcast:8 row_mask:0xc bank_mask:0xf')
            for r in range(4): e('v_mul_f32 v%d, v%d, v26'%(12+r,12+r))
            e('s_branch %s'%Lb)
    def wg_combine(s):
        e=s.e
        e('s_sub_u32 s65, s30, 1\ns_max_i32 s65, s65, 0\ns_mul_i32 s65, s65, 4160\ns_cmp_eq_u32 s30, 1\ns_cselect_b32 s66, 512, 0\ns_cselect_b32 s68, 8, 0\ns_add_u32 s66, s66, s65\ns_add_u32 s68, s68, s65')
        e('v_lshl_add_u32 v19, v0, 3, s66\nv_mov_b32 v20, s68')
        for i in range(4):
            e('ds_read_b64 v[%d:%d], v19 offset:%d\nds_read_b64 v[%d:%d], v20 offset:%d'%(24+2*i,25+2*i,L_PART+i*1040,32+2*i,33+2*i,L_PART+1024+i*1040))
        e('s_lshl_b32 s65, s31, 2\ns_add_u32 s65, s65, s30\ns_lshl_b32 s65, s65, 4\ns_add_u32 s65, s65, s64')
        e('s_lshl_b32 s66, s65, 10\ns_add_u32 s66, s66, %d\ns_lshl_b32 s65, s65, 4\ns_add_u32 s65, s65, %d'%(WS_PO,WS_PML))
        e('v_lshlrev_b32 v19, 4, v0\nv_mov_b32 v20, 0\nv_mov_b32 v13, s73\nv_mov_b32 v15, s73\nv_mov_b32 v41, s73\nv_mov_b32 v43, s73')
        e('s_waitcnt lgkmcnt(0)')
        e('v_max3_f32 v40, v32, v34, v36\nv_max_f32 v40, v40, v38')
        for i in range(4): e('v_sub_f32 v%d, v%d, v40'%(32+2*i,32+2*i))
        for i in range(4): e('v_exp_f32 v%d, v%d'%(32+2*i,32+2*i))
        e('s_nop 0\nv_mul_f32 v12, v32, v24\nv_mul_f32 v14, v32, v25\nv_mul_f32 v42, v32, v33')
        for i in range(1,4): e('v_fmac_f32 v12, v%d, v%d\nv_fmac_f32 v14, v%d, v%d\nv_fmac_f32 v42, v%d, v%d'%(32+2*i,24+2*i,32+2*i,25+2*i,32+2*i,33+2*i))
        e('buffer_store_dwordx4 v[12:15], v19, s[40:43], s66 offen sc1')
        e('s_mov_b64 exec, 1\nbuffer_store_dwordx4 v[40:43], v20, s[40:43], s65 offen sc1\ns_mov_b64 exec, -1')
    def tagpoll(s,loads,tagregs,tmp):
        e=s.e; L=s.lab('poll'); Lx=s.lab('pollx')
        e('s_mov_b32 s72, 0x200000\n%s:'%L)
        for l in loads: e(l)
        e('s_waitcnt vmcnt(0)')
        e('v_xor_b32 v%d, s73, v%d'%(tmp,tagregs[0]))
        for t in tagregs[1:]: e('v_xor_b32 v%d, s73, v%d\nv_or_b32 v%d, v%d, v%d'%(tmp+1,t,tmp,tmp,tmp+1))
        e('v_cmp_ne_u32 vcc, 0, v%d\ns_cbranch_vccz %s'%(tmp,Lx))
        if s.o.get('sleep'): e('s_sleep %d'%s.o['sleep'])
        e('s_sub_u32 s72, s72, 1\ns_cmp_lg_u32 s72, 0\ns_cbranch_scc1 %s\n%s:'%(L,Lx))
    def team_loads(s):
        e=s.e
        e('s_lshr_b32 s65, s64, 2\ns_lshl_b32 s66, s31, 2\ns_add_u32 s65, s65, s66')
        e('s_lshl_b32 s66, s65, 14\ns_and_b32 s68, s64, 3\ns_lshl_b32 s68, s68, 8\ns_add_u32 s66, s66, s68\ns_lshl_b32 s68, s30, 6\ns_add_u32 s66, s66, s68\ns_add_u32 s66, s66, %d'%WS_PO)
        e('s_lshl_b32 s65, s65, 8\ns_add_u32 s65, s65, %d'%WS_PML)
        e('v_and_b32 v19, 15, v0\nv_lshlrev_b32 v20, 4, v19\nv_lshlrev_b32 v19, 10, v19\nv_lshrrev_b32 v21, 4, v0\nv_lshl_add_u32 v19, v21, 4, v19')
        s.tagpoll(['buffer_load_dwordx4 v[24:27], v20, s[40:43], s65 offen sc1','buffer_load_dwordx4 v[28:31], v19, s[40:43], s66 offen sc1'],[25,27,29,31],32)
    def rowred(s,op,regs):
        for ror in (8,4,2,1):
            s.e('s_nop 1')
            for r in regs: s.e('%s_dpp v%d, v%d, v%d row_ror:%d row_mask:0xf bank_mask:0xf'%(op,r,r,r,ror))
    def team_proj(s):
        e=s.e
        e('v_mov_b32 v21, v24'); s.rowred('v_max_f32',[21])
        e('v_sub_f32 v24, v24, v21\nv_exp_f32 v24, v24\ns_nop 0\nv_mul_f32 v26, v26, v24\nv_mul_f32 v28, v28, v24\nv_mul_f32 v30, v30, v24')
        s.rowred('v_add_f32',[26,28,30])
        e('v_rcp_f32 v26, v26\ns_nop 0\nv_mul_f32 v28, v28, v26\nv_mul_f32 v30, v30, v26\nv_cvt_pk_bf16_f32 v28, v28, v28\nv_cvt_pk_bf16_f32 v30, v30, v30')
        for rg in range(2):
            for q in range(4): e('v_and_b32 v%d, v%d, v%d'%(32+4*rg+q,28+2*rg,4+q))
        e('s_nop 1')
        for rg in range(2):
            for cb in range(5):
                r=56+(rg*5+cb)*4; d=100+4*cb
                e('v_mfma_f32_16x16x32_bf16 v[%d:%d], v[%d:%d], v[%d:%d], %s'%(d,d+3,32+4*rg,35+4*rg,r,r+3,'0' if rg==0 else 'v[%d:%d]'%(d,d+3)))
        e('s_mul_i32 s65, s30, 2560\nv_and_b32 v19, 15, v0\nv_lshl_add_u32 v19, v19, 5, s65\nv_bfe_u32 v20, v0, 4, 1\nv_lshl_add_u32 v19, v20, 4, v19')
        e('s_nop 4\ns_mov_b32 exec_hi, 0')
        for cb in range(5): e('ds_write_b128 v19, v[%d:%d] offset:%d'%(100+4*cb,103+4*cb,L_YL+cb*512))
        e('s_mov_b64 exec, -1')
        e('s_cmp_lt_u32 s64, 8\ns_cselect_b32 s69, 1, 0\ns_mul_i32 s65, s69, %d\ns_and_b32 s66, s64, 7\ns_lshl_b32 s68, s31, 3\ns_add_u32 s66, s66, s68\ns_lshl_b32 s66, s66, 6\ns_add_u32 s65, s65, s66\ns_add_u32 s65, s65, %d'%(72*8192,WS_Y))
        e('v_lshlrev_b32 v19, 4, v3\nv_lshrrev_b32 v20, 1, v3\nv_lshlrev_b32 v20, 13, v20\nv_and_b32 v21, 1, v3\nv_lshl_add_u32 v20, v21, 5, v20')
        e('v_mov_b32 v41, s73\nv_mov_b32 v43, s73\nv_mov_b32 v45, s73\nv_mov_b32 v47, s73')
        e('s_waitcnt lgkmcnt(0)\ns_barrier')
        Ls=s.lab('noy')
        e('v_cmp_gt_u32 vcc, 144, v3\ns_and_saveexec_b64 s[70:71], vcc\ns_cbranch_execz %s'%Ls)
        for w in range(4): e('ds_read_b128 v[%d:%d], v19 offset:%d'%(24+4*w,27+4*w,L_YL+w*2560))
        e('s_waitcnt lgkmcnt(0)')
        for r in range(4): e('v_add_f32 v%d, v%d, v%d\nv_add_f32 v%d, v%d, v%d'%(24+r,24+r,28+r,32+r,32+r,36+r))
        for r in range(4): e('v_add_f32 v%d, v%d, v%d'%(40+2*r,24+r,32+r))
        e('buffer_store_dwordx4 v[40:43], v20, s[40:43], s65 offen sc1\nbuffer_store_dwordx4 v[44:47], v20, s[40:43], s65 offen offset:16 sc1')
        e('%s:\ns_mov_b64 exec, s[70:71]'%Ls)
    def final(s):
        e=s.e
        e('s_cmp_ge_u32 s3, 144\ns_cbranch_scc1 %s'%s.end)
        e('s_lshl_b32 s65, s3, 13\ns_add_u32 s65, s65, %d\ns_add_u32 s66, s65, 4096\nv_lshlrev_b32 v19, 4, v3'%WS_Y)
        e('s_mov_b32 s44, s24\ns_mov_b32 s45, s25\ns_mov_b32 s46, 2304\ns_mov_b32 s47, 0x20000')
        e('s_lshl_b32 s68, s30, 5\nv_and_b32 v21, 3, v0\nv_lshl_add_u32 v21, v21, 3, s68')
        s.tagpoll(['buffer_load_dwordx4 v[24:27], v19, s[40:43], s65 offen sc1','buffer_load_dwordx4 v[28:31], v19, s[40:43], s66 offen sc1'],[25,27,29,31],32)
        if s.o['stamp']: e('s_sub_u32 s95, 0x200000, s72'); s.stamp(12)
        e('v_add_f32 v24, v24, v28\nv_add_f32 v25, v26, v30')
        for ror in (4,8):
            e('s_nop 1')
            for r in range(2): e('v_add_f32_dpp v%d, v%d, v%d row_ror:%d row_mask:0xf bank_mask:0xf'%(24+r,24+r,24+r,ror))
        for sw in ('32','16'):
            for r in range(2): e('v_mov_b32 v%d, v%d'%(28+r,24+r))
            e('s_nop 1')
            for r in range(2): e('v_permlane%s_swap_b32 v%d, v%d'%(sw,24+r,28+r))
            for r in range(2): e('v_add_f32 v%d, v%d, v%d'%(24+r,24+r,28+r))
        e('s_mov_b64 exec, 0xf\nds_write_b64 v21, v[24:25] offset:%d\ns_mov_b64 exec, -1'%L_FL)
        e('s_waitcnt lgkmcnt(0)\ns_barrier')
        e('s_cmp_lg_u32 s30, 0\ns_cbranch_scc1 %s'%s.end)
        e('s_mov_b64 exec, 0xff\nv_lshlrev_b32 v19, 2, v0')
        for w in range(4): e('ds_read_b32 v%d, v19 offset:%d'%(24+w,L_FL+32*w))
        e('s_lshl_b32 s65, s3, 4\nv_lshlrev_b32 v19, 1, v0\ns_waitcnt lgkmcnt(0)')
        e('v_add_f32 v24, v24, v25\nv_add_f32 v26, v26, v27\nv_add_f32 v24, v24, v26\nv_cvt_pk_bf16_f32 v24, v24, v24')
        e('buffer_store_short v24, v19, s[44:47], s65 offen')
        L=s.lab('noep')
        e('s_cmp_lg_u32 s3, 0\ns_cbranch_scc1 %s'%L)
        e('s_mov_b64 exec, 1\nv_mov_b32 v19, %d\nv_mov_b32 v20, s73\nbuffer_store_dword v20, v19, s[40:43], 0 offen sc1\n%s:'%(WS_E,L))
    def dryify(s,t0):
        lines='\n'.join(s.t[t0:]).split('\n'); out=[]; i=0
        while i<len(lines):
            l=lines[i]
            if l.startswith('buffer_') or l=='s_barrier':
                j=i
                while j<len(lines) and (lines[j].startswith('buffer_') or lines[j]=='s_barrier'): j+=1
                L=s.lab('skip'); out.append('s_cbranch_execz %s'%L); out+=lines[i:j]; out.append('%s:'%L); i=j; continue
            m=re.match(r's_mov_b64 exec, (-1|1|0x[0-9a-f]+)$',l)
            if m: l='s_and_b64 exec, s[82:83], %s'%m.group(1)
            if l.startswith('s_and_saveexec_b64') and lines[i+1].startswith('s_cbranch_execz'):
                out.append(l); tgt=lines[i+1].split()[1]; L=s.lab('fall')
                out.append('s_cmp_eq_u32 s82, 0\ns_cbranch_scc1 %s\ns_cbranch_execz %s\n%s:'%(L,tgt,L)); i+=2; continue
            out.append(l); i+=1
        s.t[t0:]=out
    def stamp(s,slot,kidx=0,first=False,cnt=False):
        if not s.o['stamp']: return
        e=s.e
        e('s_memrealtime s[92:93]\ns_getreg_b32 s94, hwreg(HW_REG_XCC_ID)\ns_waitcnt lgkmcnt(0)')
        e('s_add_u32 s84, s28, 0x60000000\ns_addc_u32 s85, s29, 0\ns_mov_b32 s86, 0x1000000\ns_mov_b32 s87, 0x20000')
        e('s_lshl_b32 s88, s2, 3\ns_add_u32 s88, s88, s30\ns_lshl_b32 s88, s88, 6\ns_add_u32 s88, s88, %d'%(slot*4))
        e('s_mov_b64 s[78:79], exec\ns_mov_b64 exec, 1\nv_mov_b32 v252, 0\nv_mov_b32 v253, s92')
        e('buffer_store_dword v253, v252, s[84:87], s88 offen')
        if first: e('v_mov_b32 v254, s90\nv_mov_b32 v255, s94\nbuffer_store_dwordx2 v[254:255], v252, s[84:87], s88 offen offset:4')
        if cnt: e('v_mov_b32 v253, s95\nbuffer_store_dword v253, v252, s[84:87], s88 offen offset:4')
        if slot==4: e('v_mov_b32 v253, s95\nbuffer_store_dword v253, v252, s[84:87], s88 offen offset:44')
        e('s_mov_b64 exec, s[78:79]')
    def fused(s):
        e=s.e; R=s.o['R']
        k=s.px+NAME+'_kernel' if not s.px else s.px+'fused_kernel'
        s.head(k,256)
        Lsvc=s.lab('svc')
        e('s_mov_b64 s[82:83], -1\ns_cmp_eq_u32 s30, 4\ns_cbranch_scc1 %s'%Lsvc)
        s.q_issue(56,40)
        ph=s.o.get('ph')
        if ph: s.o['perlane']=1; s.o['LA']=1
        (s.ph_setup if ph else s.att_setup)()
        halves=[]
        for sl in range(R): halves+= [lambda sl=sl: s.ph_issue(sl,0), lambda sl=sl: s.ph_issue(sl,1)] if ph else [lambda sl=sl: s.issueK(sl), lambda sl=sl: s.issueV(sl)]
        pre,hk,thr=s.o.get('fill',(2,(2,6),8))
        for h in halves[:pre]: h()
        hooks={i:halves[pre+n] for n,i in enumerate(hk) if pre+n<len(halves)}
        s.q_compute(56,40,24,20,4*pre,hooks)
        e('s_barrier')
        e('s_add_u32 s73, s73, 0x%x'%TAGINC)
        s.stamp(0,first=True)
        s.masks()
        for h in halves[pre+len(hooks):]:
            e('s_waitcnt vmcnt(%d)'%thr); h()
        s.stamp(11)
        e('s_barrier')
        s.stamp(3)
        (s.att_phased() if ph else s.att_loop(True)); s.stamp(4)
        e('s_waitcnt lgkmcnt(0)\ns_barrier')
        Ltail=s.lab('tail'); e('%s:'%Ltail); t0=len(s.t)
        s.wg_combine(); s.stamp(5)
        s.team_loads(); s.stamp(6)
        s.team_proj(); s.stamp(7); s.final(); s.stamp(10)
        if s.o.get('dry'): s.dryify(t0)
        e('s_endpgm')
        e('%s:\ns_setprio 3\ns_waitcnt lgkmcnt(0)\ns_add_u32 s73, s73, 0x%x'%(Lsvc,TAGINC))
        if s.o.get('P'):
            L=s.lab('notlead')
            e('s_cmp_lg_u32 s64, 0\ns_cbranch_scc1 %s'%L)
            e('s_lshl_b32 s65, s31, 10\ns_add_u32 s65, s65, %d\nv_lshlrev_b32 v19, 8, v0\nv_mov_b32 v20, %d\ns_mov_b64 exec, 0xf'%(WS_CNT,(16 if s.o.get('perlane') else 64)*s.o.get('LA',2)))
            e('buffer_store_dword v20, v19, s[40:43], s65 offen sc1\ns_mov_b64 exec, -1\ns_waitcnt vmcnt(0)\n%s:'%L)
        e('s_barrier')
        s.q_finish(24,'sc1')
        s.stamp(12)
        e('s_lshl_b32 s65, s31, 11\nv_lshlrev_b32 v19, 5, v0\nv_lshlrev_b32 v21, 4, v0')
        s.tagpoll(['buffer_load_dwordx4 v[24:27], v19, s[40:43], s65 offen sc1','buffer_load_dwordx4 v[28:31], v19, s[40:43], s65 offen offset:16 sc1'],[25,27,29,31],32)
        e('v_mov_b32 v25, v26\nv_mov_b32 v26, v28\nv_mov_b32 v27, v30')
        e('ds_write_b128 v21, v[24:27] offset:%d\ns_waitcnt lgkmcnt(0)'%L_Q)
        s.stamp(13)
        e('s_barrier')
        if s.o.get('dry'): e('s_setprio 0\nv_mov_b32 v19, 0\nv_mov_b32 v20, 0\nv_mov_b32 v21, 0\ns_mov_b64 s[82:83], 0\ns_mov_b64 exec, 0\ns_mov_b32 s3, 0\ns_mov_b32 s30, 0\ns_branch %s'%Ltail)
        nv=251 if ph else s.RING+32*R+(3 if s.o.get('P') else 0)
        s.tail(k,nv)
        launch='; @launch grid=(256,1,1) block=(320,1,1) lds=%d'%LDS_SIZE
        return launch,'%s:256:320:%d'%(k,LDS_SIZE),[(k,nv,320)]
    def build(s):
        launch,spec,ks=getattr(s,s.o['mode'])()
        return HDR+launch+'\n.amdgcn_target "amdgcn-amd-amdhsa--gfx950"\n'+'\n'.join(s.t)+'\n',spec,ks
def write(path,**o):
    t,spec,ks=G(**o).build(); open(path,'w').write(t); return spec,ks
if __name__=='__main__':
    o=eval('dict(%s)'%(sys.argv[2] if len(sys.argv)>2 else ''))
    print(write(sys.argv[1],**o))
```

```python
import sys, re, math, struct
NAME='concat_heads__mha_block_cached__gqa_block_cached__decode'
HDR=open('cdna_kernels/%s.s.ref'%NAME).read().split('; Override launch')[0]

WS_Q=0; WS_PO=0x10000; WS_PML=0x110000; WS_Y=0x120000; WS_E=0x240000; WS_CNT=0x241000; WS_SIZE=0x250000
TAGINC=0x9E3779B1
L_Q=0; L_QR=1024; L_PART=3072; L_YL=16384; L_FL=16384+4*2560; L_S=L_FL+256; LDS_SIZE=L_S+32768
CSC=struct.unpack('<I',struct.pack('<f',math.log2(math.e)/math.sqrt(128)))[0]

class G:
    def __init__(s, **o):
        s.o=dict(mode='fused', pattern='wg', kfl='nt', vfl='nt', R=4, stamp=False, xcd=False); s.o.update(o)
        s.t=[]; s.uid=0; s.px=s.o.get('prefix','')
    def e(s,x): s.t.append(x)
    def lab(s,n): s.uid+=1; return 'L_%s%s_%d'%(s.px,n,s.uid)
    def head(s,name,nwg):
        s.e('.text\n.globl %s\n.p2align 8\n.type %s,@function\n%s:'%(name,name,name))
        s.end=s.lab('end')
        s.e('s_cmp_ge_u32 s2, %d\ns_cbranch_scc1 %s'%(nwg,s.end))
        s.e('s_load_dwordx16 s[4:19], s[0:1], 0\ns_load_dwordx8 s[20:27], s[0:1], 64\ns_load_dwordx2 s[28:29], s[0:1], 96')
        if s.o['stamp']: s.e('s_memrealtime s[90:91]\ns_mov_b32 s95, 0')
        s.e('v_lshrrev_b32 v1, 6, v0\nv_mov_b32 v3, v0\nv_and_b32 v0, 63, v0')
        s.e('v_readfirstlane_b32 s30, v1')
        if s.o['xcd']:
            s.e('s_and_b32 s31, s2, 7\ns_lshr_b32 s3, s2, 3\ns_lshl_b32 s31, s31, 5\ns_add_u32 s3, s3, s31')
        else: s.e('s_mov_b32 s3, s2')
        s.e('s_lshr_b32 s31, s3, 4\ns_and_b32 s64, s3, 15')
        s.e('s_waitcnt lgkmcnt(0)')
        s.e('s_mov_b32 s40, s28\ns_mov_b32 s41, s29\ns_mov_b32 s42, %d\ns_mov_b32 s43, 0x20000'%WS_SIZE)
        s.e('s_add_u32 s74, s28, %d\ns_addc_u32 s75, s29, 0\ns_load_dword s73, s[74:75], 0'%WS_E)
    def tail(s,name,nv,ns=102):
        if s.o['stamp']: nv=256
        s.e('%s:\ns_endpgm'%s.end)
        s.e('.section .rodata,"a"\n.p2align 6\n.amdhsa_kernel %s\n  .amdhsa_next_free_vgpr %d\n  .amdhsa_next_free_sgpr %d\n  .amdhsa_accum_offset %d\n  .amdhsa_group_segment_fixed_size 0\n  .amdhsa_kernarg_size 104\n  .amdhsa_user_sgpr_count 2\n  .amdhsa_user_sgpr_kernarg_segment_ptr 1\n  .amdhsa_system_sgpr_workgroup_id_x 1\n.end_amdhsa_kernel'%(name,nv,ns,(nv+3)//4*4))
    def q_issue(s,wb,xb):
        e=s.e
        if s.o.get('qpair',1): e('s_and_b32 s65, s64, 4\ns_cmp_eq_u32 s65, 0')
        else: e('s_cmp_lt_u32 s64, 8')
        e('s_cselect_b32 s44, s20, s10\ns_cselect_b32 s45, s21, s11\ns_cselect_b32 s48, s14, s4\ns_cselect_b32 s49, s15, s5')
        e('s_mov_b32 s46, %d\ns_mov_b32 s47, 0x20000\ns_mov_b32 s50, 1152\ns_mov_b32 s51, 0x20000'%(576*8192))
        if s.o.get('qpair',1): e('s_and_b32 s65, s64, 3\ns_lshl_b32 s65, s65, 7\ns_lshr_b32 s66, s64, 3\ns_lshl_b32 s66, s66, 6\ns_add_u32 s65, s65, s66\ns_lshl_b32 s66, s31, 9\ns_add_u32 s65, s65, s66')
        else: e('s_and_b32 s65, s64, 7\ns_lshl_b32 s65, s65, 6\ns_lshl_b32 s66, s31, 9\ns_add_u32 s65, s65, s66')
        e('v_lshrrev_b32 v4, 2, v3\nv_and_b32 v5, 3, v3\nv_lshlrev_b32 v5, 4, v5\nv_lshl_add_u32 v5, v4, 13, v5\nv_lshlrev_b32 v4, 1, v4')
        for i in range(9):
            e('buffer_load_ushort v%d, v4, s[48:51], 0 offen offset:%d'%(xb+i,i*128))
        for i in range(9):
            e('buffer_load_dwordx4 v[%d:%d], v5, s[44:47], s65 offen %s'%(wb+4*i,wb+4*i+3,s.o.get('qfl','nt')))
            if i<8: e('s_add_u32 s65, s65, %d'%(64*8192))
    def q_compute(s,wb,xb,ab,tb,newer,hooks={}):
        e=s.e
        for j in range(8): e('v_mov_b32 v%d, 0'%(ab+j))
        for i in range(9):
            e('s_waitcnt vmcnt(%d)'%(newer+8-i))
            if s.o.get('qst') and i in (0,8): e('s_memrealtime s[%d:%d]'%((84,85) if i==0 else (86,87)))
            if i in hooks: hooks[i][0](); newer+=hooks[i][1]
            e('v_lshlrev_b32 v%d, 16, v%d'%(xb+i,xb+i))
            for d in range(4):
                e('v_lshlrev_b32 v%d, 16, v%d\nv_and_b32 v%d, 0xffff0000, v%d'%(tb,wb+4*i+d,tb+1,wb+4*i+d))
                e('v_fmac_f32 v%d, v%d, v%d\nv_fmac_f32 v%d, v%d, v%d'%(ab+2*d,xb+i,tb,ab+2*d+1,xb+i,tb+1))
        for ror in (4,8):
            e('s_nop 1')
            for j in range(8): e('v_add_f32_dpp v%d, v%d, v%d row_ror:%d row_mask:0xf bank_mask:0xf'%(ab+j,ab+j,ab+j,ror))
        e('v_lshrrev_b32 v%d, 4, v3\nv_and_b32 v%d, 3, v3\nv_lshlrev_b32 v%d, 5, v%d\nv_lshl_add_u32 v%d, v%d, 7, v%d'%(tb,tb+1,tb+1,tb+1,tb,tb,tb+1))
        e('ds_write_b128 v%d, v[%d:%d] offset:%d\nds_write_b128 v%d, v[%d:%d] offset:%d'%(tb,ab,ab+3,L_QR,tb,ab+4,ab+7,L_QR+16))
        e('s_waitcnt lgkmcnt(0)')
    def q_finish(s,tb,fl):
        e=s.e
        e('v_and_b32 v%d, 31, v0\nv_lshlrev_b32 v%d, 2, v%d\nv_lshrrev_b32 v%d, 5, v0\nv_lshl_add_u32 v%d, v%d, 10, v%d'%(tb,tb,tb,tb+1,tb,tb+1,tb))
        for p in range(8): e('ds_read_b32 v%d, v%d offset:%d'%(tb+2+p,tb,L_QR+p*128))
        if s.o.get('qpair',1): e('s_and_b32 s65, s64, 7\ns_lshl_b32 s65, s65, 1\ns_lshr_b32 s66, s64, 3\ns_add_u32 s65, s65, s66\ns_lshl_b32 s66, s31, 4\ns_add_u32 s65, s65, s66\ns_lshl_b32 s65, s65, 7')
        else: e('s_lshl_b32 s65, s3, 7')
        e('v_and_b32 v%d, 31, v0\nv_lshlrev_b32 v%d, 2, v%d'%(tb,tb,tb))
        e('s_waitcnt lgkmcnt(0)')
        for a,b in ((0,1),(2,3),(4,5),(6,7),(0,2),(4,6),(0,4)): e('v_add_f32 v%d, v%d, v%d'%(tb+2+a,tb+2+a,tb+2+b))
        e('v_mov_b32 v%d, v%d\ns_nop 1\nv_permlane32_swap_b32 v%d, v%d\nv_add_f32 v%d, v%d, v%d'%(tb+3,tb+2,tb+2,tb+3,tb+2,tb+2,tb+3))
        e('s_nop 1\nv_mov_b32_dpp v%d, v%d quad_perm:[1,0,3,2] row_mask:0xf bank_mask:0xf'%(tb+3,tb+2))
        e('v_cvt_pk_bf16_f32 v%d, v%d, v%d\nv_mov_b32 v%d, s73'%(tb+2,tb+2,tb+3,tb+3))
        e('s_mov_b32 exec_lo, 0x55555555\ns_mov_b32 exec_hi, 0')
        e('buffer_store_dwordx2 v[%d:%d], v%d, s[40:43], s65 offen %s'%(tb+2,tb+3,tb,fl))
        e('s_mov_b64 exec, -1')
    RING=96
    def att_setup(s):
        e=s.e
        rot=s.o.get('rot',0)
        if rot==1: e('s_mul_i32 s96, s31, 11\ns_lshr_b32 s96, s96, 5\ns_mul_i32 s96, s96, 3\ns_sub_u32 s96, s31, s96')
        else: e('s_mov_b32 s96, 0')
        e('s_mov_b32 s97, s96\ns_lshl_b32 s66, s31, 1\ns_sub_u32 s66, s66, 1')
        for r,(kb,vb) in enumerate(((32,36),(52,54),(56,58))):
            e('s_add_u32 s65, s66, s97\ns_cmp_eq_u32 s97, 0\ns_cselect_b32 s65, s31, s65')
            e('s_cselect_b32 s%d, s16, s6\ns_cselect_b32 s%d, s17, s7\ns_cselect_b32 s%d, s18, s8\ns_cselect_b32 s%d, s19, s9'%(kb,kb+1,vb,vb+1))
            e('s_lshl_b32 s65, s65, 24\ns_add_u32 s%d, s%d, s65\ns_addc_u32 s%d, s%d, 0\ns_add_u32 s%d, s%d, s65\ns_addc_u32 s%d, s%d, 0'%(kb,kb,kb+1,kb+1,vb,vb,vb+1,vb+1))
            if r<2: e('s_add_u32 s97, s97, 1\ns_cmp_eq_u32 s97, 3\ns_cselect_b32 s97, 0, s97')
        e('s_mov_b32 s34, 0x1000000\ns_mov_b32 s35, 0x20000\ns_mov_b32 s38, 0x1000000\ns_mov_b32 s39, 0x20000')
        if s.o['pattern']=='wg': e('s_lshl_b32 s60, s64, 20'); s.step=16384
        else: e('s_lshl_b32 s60, s64, 14'); s.step=262144
        e('s_lshl_b32 s65, s30, 12\ns_add_u32 s60, s60, s65\ns_mov_b32 s61, s60')
        if s.o.get('xm'):
            s.xorval('s64'); e('s_xor_b32 s69, s61, s68')
        e('v_and_b32 v1, 3, v0\nv_lshlrev_b32 v1, 10, v1\nv_bfe_u32 v2, v0, 2, 2\nv_lshl_add_u32 v1, v2, 8, v1\nv_lshrrev_b32 v2, 4, v0\nv_lshl_add_u32 v1, v2, 4, v1')
        e('v_lshlrev_b32 v2, 4, v0')
    def xorval(s,m):
        a,b=s.o['xm']
        s.e('s_mul_i32 s68, %s, %d\ns_mul_i32 s66, s31, %d\ns_add_u32 s68, s68, s66\ns_and_b32 s68, s68, 63\ns_mul_i32 s68, s68, %d'%(m,a,b,s.step))
    def masks(s):
        e=s.e
        e('v_and_b32 v8, 1, v0\nv_cmp_eq_u32 vcc, 1, v8\nv_mov_b32 v9, 0xffff\nv_mov_b32 v10, 0xffff0000\nv_cndmask_b32 v9, v9, v10, vcc\nv_bfe_u32 v8, v0, 1, 2')
        for q in range(4): e('v_cmp_eq_u32 vcc, %d, v8\ns_nop 1\nv_cndmask_b32 v%d, 0, v9, vcc'%(q,4+q))
    def issueK(s,sl):
        for i in range(4):
            r=s.RING+sl*32+4*i
            s.e('buffer_load_dwordx4 v[%d:%d], v1, s[32:35], %s offen offset:%d %s'%(r,r+3,'s69' if s.o.get('xm') else 's61',64*i,s.o['kfl']))
    def issueV(s,sl):
        for i in range(4):
            r=s.RING+sl*32+16+4*i
            s.e('buffer_load_dwordx4 v[%d:%d], v2, s[36:39], %s offen offset:%d %s'%(r,r+3,'s69' if s.o.get('xm') else 's61',1024*i,s.o['vfl']))
        s.e('s_add_u32 s61, s61, %d'%s.step)
        if s.o.get('xm'): s.e('s_xor_b32 s69, s61, s68')
    def wo_issue(s):
        e=s.e
        e('s_cmp_lt_u32 s64, 8\ns_cselect_b32 s44, s22, s12\ns_cselect_b32 s45, s23, s13')
        e('s_and_b32 s65, s64, 7\ns_lshl_b32 s65, s65, 5\ns_lshl_b32 s66, s31, 8\ns_add_u32 s65, s65, s66\ns_mul_i32 s65, s65, 1152')
        e('s_add_u32 s44, s44, s65\ns_addc_u32 s45, s45, 0\ns_sub_u32 s46, %d, s65\ns_mov_b32 s47, 0x20000'%(4096*1152))
        e('s_mul_i32 s65, s30, %d'%(8*1152))
        e('v_lshrrev_b32 v26, 4, v0\nv_mul_u32_u24 v26, 2304, v26\nv_and_b32 v27, 15, v0\nv_lshl_add_u32 v26, v27, 4, v26')
        for cb in range(5):
            if cb==4: e('s_mov_b32 exec_lo, 0x00ff00ff\ns_mov_b32 exec_hi, 0x00ff00ff')
            for rg in range(2):
                r=56+(rg*5+cb)*4
                e('buffer_load_dwordx4 v[%d:%d], v26, s[44:47], s65 offen offset:%d nt'%(r,r+3,rg*1152+cb*256))
        e('s_mov_b64 exec, -1')
    def q_operand(s,first):
        e=s.e
        if not first: e('s_add_u32 s96, s96, 1\ns_cmp_eq_u32 s96, 3\ns_cselect_b32 s96, 0, s96')
        e('s_add_u32 s66, s96, 1\ns_lshl_b32 s66, s66, 8\ns_cmp_eq_u32 s96, 0\ns_cselect_b32 s65, 256, 0\ns_cselect_b32 s66, 0, s66')
        e('v_bfe_u32 v19, v0, 3, 1\nv_mul_u32_u24 v19, s65, v19\nv_lshrrev_b32 v24, 4, v0\nv_lshl_add_u32 v24, v24, 4, s66\nv_add_u32 v19, v19, v24')
        for i in range(4): e('ds_read_b128 v[%d:%d], v19 offset:%d'%(40+4*i,43+4*i,L_Q+64*i))
        e('v_mov_b32 v12, 0\nv_mov_b32 v13, 0\nv_mov_b32 v14, 0\nv_mov_b32 v15, 0\nv_mov_b32 v16, 0xff800000\nv_mov_b32 v17, 0xff800000\nv_mov_b32 v18, 0')
        e('s_waitcnt lgkmcnt(0)')
    def tile(s,sl,n,rare):
        e=s.e
        kb=s.RING+sl*32; vb=kb+16
        if s.o.get('split'):
            e('s_waitcnt vmcnt(%d)'%(s.newer(sl,0)+1)); n=s.newer(sl,1)+1
            for c in range(2):
                for rb in range(2):
                    d=24+4*rb; r=kb+4*(rb*2+c)
                    e('v_mfma_f32_16x16x32_bf16 v[%d:%d], v[%d:%d], v[%d:%d], %s'%(d,d+3,r,r+3,s.Q128+4*c,s.Q128+4*c+3,'0' if c==0 else 'v[%d:%d]'%(d,d+3)))
            s.issueK(sl); e('s_nop 3')
            for r in range(4): e('v_cndmask_b32 v%d, v%d, v%d, s[70:71]'%(8+r,24+2*r,25+2*r))
            for r in range(4): e('v_add_f32_dpp v%d, v%d, v%d quad_perm:[1,0,3,2] row_mask:0xf bank_mask:0xf'%(8+r,8+r,8+r))
        else:
            e('s_waitcnt vmcnt(%d)'%n)
            for i in range(4):
                e('v_mfma_f32_16x16x32_bf16 v[8:11], v[%d:%d], v[%d:%d], %s'%(kb+4*i,kb+4*i+3,40+4*i,43+4*i,'0' if i==0 else 'v[8:11]'))
            s.issueK(sl)
            e('s_nop 3')
        La=s.lab('rare'); Lb=s.lab('back'); rare.append((La,Lb))
        e('v_max3_f32 v19, v8, v9, v10\nv_max_f32 v19, v19, v11\nv_cmp_gt_f32 vcc, v19, v16\ns_cbranch_vccnz %s\n%s:'%(La,Lb))
        for r in range(4): e('v_fma_f32 v%d, v%d, s67, -v17'%(20+r,8+r))
        for r in range(4): e('v_exp_f32 v%d, v%d'%(20+r,20+r))
        e('v_add_f32 v18, v18, v20\nv_cvt_pk_bf16_f32 v20, v20, v20')
        for r in range(1,4): e('v_add_f32 v18, v18, v%d\nv_cvt_pk_bf16_f32 v%d, v%d, v%d'%(20+r,20+r,20+r,20+r))
        for r in range(4):
            for q in range(4): e('v_and_b32 v%d, v%d, v%d'%(24+4*r+q,20+r,4+q))
        e('s_waitcnt vmcnt(%d)'%n)
        e('s_nop 0')
        for r in range(4):
            e('v_mfma_f32_16x16x32_bf16 v[12:15], v[%d:%d], v[%d:%d], v[12:15]'%(24+4*r,27+4*r,vb+4*r,vb+4*r+3))
        s.issueV(sl)
    def att_loop(s,wo_prefetch):
        e=s.e; R=s.o['R']; n=4+8*(R-1); P=s.o.get('P',0); C=s.o.get('C',2); NI=64//R
        Lr=s.lab('round'); Ll=s.lab('loop'); Ln=s.lab('nosw'); rare=[]; Lfl=s.lab('flush'); Ldyn=s.lab('dyn')
        e('s_mov_b32 s62, 0\ns_mov_b32 s67, 0x%x'%CSC)
        s.q_operand(True)
        e('%s:\ns_mov_b32 s63, %d'%(Lr,NI))
        if P: e('s_cmp_eq_u32 s62, 2\ns_cselect_b32 s63, %d, s63\ns_cselect_b32 s76, 0, 1'%(NI-1-P))
        else: e('s_mov_b32 s76, 1')
        e('%s:'%Ll)
        e('s_cmp_lg_u32 s63, s76\ns_cbranch_scc1 %s'%Ln)
        e('s_mov_b32 s32, s52\ns_mov_b32 s33, s53\ns_mov_b32 s36, s54\ns_mov_b32 s37, s55\ns_mov_b64 s[52:53], s[56:57]\ns_mov_b64 s[54:55], s[58:59]\ns_mov_b32 s61, s60')
        if s.o.get('xm'): e('s_xor_b32 s69, s61, s68')
        e('s_cmp_lt_u32 s62, 2\ns_cselect_b32 s34, s34, 0\ns_mov_b32 s38, s34')
        e('%s:'%Ln)
        for sl in range(R): s.tile(sl,n,rare)
        e('s_sub_u32 s63, s63, 1\ns_cmp_lg_u32 s63, 0\ns_cbranch_scc1 %s'%Ll)
        if P:
            TK=s.RING+32*R; Lp=s.lab('dloop'); LA=s.o.get('LA',2); NS=R//C; PL=s.o.get('perlane',0)
            G_=16 if PL else 64; total=G_*P*R//C; sh=4 if PL else 6
            assert LA in (1,2) and (LA==1 or NS%2==0)
            e('s_cmp_lg_u32 s62, 2\ns_cbranch_scc1 %s'%Lfl)
            if PL: e('s_mov_b32 s77, s64\ns_lshl_b32 s81, s31, 2\ns_add_u32 s81, s81, s30\ns_lshl_b32 s81, s81, 8\ns_lshl_b32 s89, s30, 12\ns_add_u32 s89, s89, %d'%((NI-P)*R*s.step))
            else: e('s_lshl_b32 s77, s64, 2\ns_add_u32 s77, s77, s30\ns_lshl_b32 s81, s31, 10')
            e('s_mov_b32 s80, 0x7fffffff\ns_add_u32 s81, s81, %d\nv_mov_b32 v%d, 0'%(WS_CNT,TK+2))
            if LA==2: e('s_add_u32 s65, s77, %d\nv_mov_b32 v%d, s65'%(G_,TK+1))
            s.stamp(14)
            e('%s:'%Lp)
            msh=20 if s.o['pattern']=='wg' else 14
            for h in range(NS):
                tk=TK+(h%2 if LA==2 else 0); tkn=TK+((h+1)%2 if LA==2 else 0)
                e('s_cmp_lt_u32 s77, %d\ns_cselect_b32 s34, 0x1000000, 0\ns_cselect_b32 s65, s80, %d\ns_mov_b32 s38, s34\ns_min_u32 s80, s80, s65'%(total,R//C))
                e('s_cmp_eq_u32 s80, 0\ns_cbranch_scc1 %s\ns_sub_u32 s80, s80, 1'%Lfl)
                e('v_mov_b32 v%d, 1\ns_lshr_b32 s65, s77, %d\ns_and_b32 s65, s65, 63\ns_mul_i32 s65, s65, %d'%(tk,sh,C*s.step))
                if PL: e('s_add_u32 s61, s65, s89\ns_and_b32 s65, s77, 15')
                else: e('s_add_u32 s61, s65, %d\ns_and_b32 s65, s77, 3\ns_lshl_b32 s65, s65, 12\ns_add_u32 s61, s61, s65\ns_bfe_u32 s65, s77, 0x40002'%((NI-P)*R*s.step))
                if s.o.get('xm'): s.xorval('s65')
                e('s_lshl_b32 s65, s65, %d\ns_add_u32 s61, s61, s65'%msh)
                if s.o.get('xm'): e('s_xor_b32 s69, s61, s68')
                e('s_mov_b64 exec, 1\nbuffer_atomic_add v%d, v%d, s[40:43], s81 offen sc0 sc1\ns_mov_b64 exec, -1'%(tk,TK+2))
                for sl in range(h*C,h*C+C): s.tile(sl,n+1,rare)
                e('s_waitcnt vmcnt(%d)\nv_readfirstlane_b32 s77, v%d'%(8*C if LA==1 else 16*C+1,tkn))
                if s.o['stamp']: e('s_add_u32 s95, s95, 1')
            e('s_branch %s'%Lp)
        e('%s:'%Lfl)
        e('v_mov_b32 v19, v18\ns_nop 1\nv_permlane32_swap_b32 v18, v19\nv_add_f32 v18, v18, v19\nv_mov_b32 v19, v18\ns_nop 1\nv_permlane16_swap_b32 v18, v19\nv_add_f32 v18, v18, v19')
        e('s_lshl_b32 s65, s96, 2\ns_add_u32 s65, s65, s30\ns_mul_i32 s65, s65, 1040')
        e('v_lshrrev_b32 v19, 5, v0\nv_lshlrev_b32 v19, 9, v19\nv_and_b32 v20, 15, v0\nv_lshl_add_u32 v19, v20, 5, v19\nv_bfe_u32 v20, v0, 4, 1\nv_lshl_add_u32 v19, v20, 4, v19\nv_add_u32 v19, s65, v19')
        e('v_bfe_u32 v20, v0, 3, 1\nv_lshl_add_u32 v20, v20, 3, s65\nv_mov_b32 v22, v17\nv_mov_b32 v23, v18')
        e('ds_write_b128 v19, v[12:15] offset:%d\nds_write_b64 v20, v[22:23] offset:%d'%(L_PART,L_PART+1024))
        Ld=s.lab('done')
        e('s_add_u32 s62, s62, 1\ns_cmp_eq_u32 s62, 3\ns_cbranch_scc1 %s'%Ld)
        e('s_waitcnt lgkmcnt(0)')
        if s.o['stamp']:
            La=s.lab('st'); Lb=s.lab('st')
            e('s_cmp_eq_u32 s62, 1\ns_cbranch_scc1 %s'%La); s.stamp(9); e('s_branch %s\n%s:'%(Lb,La)); s.stamp(8); e('%s:'%Lb)
        if wo_prefetch:
            Lw=s.lab('nowo')
            e('s_cmp_lg_u32 s62, 1\ns_cbranch_scc1 %s'%Lw); s.wo_issue(); e('%s:'%Lw)
        s.q_operand(False)
        e('s_branch %s'%Lr)
        for La,Lb in rare:
            e('%s:'%La)
            e('v_max_f32 v19, v19, v16\nv_mov_b32 v24, v19\ns_nop 1\nv_permlane32_swap_b32 v19, v24\nv_max_f32 v19, v19, v24\nv_mov_b32 v24, v19\ns_nop 1\nv_permlane16_swap_b32 v19, v24\nv_max_f32 v16, v19, v24')
            e('v_mul_f32 v24, s67, v16\nv_sub_f32 v25, v17, v24\nv_exp_f32 v25, v25\nv_mov_b32 v17, v24\ns_nop 0\nv_mul_f32 v18, v18, v25')
            e('v_mov_b32_dpp v26, v25 row_newbcast:0 row_mask:0x3 bank_mask:0xf\nv_mov_b32_dpp v26, v25 row_newbcast:8 row_mask:0xc bank_mask:0xf')
            for r in range(4): e('v_mul_f32 v%d, v%d, v26'%(12+r,12+r))
            e('s_branch %s'%Lb)
        e('%s:'%Ld)
    thr=0; VO=228; Q128=236; VS=244; MA0=245; S2=246; MA1=227; K128=250
    def ph_setup(s):
        e=s.e
        e('s_lshl_b32 s65, s31, 24\ns_add_u32 s32, s16, s65\ns_addc_u32 s33, s17, 0\ns_add_u32 s98, s18, s65\ns_addc_u32 s99, s19, 0')
        e('s_lshl_b32 s65, s31, 25\ns_add_u32 s52, s6, s65\ns_addc_u32 s53, s7, 0\ns_add_u32 s54, s8, s65\ns_addc_u32 s55, s9, 0')
        e('s_add_u32 s56, s52, 0x1000000\ns_addc_u32 s57, s53, 0\ns_add_u32 s58, s54, 0x1000000\ns_addc_u32 s59, s55, 0')
        e('s_mov_b32 s34, 0x1000000\ns_mov_b32 s35, 0x20000\ns_mov_b32 s36, s32\ns_mov_b32 s37, s33\ns_mov_b32 s38, 0x1000000\ns_mov_b32 s39, 0x20000')
        s.step=16384
        e('s_lshl_b32 s60, s64, 20\ns_lshl_b32 s65, s30, 12\ns_add_u32 s60, s60, s65\ns_mov_b32 s61, s60\ns_mov_b32 s76, 32768')
        e('v_and_b32 v1, 3, v0\nv_lshlrev_b32 v1, 10, v1\nv_bfe_u32 v2, v0, 2, 2\nv_lshl_add_u32 v1, v2, 8, v1\nv_lshrrev_b32 v2, 4, v0\nv_lshl_add_u32 v1, v2, 4, v1')
        k=s.K128
        e('v_lshlrev_b32 v%d, 4, v2\nv_and_b32 v2, 1, v0\nv_lshl_add_u32 v%d, v2, 6, v%d\nv_bfe_u32 v2, v0, 1, 1\nv_lshl_add_u32 v%d, v2, 10, v%d\nv_bfe_u32 v2, v0, 2, 2\nv_lshl_add_u32 v%d, v2, 8, v%d'%(k,k,k,k,k,k,k))
        e('v_lshlrev_b32 v2, 4, v0')
        s.ph_offs('K')
    def ph_offs(s,kind):
        e=s.e
        k128=[(s.K128,o) for o in (0,128,2048,2176)]; k64=[(1,64*i) for i in range(4)]; vl=[(2,1024*i) for i in range(4)]
        km=s.o.get('kmix','ab')
        ka={'a':k128,'b':k64}[km[0]]; kb={'a':k128,'b':k64}[km[1]]
        sets={'K':ka+[(r,o+16384) for r,o in kb],'V':vl+[(r,o+16384) for r,o in vl],'P':k64+vl}[kind]
        if s.o.get('split'):
            sets={'K':k128+[(r,o+16384) for r,o in k128],'V':sets,'P':k128+vl}[kind]
            e('s_mov_b32 s68, 0x%x\ns_mov_b32 s96, 0x%x'%(0x0f0f0f0f if kind=='V' else 0x55555555, 0x55555555 if kind=='K' else 0x0f0f0f0f))
        for i,(r,o) in enumerate(sets):
            e('v_add_u32 v%d, %d, v%d'%(s.VO+i,o,r) if o else 'v_mov_b32 v%d, v%d'%(s.VO+i,r))
    def nops(s,sl,half):
        sp=s.o.get('split')
        return 8 if (sp and sp[(sl*2+half)%len(sp)]=='1') else 4
    def newer(s,sl,half):
        R=s.o['R']; seq=[(a,h) for a in range(R) for h in range(2)]; k=seq.index((sl,half))
        return sum(s.nops(*seq[(k+j)%(2*R)]) for j in range(1,2*R))
    def ph_issue(s,sl,half):
        if s.nops(sl,half)==8:
            m=(68,69) if half==0 else (96,97)
            for p in range(2):
                s.e('s_mov_b32 exec_lo, s%d\ns_mov_b32 exec_hi, s%d'%(m[0],m[0]) if p==0 else 's_not_b64 exec, exec')
                for i in range(4):
                    r=s.RING+sl*32+half*16+4*i
                    s.e('buffer_load_dwordx4 v[%d:%d], v%d, %s, s61 offen nt'%(r,r+3,s.VO+half*4+i,'s[36:39]' if half else 's[32:35]'))
            s.e('s_mov_b64 exec, -1')
            if half: s.e('s_add_u32 s61, s61, s76')
            return
        for i in range(4):
            r=s.RING+sl*32+half*16+4*i
            if s.thr and i%s.o.get('burst',4)==0: s.e('s_waitcnt vmcnt(%d)'%s.thr)
            s.e('buffer_load_dwordx4 v[%d:%d], v%d, %s, s61 offen nt'%(r,r+3,s.VO+half*4+i,'s[36:39]' if half else 's[32:35]'))
        if half: s.e('s_add_u32 s61, s61, s76')
    def ph_switch(s,kind,a,b,start):
        e=s.e
        e('s_mov_b32 s32, s%d\ns_mov_b32 s33, s%d\ns_mov_b32 s36, s%d\ns_mov_b32 s37, s%d'%(a,a+1,b,b+1))
        e('s_add_u32 s61, s60, %d\ns_mov_b32 s76, %d'%(start,16384 if kind=='P' else 32768))
        s.ph_offs(kind)
    def ph_q(s,ty):
        e=s.e
        e('v_lshrrev_b32 v24, 4, v0\nv_lshlrev_b32 v24, 4, v24')
        if ty==0: e('v_bfe_u32 v19, v0, 3, 1\nv_lshl_add_u32 v24, v19, 8, v24')
        e('v_and_b32 v19, 1, v0\nv_lshl_add_u32 v25, v19, 6, v24')
        o=L_Q+(0 if ty==0 else (ty+1)*256)
        for i in range(0 if s.o.get('split') else 4): e('ds_read_b128 v[%d:%d], v24 offset:%d'%(40+4*i,43+4*i,o+64*i))
        for c in range(2): e('ds_read_b128 v[%d:%d], v25 offset:%d'%(s.Q128+4*c,s.Q128+4*c+3,o+128*c))
        e('v_mov_b32 v16, 0xff800000')
        s.ph_saddr(ty)
        e('s_waitcnt lgkmcnt(0)')
    def ph_saddr(s,ty):
        e=s.e
        e('s_lshl_b32 s65, s30, 13\ns_add_u32 s65, s65, %d\nv_lshrrev_b32 v19, 4, v0\nv_lshl_add_u32 v%d, v19, 4, s65'%(L_S+(64 if ty==2 else 0),s.VS))
        if ty==0: e('v_bfe_u32 v19, v0, 3, 1\nv_lshl_add_u32 v%d, v19, 6, v%d'%(s.VS,s.VS))
    def ph_loop(s,niter,body,switch):
        e=s.e; L=s.lab('pl'); Ln=s.lab('pn')
        e('s_mov_b32 s63, %d\n%s:\ns_cmp_lg_u32 s63, 1\ns_cbranch_scc1 %s'%(niter,L,Ln))
        switch()
        e('%s:'%Ln)
        for sl in range(s.o['R']): body(sl)
        e('v_add_u32 v%d, %d, v%d\ns_sub_u32 s63, s63, 1\ns_cmp_lg_u32 s63, 0\ns_cbranch_scc1 %s'%(s.VS,256*s.o['R'],s.VS,L))
    def ph_kstep(s,sl):
        e=s.e; km='aa' if s.o.get('split') else s.o.get('kmix','ab')
        for half in range(2):
            kb=s.RING+sl*32+16*half; S=8 if half==0 else 32
            e('s_waitcnt vmcnt(%d)'%s.newer(sl,half))
            if km[half]=='a':
                for c in range(2):
                    for rb in range(2):
                        d=24+4*rb; r=kb+4*(rb*2+c)
                        e('v_mfma_f32_16x16x32_bf16 v[%d:%d], v[%d:%d], v[%d:%d], %s'%(d,d+3,r,r+3,s.Q128+4*c,s.Q128+4*c+3,'0' if c==0 else 'v[%d:%d]'%(d,d+3)))
                s.thr=s.o.get('kthr',0)
                s.ph_issue(sl,half); e('s_nop 3')
                for r in range(4): e('v_add_f32_dpp v%d, v%d, v%d quad_perm:[1,0,3,2] row_mask:0xf bank_mask:0xf'%(S+r,25+2*r,24+2*r))
            else:
                for i in range(4):
                    e('v_mfma_f32_16x16x32_bf16 v[%d:%d], v[%d:%d], v[%d:%d], %s'%(S,S+3,kb+4*i,kb+4*i+3,40+4*i,43+4*i,'0' if i==0 else 'v[%d:%d]'%(S,S+3)))
                s.thr=s.o.get('kthr',0)
                s.ph_issue(sl,half); e('s_nop 3')
            e('v_max3_f32 v16, v%d, v%d, v16\nv_max3_f32 v16, v%d, v%d, v16'%(S,S+1,S+2,S+3))
            e('s_mov_b64 exec, s[70:71]\nds_write_b128 v%d, v[%d:%d] offset:%d\ns_mov_b64 exec, -1'%(s.VS,S,S+3,(sl*2+half)*128))
    def ph_kend(s,dst):
        e=s.e
        e('v_mov_b32 v19, v16\ns_nop 1\nv_permlane32_swap_b32 v16, v19\nv_max_f32 v16, v16, v19\nv_mov_b32 v19, v16\ns_nop 1\nv_permlane16_swap_b32 v16, v19\nv_max_f32 v16, v16, v19\ns_nop 1')
        e('v_mov_b32_dpp v%d, v16 row_newbcast:0 row_mask:0xf bank_mask:0x3\nv_mov_b32_dpp v%d, v16 row_newbcast:8 row_mask:0xf bank_mask:0xc'%(dst,dst))
    def ph_vstart(s,ty,src):
        e=s.e
        e('v_mov_b32 v16, v%d\nv_mul_f32 v17, s67, v%d\nv_mov_b32 v18, 0\nv_mov_b32 v12, 0\nv_mov_b32 v13, 0\nv_mov_b32 v14, 0\nv_mov_b32 v15, 0'%(src,src))
        s.ph_saddr(ty)
    def ph_vstep(s,sl):
        e=s.e; n=4+8*(s.o['R']-1)
        e('ds_read_b128 v[8:11], v%d offset:%d\nds_read_b128 v[%d:%d], v%d offset:%d'%(s.VS,sl*256,s.S2,s.S2+3,s.VS,sl*256+128))
        for half in range(2):
            vb=s.RING+sl*32+16*half; S=8 if half==0 else s.S2
            e('s_waitcnt lgkmcnt(%d)'%(1-half))
            for r in range(4): e('v_fma_f32 v%d, v%d, s67, -v17'%(20+r,S+r))
            for r in range(4): e('v_exp_f32 v%d, v%d'%(20+r,20+r))
            for r in range(4): e('v_add_f32 v18, v18, v%d\nv_cvt_pk_bf16_f32 v%d, v%d, v%d'%(20+r,20+r,20+r,20+r))
            for r in range(4):
                for q in range(4): e('v_and_b32 v%d, v%d, v%d'%(24+4*r+q,20+r,4+q))
            e('s_waitcnt vmcnt(%d)\ns_nop 0'%s.newer(sl,half))
            for r in range(4):
                e('v_mfma_f32_16x16x32_bf16 v[12:15], v[%d:%d], v[%d:%d], v[12:15]'%(24+4*r,27+4*r,vb+4*r,vb+4*r+3))
            s.thr=s.o.get('vthr',0)
            s.ph_issue(sl,half)
    def flush(s,ty):
        e=s.e
        e('v_mov_b32 v19, v18\ns_nop 1\nv_permlane32_swap_b32 v18, v19\nv_add_f32 v18, v18, v19\nv_mov_b32 v19, v18\ns_nop 1\nv_permlane16_swap_b32 v18, v19\nv_add_f32 v18, v18, v19')
        e('s_mul_i32 s65, s30, 1040\ns_add_u32 s65, s65, %d'%(ty*4160))
        e('v_lshrrev_b32 v19, 5, v0\nv_lshlrev_b32 v19, 9, v19\nv_and_b32 v20, 15, v0\nv_lshl_add_u32 v19, v20, 5, v19\nv_bfe_u32 v20, v0, 4, 1\nv_lshl_add_u32 v19, v20, 4, v19\nv_add_u32 v19, s65, v19')
        e('v_bfe_u32 v20, v0, 3, 1\nv_lshl_add_u32 v20, v20, 3, s65\nv_mov_b32 v22, v17\nv_mov_b32 v23, v18')
        e('ds_write_b128 v19, v[12:15] offset:%d\nds_write_b64 v20, v[22:23] offset:%d\ns_waitcnt lgkmcnt(0)'%(L_PART,L_PART+1024))
    def att_phased(s):
        e=s.e; R=s.o['R']; P=s.o['P']; C=s.o.get('C',2); n=4+8*(R-1)
        NF=32//R; Ns=(64-R-P*R)//2; assert Ns%R==0 and 2*Ns+R+P*R==64; NS_=Ns//R
        e('s_mov_b32 s67, 0x%x\ns_mov_b32 s70, 0x01010101\ns_mov_b32 s71, 0x01010101'%CSC)
        s.ph_q(0); s.ph_loop(NF,s.ph_kstep,lambda: s.ph_switch('V',98,98,0)); s.ph_kend(s.MA0); s.stamp(8)
        s.ph_vstart(0,s.MA0); s.ph_loop(NF,s.ph_vstep,lambda: s.ph_switch('K',52,52,0)); s.flush(0); s.stamp(9)
        s.wo_issue()
        s.ph_q(1); s.ph_loop(NF,s.ph_kstep,lambda: s.ph_switch('K',56,56,0)); s.ph_kend(s.MA0)
        s.ph_q(2); s.ph_loop(NS_,s.ph_kstep,lambda: s.ph_switch('V',54,54,0)); s.ph_kend(s.MA1); s.stamp(13)
        s.ph_vstart(1,s.MA0); s.ph_loop(NF,s.ph_vstep,lambda: s.ph_switch('V',58,58,0)); s.flush(1)
        s.ph_vstart(2,s.MA1); s.ph_loop(NS_,s.ph_vstep,lambda: s.ph_switch('P',56,58,2*Ns*16384))
        s.issueK=lambda sl: s.ph_issue(sl,0); s.issueV=lambda sl: s.ph_issue(sl,1)
        rare=[]; Lfl=s.lab('flush'); TK=s.RING+32*R; Lp=s.lab('dloop'); NS=R//C; total=16*P*R//C
        e('s_mov_b32 s77, s64\ns_lshl_b32 s81, s31, 2\ns_add_u32 s81, s81, s30\ns_lshl_b32 s81, s81, 8\ns_lshl_b32 s89, s30, 12\ns_add_u32 s89, s89, %d'%((64-P*R)*16384))
        e('s_mov_b32 s80, 0x7fffffff\ns_add_u32 s81, s81, %d\nv_mov_b32 v%d, 0'%(WS_CNT,TK+2))
        e('s_mov_b32 s70, 0xaaaaaaaa\ns_mov_b32 s71, 0xaaaaaaaa')
        LA=s.o['LA']; s.thr=s.o.get('pthr',0)
        if LA==2: e('s_add_u32 s65, s77, 16\nv_mov_b32 v%d, s65'%(TK+1))
        s.stamp(14)
        e('%s:'%Lp)
        for h in range(NS):
            tk=TK+(h%2 if LA==2 else 0); tkn=TK+((h+1)%2 if LA==2 else 0)
            e('s_cmp_lt_u32 s77, %d\ns_cselect_b32 s34, 0x1000000, 0\ns_cselect_b32 s65, s80, %d\ns_mov_b32 s38, s34\ns_min_u32 s80, s80, s65'%(total,NS))
            e('s_cmp_eq_u32 s80, 0\ns_cbranch_scc1 %s\ns_sub_u32 s80, s80, 1'%Lfl)
            e('v_mov_b32 v%d, 1\ns_lshr_b32 s65, s77, 4\ns_and_b32 s65, s65, 63\ns_mul_i32 s65, s65, %d'%(tk,C*16384))
            e('s_add_u32 s61, s65, s89\ns_and_b32 s65, s77, 15\ns_lshl_b32 s65, s65, 20\ns_add_u32 s61, s61, s65')
            if s.o.get('nodyn'): e('s_add_u32 s65, s77, 16\nv_mov_b32 v%d, s65\ns_nop 0\nbuffer_load_dword v19, v%d, s[40:43], s81 offen'%(tk,TK+2))
            else: e('s_mov_b64 exec, 1\nbuffer_atomic_add v%d, v%d, s[40:43], s81 offen sc0 sc1\ns_mov_b64 exec, -1'%(tk,TK+2))
            for sl in range(h*C,h*C+C): s.tile(sl,n+1,rare)
            w=sum(s.nops(sl,hf) for sl in range(h*C,h*C+C) for hf in range(2))
            e('s_waitcnt vmcnt(%d)\nv_readfirstlane_b32 s77, v%d'%(w if LA==1 else 2*w+1,tkn))
            if s.o['stamp']: e('s_add_u32 s95, s95, 1')
        e('s_branch %s'%Lp)
        s.rare(rare)
        e('%s:'%Lfl); t0=len(s.t); s.flush(2)
        return Lfl,t0
    def rare(s,rare):
        e=s.e
        for La,Lb in rare:
            e('%s:'%La)
            e('v_max_f32 v19, v19, v16\nv_mov_b32 v24, v19\ns_nop 1\nv_permlane32_swap_b32 v19, v24\nv_max_f32 v19, v19, v24\nv_mov_b32 v24, v19\ns_nop 1\nv_permlane16_swap_b32 v19, v24\nv_max_f32 v16, v19, v24')
            e('v_mul_f32 v24, s67, v16\nv_sub_f32 v25, v17, v24\nv_exp_f32 v25, v25\nv_mov_b32 v17, v24\ns_nop 0\nv_mul_f32 v18, v18, v25')
            e('v_mov_b32_dpp v26, v25 row_newbcast:0 row_mask:0x3 bank_mask:0xf\nv_mov_b32_dpp v26, v25 row_newbcast:8 row_mask:0xc bank_mask:0xf')
            for r in range(4): e('v_mul_f32 v%d, v%d, v26'%(12+r,12+r))
            e('s_branch %s'%Lb)
    def wg_combine(s):
        e=s.e
        e('s_sub_u32 s65, s30, 1\ns_max_i32 s65, s65, 0\ns_mul_i32 s65, s65, 4160\ns_cmp_eq_u32 s30, 1\ns_cselect_b32 s66, 512, 0\ns_cselect_b32 s68, 8, 0\ns_add_u32 s66, s66, s65\ns_add_u32 s68, s68, s65')
        e('v_lshl_add_u32 v19, v0, 3, s66\nv_mov_b32 v20, s68')
        for i in range(4):
            e('ds_read_b64 v[%d:%d], v19 offset:%d\nds_read_b64 v[%d:%d], v20 offset:%d'%(24+2*i,25+2*i,L_PART+i*1040,32+2*i,33+2*i,L_PART+1024+i*1040))
        e('s_lshl_b32 s65, s31, 2\ns_add_u32 s65, s65, s30\ns_lshl_b32 s65, s65, 4\ns_add_u32 s65, s65, s64')
        e('s_lshl_b32 s66, s65, 10\ns_add_u32 s66, s66, %d\ns_lshl_b32 s65, s65, 4\ns_add_u32 s65, s65, %d'%(WS_PO,WS_PML))
        e('v_lshlrev_b32 v19, 4, v0\nv_mov_b32 v20, 0\nv_mov_b32 v13, s73\nv_mov_b32 v15, s73\nv_mov_b32 v41, s73\nv_mov_b32 v43, s73')
        e('s_waitcnt lgkmcnt(0)')
        e('v_max3_f32 v40, v32, v34, v36\nv_max_f32 v40, v40, v38')
        for i in range(4): e('v_sub_f32 v%d, v%d, v40'%(32+2*i,32+2*i))
        for i in range(4): e('v_exp_f32 v%d, v%d'%(32+2*i,32+2*i))
        e('s_nop 0\nv_mul_f32 v12, v32, v24\nv_mul_f32 v14, v32, v25\nv_mul_f32 v42, v32, v33')
        for i in range(1,4): e('v_fmac_f32 v12, v%d, v%d\nv_fmac_f32 v14, v%d, v%d\nv_fmac_f32 v42, v%d, v%d'%(32+2*i,24+2*i,32+2*i,25+2*i,32+2*i,33+2*i))
        e('buffer_store_dwordx4 v[12:15], v19, s[40:43], s66 offen sc1')
        e('s_mov_b64 exec, 1\nbuffer_store_dwordx4 v[40:43], v20, s[40:43], s65 offen sc1\ns_mov_b64 exec, -1')
    def tagpoll(s,loads,tagregs,tmp,pipe=True):
        e=s.e; L=s.lab('poll'); Lx=s.lab('pollx')
        if s.o.get('pp') and pipe:
            X=[l.replace('v[24:27]','v[48:51]').replace('v[28:31]','v[52:55]') for l in loads]
            Y=[l.replace('v[24:27]','v[120:123]').replace('v[28:31]','v[124:127]') for l in loads]
            def chk(d,lab):
                e('v_xor_b32 v%d, s73, v%d'%(tmp,tagregs[0]+d))
                for t in tagregs[1:]: e('v_xor_b32 v%d, s73, v%d\nv_or_b32 v%d, v%d, v%d'%(tmp+1,t+d,tmp,tmp,tmp+1))
                for r in (0,2,4,6): e('v_mov_b32 v%d, v%d'%(24+r,24+d+r))
                e('v_cmp_ne_u32 vcc, 0, v%d\ns_cbranch_vccz %s'%(tmp,lab))
            e('s_mov_b32 s72, 0x200000')
            for l in X: e(l)
            e('s_sleep %d\n%s:'%(s.o['pp'],L))
            for l in Y: e(l)
            e('s_waitcnt vmcnt(2)'); chk(24,Lx)
            for l in X: e(l)
            e('s_waitcnt vmcnt(2)'); chk(96,Lx)
            e('s_sub_u32 s72, s72, 1\ns_cmp_lg_u32 s72, 0\ns_cbranch_scc1 %s\n%s:'%(L,Lx))
            return
        e('s_mov_b32 s72, 0x200000\n%s:'%L)
        for l in loads: e(l)
        e('s_waitcnt vmcnt(0)')
        e('v_xor_b32 v%d, s73, v%d'%(tmp,tagregs[0]))
        for t in tagregs[1:]: e('v_xor_b32 v%d, s73, v%d\nv_or_b32 v%d, v%d, v%d'%(tmp+1,t,tmp,tmp,tmp+1))
        e('v_cmp_ne_u32 vcc, 0, v%d\ns_cbranch_vccz %s'%(tmp,Lx))
        if s.o.get('sleep'): e('s_sleep %d'%s.o['sleep'])
        e('s_sub_u32 s72, s72, 1\ns_cmp_lg_u32 s72, 0\ns_cbranch_scc1 %s\n%s:'%(L,Lx))
    def team_loads(s):
        e=s.e
        e('s_lshr_b32 s65, s64, 2\ns_lshl_b32 s66, s31, 2\ns_add_u32 s65, s65, s66')
        e('s_lshl_b32 s66, s65, 14\ns_and_b32 s68, s64, 3\ns_lshl_b32 s68, s68, 8\ns_add_u32 s66, s66, s68\ns_lshl_b32 s68, s30, 6\ns_add_u32 s66, s66, s68\ns_add_u32 s66, s66, %d'%WS_PO)
        e('s_lshl_b32 s65, s65, 8\ns_add_u32 s65, s65, %d'%WS_PML)
        e('v_and_b32 v19, 15, v0\nv_lshlrev_b32 v20, 4, v19\nv_lshlrev_b32 v19, 10, v19\nv_lshrrev_b32 v21, 4, v0\nv_lshl_add_u32 v19, v21, 4, v19')
        s.tagpoll(['buffer_load_dwordx4 v[24:27], v20, s[40:43], s65 offen sc1','buffer_load_dwordx4 v[28:31], v19, s[40:43], s66 offen sc1'],[25,27,29,31],32)
    def rowred(s,op,regs):
        for ror in (8,4,2,1):
            s.e('s_nop 1')
            for r in regs: s.e('%s_dpp v%d, v%d, v%d row_ror:%d row_mask:0xf bank_mask:0xf'%(op,r,r,r,ror))
    def team_proj(s):
        e=s.e
        e('v_mov_b32 v21, v24'); s.rowred('v_max_f32',[21])
        e('v_sub_f32 v24, v24, v21\nv_exp_f32 v24, v24\ns_nop 0\nv_mul_f32 v26, v26, v24\nv_mul_f32 v28, v28, v24\nv_mul_f32 v30, v30, v24')
        s.rowred('v_add_f32',[26,28,30])
        e('v_rcp_f32 v26, v26\ns_nop 0\nv_mul_f32 v28, v28, v26\nv_mul_f32 v30, v30, v26\nv_cvt_pk_bf16_f32 v28, v28, v28\nv_cvt_pk_bf16_f32 v30, v30, v30')
        for rg in range(2):
            for q in range(4): e('v_and_b32 v%d, v%d, v%d'%(32+4*rg+q,28+2*rg,4+q))
        e('s_nop 1')
        for rg in range(2):
            for cb in range(5):
                r=56+(rg*5+cb)*4; d=100+4*cb
                e('v_mfma_f32_16x16x32_bf16 v[%d:%d], v[%d:%d], v[%d:%d], %s'%(d,d+3,32+4*rg,35+4*rg,r,r+3,'0' if rg==0 else 'v[%d:%d]'%(d,d+3)))
        e('s_mul_i32 s65, s30, 2560\nv_and_b32 v19, 15, v0\nv_lshl_add_u32 v19, v19, 5, s65\nv_bfe_u32 v20, v0, 4, 1\nv_lshl_add_u32 v19, v20, 4, v19')
        e('s_nop 4\ns_mov_b32 exec_hi, 0')
        for cb in range(5): e('ds_write_b128 v19, v[%d:%d] offset:%d'%(100+4*cb,103+4*cb,L_YL+cb*512))
        e('s_mov_b64 exec, -1')
        e('s_cmp_lt_u32 s64, 8\ns_cselect_b32 s69, 1, 0\ns_mul_i32 s65, s69, %d\ns_and_b32 s66, s64, 7\ns_lshl_b32 s68, s31, 3\ns_add_u32 s66, s66, s68\ns_lshl_b32 s66, s66, 6\ns_add_u32 s65, s65, s66\ns_add_u32 s65, s65, %d'%(72*8192,WS_Y))
        e('v_lshlrev_b32 v19, 4, v3\nv_lshrrev_b32 v20, 1, v3\nv_lshlrev_b32 v20, 13, v20\nv_and_b32 v21, 1, v3\nv_lshl_add_u32 v20, v21, 5, v20')
        e('v_mov_b32 v41, s73\nv_mov_b32 v43, s73\nv_mov_b32 v45, s73\nv_mov_b32 v47, s73')
        e('s_waitcnt lgkmcnt(0)\ns_barrier')
        Ls=s.lab('noy')
        e('v_cmp_gt_u32 vcc, 144, v3\ns_and_saveexec_b64 s[70:71], vcc\ns_cbranch_execz %s'%Ls)
        for w in range(4): e('ds_read_b128 v[%d:%d], v19 offset:%d'%(24+4*w,27+4*w,L_YL+w*2560))
        e('s_waitcnt lgkmcnt(0)')
        for r in range(4): e('v_add_f32 v%d, v%d, v%d\nv_add_f32 v%d, v%d, v%d'%(24+r,24+r,28+r,32+r,32+r,36+r))
        for r in range(4): e('v_add_f32 v%d, v%d, v%d'%(40+2*r,24+r,32+r))
        e('buffer_store_dwordx4 v[40:43], v20, s[40:43], s65 offen sc1\nbuffer_store_dwordx4 v[44:47], v20, s[40:43], s65 offen offset:16 sc1')
        e('%s:\ns_mov_b64 exec, s[70:71]'%Ls)
    def final(s):
        e=s.e
        e('s_cmp_ge_u32 s3, 144\ns_cbranch_scc1 %s'%s.end)
        e('s_lshl_b32 s65, s3, 13\ns_add_u32 s65, s65, %d\ns_add_u32 s66, s65, 4096\nv_lshlrev_b32 v19, 4, v3'%WS_Y)
        e('s_mov_b32 s44, s24\ns_mov_b32 s45, s25\ns_mov_b32 s46, 2304\ns_mov_b32 s47, 0x20000')
        e('s_lshl_b32 s68, s30, 5\nv_and_b32 v21, 3, v0\nv_lshl_add_u32 v21, v21, 3, s68')
        s.tagpoll(['buffer_load_dwordx4 v[24:27], v19, s[40:43], s65 offen sc1','buffer_load_dwordx4 v[28:31], v19, s[40:43], s66 offen sc1'],[25,27,29,31],32)
        if s.o['stamp']: e('s_sub_u32 s95, 0x200000, s72'); s.stamp(12)
        e('v_add_f32 v24, v24, v28\nv_add_f32 v25, v26, v30')
        for ror in (4,8):
            e('s_nop 1')
            for r in range(2): e('v_add_f32_dpp v%d, v%d, v%d row_ror:%d row_mask:0xf bank_mask:0xf'%(24+r,24+r,24+r,ror))
        for sw in ('32','16'):
            for r in range(2): e('v_mov_b32 v%d, v%d'%(28+r,24+r))
            e('s_nop 1')
            for r in range(2): e('v_permlane%s_swap_b32 v%d, v%d'%(sw,24+r,28+r))
            for r in range(2): e('v_add_f32 v%d, v%d, v%d'%(24+r,24+r,28+r))
        e('s_mov_b64 exec, 0xf\nds_write_b64 v21, v[24:25] offset:%d\ns_mov_b64 exec, -1'%L_FL)
        e('s_waitcnt lgkmcnt(0)\ns_barrier')
        e('s_cmp_lg_u32 s30, 0\ns_cbranch_scc1 %s'%s.end)
        e('s_mov_b64 exec, 0xff\nv_lshlrev_b32 v19, 2, v0')
        for w in range(4): e('ds_read_b32 v%d, v19 offset:%d'%(24+w,L_FL+32*w))
        e('s_lshl_b32 s65, s3, 4\nv_lshlrev_b32 v19, 1, v0\ns_waitcnt lgkmcnt(0)')
        e('v_add_f32 v24, v24, v25\nv_add_f32 v26, v26, v27\nv_add_f32 v24, v24, v26\nv_cvt_pk_bf16_f32 v24, v24, v24')
        e('buffer_store_short v24, v19, s[44:47], s65 offen')
        L=s.lab('noep')
        e('s_cmp_lg_u32 s3, 0\ns_cbranch_scc1 %s'%L)
        e('s_mov_b64 exec, 1\nv_mov_b32 v19, %d\nv_mov_b32 v20, s73\nbuffer_store_dword v20, v19, s[40:43], 0 offen sc1\n%s:'%(WS_E,L))
    def dryify(s,t0):
        lines='\n'.join(s.t[t0:]).split('\n'); out=[]; i=0
        while i<len(lines):
            l=lines[i]
            if l.startswith('buffer_') or l=='s_barrier':
                j=i
                while j<len(lines) and (lines[j].startswith('buffer_') or lines[j]=='s_barrier'): j+=1
                L=s.lab('skip'); out.append('s_cbranch_execz %s'%L); out+=lines[i:j]; out.append('%s:'%L); i=j; continue
            m=re.match(r's_mov_b64 exec, (-1|1|0x[0-9a-f]+)$',l)
            if m: l='s_and_b64 exec, s[82:83], %s'%m.group(1)
            if l.startswith('s_and_saveexec_b64') and lines[i+1].startswith('s_cbranch_execz'):
                out.append(l); tgt=lines[i+1].split()[1]; L=s.lab('fall')
                out.append('s_cmp_eq_u32 s82, 0\ns_cbranch_scc1 %s\ns_cbranch_execz %s\n%s:'%(L,tgt,L)); i+=2; continue
            out.append(l); i+=1
        s.t[t0:]=out
    def stamp(s,slot,kidx=0,first=False,cnt=False):
        if not s.o['stamp']: return
        e=s.e
        e('s_memrealtime s[92:93]\ns_getreg_b32 s94, hwreg(HW_REG_XCC_ID)\ns_waitcnt lgkmcnt(0)')
        e('s_add_u32 s84, s28, 0x60000000\ns_addc_u32 s85, s29, 0\ns_mov_b32 s86, 0x1000000\ns_mov_b32 s87, 0x20000')
        e('s_lshl_b32 s88, s2, 3\ns_add_u32 s88, s88, s30\ns_lshl_b32 s88, s88, 6\ns_add_u32 s88, s88, %d'%(slot*4))
        e('s_mov_b64 s[78:79], exec\ns_mov_b64 exec, 1\nv_mov_b32 v252, 0\nv_mov_b32 v253, s92')
        e('buffer_store_dword v253, v252, s[84:87], s88 offen')
        if first: e('v_mov_b32 v254, s90\nv_mov_b32 v255, s94\nbuffer_store_dwordx2 v[254:255], v252, s[84:87], s88 offen offset:4')
        if cnt: e('v_mov_b32 v253, s95\nbuffer_store_dword v253, v252, s[84:87], s88 offen offset:4')
        if slot==4: e('v_mov_b32 v253, s95\nbuffer_store_dword v253, v252, s[84:87], s88 offen offset:44')
        e('s_mov_b64 exec, s[78:79]')
    def fused(s):
        e=s.e; R=s.o['R']; s.o['perlane']=1; s.o.setdefault('LA',1); s.step=16384
        k=s.px+NAME+'_kernel' if not s.px else s.px+'fused_kernel'
        e('.text\n.globl %s\n.p2align 8\n.type %s,@function\n%s:'%(k,k,k))
        s.end=s.lab('end'); Lsvc=s.lab('svc'); Lq=s.lab('qc'); Lsv2=s.lab('svc2')
        e('s_cmp_ge_u32 s2, 256\ns_cbranch_scc1 %s'%s.end)
        e('s_load_dwordx16 s[4:19], s[0:1], 0\ns_load_dwordx8 s[20:27], s[0:1], 64\ns_load_dwordx2 s[28:29], s[0:1], 96')
        if s.o['stamp']: e('s_memrealtime s[90:91]\ns_mov_b32 s95, 0')
        e('v_lshrrev_b32 v1, 6, v0\nv_mov_b32 v3, v0\nv_and_b32 v0, 63, v0\nv_readfirstlane_b32 s30, v1')
        e('s_mov_b32 s3, s2\ns_lshr_b32 s31, s2, 4\ns_and_b32 s64, s2, 15\ns_mov_b32 s43, 0x20000\ns_mov_b32 s42, %d\ns_mov_b64 s[82:83], -1'%WS_SIZE)
        e('s_cmp_eq_u32 s30, 4\ns_cbranch_scc1 %s'%Lsvc)
        e('v_lshrrev_b32 v4, 2, v3\nv_and_b32 v5, 3, v3\nv_lshlrev_b32 v5, 4, v5\nv_lshl_add_u32 v5, v4, 13, v5\nv_lshlrev_b32 v4, 1, v4')
        e('s_and_b32 s65, s64, 3\ns_lshl_b32 s65, s65, 7\ns_lshr_b32 s66, s64, 3\ns_lshl_b32 s66, s66, 6\ns_add_u32 s65, s65, s66\ns_lshl_b32 s66, s31, 9\ns_add_u32 s65, s65, s66')
        e('s_mov_b32 s46, %d\ns_mov_b32 s47, s43\ns_mov_b32 s50, 1152\ns_mov_b32 s51, s43'%(576*8192))
        e('s_mov_b32 s34, 0x1000000\ns_mov_b32 s35, s43\ns_mov_b32 s38, s34\ns_mov_b32 s39, s43\ns_mov_b32 s76, 32768')
        e('s_lshl_b32 s60, s64, 20\ns_lshl_b32 s61, s30, 12\ns_add_u32 s60, s60, s61\ns_mov_b32 s61, s60\ns_lshl_b32 s62, s31, 24')
        kk=s.K128
        e('v_lshrrev_b32 v2, 4, v0\nv_lshlrev_b32 v%d, 4, v2\nv_bfe_u32 v2, v0, 2, 2\nv_lshl_add_u32 v%d, v2, 8, v%d\nv_and_b32 v2, 3, v0\nv_lshl_add_u32 v1, v2, 10, v%d'%(kk,kk,kk,kk))
        e('v_and_b32 v2, 1, v0\nv_lshl_add_u32 v%d, v2, 6, v%d\nv_bfe_u32 v2, v0, 1, 1\nv_lshl_add_u32 v%d, v2, 10, v%d\nv_lshlrev_b32 v2, 4, v0'%(kk,kk,kk,kk))
        s.ph_offs('K')
        e('s_and_b32 s66, s64, 4\ns_cmp_eq_u32 s66, 0\ns_waitcnt lgkmcnt(0)')
        e('s_cselect_b32 s44, s20, s10\ns_cselect_b32 s45, s21, s11\ns_cselect_b32 s48, s14, s4\ns_cselect_b32 s49, s15, s5')
        e('s_add_u32 s32, s16, s62\ns_addc_u32 s33, s17, 0\ns_mov_b32 s36, s32\ns_mov_b32 s37, s33')
        halves=[]
        for sl in range(R): halves+=[lambda sl=sl: s.ph_issue(sl,0), lambda sl=sl: s.ph_issue(sl,1)]
        pre0,pre,hk,thr=s.o.get('fill',(0,1,(4,8),4))
        for h in halves[:pre0]: h()
        wb,xb,ab,tb=56,40,24,20
        for i in range(9):
            e('buffer_load_ushort v%d, v4, s[48:51], 0 offen offset:%d'%(xb+i,i*128))
            e('buffer_load_dwordx4 v[%d:%d], v5, s[44:47], s65 offen nt'%(wb+4*i,wb+4*i+3))
            if i<8: e('s_add_u32 s65, s65, %d'%(64*8192))
        for h in halves[pre0:pre0+pre]: h()
        if s.o.get('qst'): e('s_memrealtime s[100:101]')
        e('s_mov_b32 s40, s28\ns_mov_b32 s41, s29\ns_add_u32 s74, s28, %d\ns_addc_u32 s75, s29, 0\ns_load_dword s73, s[74:75], 0'%WS_E)
        e('s_add_u32 s98, s18, s62\ns_addc_u32 s99, s19, 0\ns_lshl_b32 s62, s62, 1')
        e('s_add_u32 s52, s6, s62\ns_addc_u32 s53, s7, 0\ns_add_u32 s54, s8, s62\ns_addc_u32 s55, s9, 0')
        e('s_add_u32 s56, s52, s34\ns_addc_u32 s57, s53, 0\ns_add_u32 s58, s54, s34\ns_addc_u32 s59, s55, 0')
        e('%s:\ns_mov_b32 s66, 0xffff0000'%Lq); t0=len(s.t)
        newer=4*pre; nh=pre0+pre
        for i in range(9):
            e('s_waitcnt vmcnt(%d)'%(newer+2*(8-i)))
            if s.o.get('qst') and i in (0,8): e('s_memrealtime s[%d:%d]'%((84,85) if i==0 else (86,87)))
            if i in hk: halves[nh](); nh+=1; newer+=4
            e('v_lshlrev_b32 v%d, 16, v%d'%(xb+i,xb+i))
            for d in range(4):
                e('v_lshlrev_b32 v%d, 16, v%d\nv_and_b32 v%d, s66, v%d'%(tb,wb+4*i+d,tb+1,wb+4*i+d))
                op='v_mul_f32' if i==0 else 'v_fmac_f32'
                e('%s v%d, v%d, v%d\n%s v%d, v%d, v%d'%(op,ab+2*d,xb+i,tb,op,ab+2*d+1,xb+i,tb+1))
        e('v_lshrrev_b32 v%d, 4, v3\nv_and_b32 v%d, 3, v3\nv_lshlrev_b32 v%d, 5, v%d\nv_lshl_add_u32 v%d, v%d, 7, v%d'%(tb,tb+1,tb+1,tb+1,tb,tb,tb+1))
        for ror in (4,8):
            for j in range(8): e('v_add_f32_dpp v%d, v%d, v%d row_ror:%d row_mask:0xf bank_mask:0xf'%(ab+j,ab+j,ab+j,ror))
        e('ds_write_b128 v%d, v[%d:%d] offset:%d\nds_write_b128 v%d, v[%d:%d] offset:%d'%(tb,ab,ab+3,L_QR,tb,ab+4,ab+7,L_QR+16))
        e('s_waitcnt lgkmcnt(0)')
        if s.o.get('qdry',1): s.dryify(t0); e('s_cbranch_execz %s'%Lsv2)
        e('s_barrier')
        e('s_add_u32 s73, s73, 0x%x'%TAGINC)
        if s.o.get('qst'): e('s_mov_b32 s62, s84\ns_mov_b32 s63, s86')
        s.stamp(0,first=True)
        if s.o.get('qst'):
            e('s_mov_b64 exec, 1\nv_mov_b32 v253, s100\nv_mov_b32 v254, s62\nv_mov_b32 v255, s63\nbuffer_store_dword v253, v252, s[84:87], s88 offen offset:20\nbuffer_store_dwordx2 v[254:255], v252, s[84:87], s88 offen offset:24\ns_mov_b64 exec, -1')
        for n_,h in enumerate(halves[nh:]):
            e('s_waitcnt vmcnt(%d)'%thr); h()
            if n_==0: s.masks()
        s.stamp(11)
        e('s_barrier')
        s.stamp(3)
        Ltail,t0=s.att_phased(); s.stamp(4)
        e('s_barrier')
        q=s.o.get('qst')
        s.wg_combine(); (q or s.stamp(5))
        s.team_loads(); (q or s.stamp(6))
        s.team_proj(); (q or s.stamp(7)); s.final(); s.stamp(10)
        s.dryify(t0)
        e('s_endpgm')
        e('%s:\ns_setprio 3\ns_waitcnt lgkmcnt(0)'%Lsvc)
        e('s_mov_b32 s40, s28\ns_mov_b32 s41, s29\ns_add_u32 s74, s28, %d\ns_addc_u32 s75, s29, 0\ns_load_dword s73, s[74:75], 0'%WS_E)
        if s.o.get('touch'):
            e('s_and_b32 s66, s64, 4\ns_cmp_eq_u32 s66, 0\ns_cselect_b32 s44, s20, s10\ns_cselect_b32 s45, s21, s11\ns_mov_b32 s46, %d\ns_mov_b32 s47, s43'%(576*8192))
            e('s_lshl_b32 s62, s31, 24\ns_add_u32 s32, s16, s62\ns_addc_u32 s33, s17, 0\ns_mov_b32 s34, 0x1000000\ns_mov_b32 s35, s43\ns_lshl_b32 s61, s64, 20')
            e('v_lshlrev_b32 v19, 21, v0\nv_mov_b32 v20, 0\ns_mov_b64 exec, 1')
            if 'k' in s.o['touch']: e('buffer_load_dword v22, v20, s[32:35], s61 offen nt')
            if 'w' in s.o['touch']: e('s_mov_b64 exec, 0x6\nbuffer_load_dword v23, v19, s[44:47], 0 offen nt')
            e('s_mov_b64 exec, -1')
        L=s.lab('notlead')
        e('s_cmp_lg_u32 s64, 0\ns_cbranch_scc1 %s'%L)
        e('s_lshl_b32 s65, s31, 10\ns_add_u32 s65, s65, %d\nv_lshlrev_b32 v19, 8, v0\nv_mov_b32 v20, %d\ns_mov_b64 exec, 0xf'%(WS_CNT,16*s.o['LA']))
        e('buffer_store_dword v20, v19, s[40:43], s65 offen sc1\ns_mov_b64 exec, -1\n%s:'%L)
        if s.o.get('qdry',1):
            for r in range(8): e('v_mov_b32 v%d, 0'%(s.VO+r))
            e('s_mov_b64 s[32:33], s[28:29]\ns_mov_b32 s34, 0\ns_mov_b32 s35, s43\ns_mov_b64 s[36:37], s[28:29]\ns_mov_b32 s38, 0\ns_mov_b32 s39, s43\ns_mov_b32 s61, 0\ns_mov_b32 s76, 0')
            e('s_mov_b64 s[82:83], 0\ns_mov_b64 exec, 0\ns_branch %s\n%s:\ns_mov_b64 exec, -1'%(Lq,Lsv2))
        e('s_waitcnt vmcnt(0) lgkmcnt(0)\ns_add_u32 s73, s73, 0x%x'%TAGINC)
        e('s_barrier')
        s.q_finish(24,'sc1')
        s.stamp(12)
        e('s_lshl_b32 s65, s31, 11\nv_lshlrev_b32 v19, 5, v0\nv_lshlrev_b32 v21, 4, v0')
        s.tagpoll(['buffer_load_dwordx4 v[24:27], v19, s[40:43], s65 offen sc1','buffer_load_dwordx4 v[28:31], v19, s[40:43], s65 offen offset:16 sc1'],[25,27,29,31],32,pipe=False)
        e('v_mov_b32 v25, v26\nv_mov_b32 v26, v28\nv_mov_b32 v27, v30')
        e('ds_write_b128 v21, v[24:27] offset:%d\ns_waitcnt lgkmcnt(0)'%L_Q)
        e('s_barrier')
        e('s_setprio 0\nv_mov_b32 v19, 0\nv_mov_b32 v20, 0\nv_mov_b32 v21, 0\ns_mov_b64 s[82:83], 0\ns_mov_b64 exec, 0\ns_mov_b32 s3, 0\ns_mov_b32 s30, 0\ns_branch %s'%Ltail)
        nv=251
        s.tail(k,nv)
        launch='; @launch grid=(256,1,1) block=(320,1,1) lds=%d'%LDS_SIZE
        return launch,'%s:256:320:%d'%(k,LDS_SIZE),[(k,nv,320)]
    def build(s):
        launch,spec,ks=getattr(s,s.o['mode'])()
        return HDR+launch+'\n.amdgcn_target "amdgcn-amd-amdhsa--gfx950"\n'+'\n'.join(s.t)+'\n',spec,ks
def write(path,**o):
    t,spec,ks=G(**o).build(); open(path,'w').write(t); return spec,ks
if __name__=='__main__':
    o=eval('dict(%s)'%(sys.argv[2] if len(sys.argv)>2 else ''))
    print(write(sys.argv[1],**o))
```

```python
import sys, re, math, struct
NAME='concat_heads__mha_block_cached__gqa_block_cached__decode'
HDR=open('cdna_kernels/%s.s.ref'%NAME).read().split('; Override launch')[0]

WS_Q=0; WS_PO=0x10000; WS_PML=0x110000; WS_Y=0x120000; WS_E=0x240000; WS_CNT=0x241000; WS_SIZE=0x250000
TAGINC=0x9E3779B1
L_Q=0; L_QR=1024; L_PART=3072; L_YL=16384; L_FL=16384+4*2560; L_S=L_FL+256; LDS_SIZE=L_S+32768
CSC=struct.unpack('<I',struct.pack('<f',math.log2(math.e)/math.sqrt(128)))[0]
LOG2E=struct.unpack('<I',struct.pack('<f',math.log2(math.e)))[0]
SCALE=struct.unpack('<I',struct.pack('<f',128**-0.5))[0]

class G:
    def __init__(s, **o):
        s.o=dict(mode='fused', pattern='wg', kfl='nt', vfl='nt', R=4, stamp=False, xcd=False, T=8, vthr=5, kthr=5, pthr=6, burst=2); s.o.update(o)
        s.t=[]; s.uid=0; s.px=s.o.get('prefix','')
    def e(s,x): s.t.append(x)
    def lab(s,n): s.uid+=1; return 'L_%s%s_%d'%(s.px,n,s.uid)
    def head(s,name,nwg):
        s.e('.text\n.globl %s\n.p2align 8\n.type %s,@function\n%s:'%(name,name,name))
        s.end=s.lab('end')
        s.e('s_cmp_ge_u32 s2, %d\ns_cbranch_scc1 %s'%(nwg,s.end))
        s.e('s_load_dwordx16 s[4:19], s[0:1], 0\ns_load_dwordx8 s[20:27], s[0:1], 64\ns_load_dwordx2 s[28:29], s[0:1], 96')
        if s.o['stamp']: s.e('s_memrealtime s[90:91]\ns_mov_b32 s95, 0')
        s.e('v_lshrrev_b32 v1, 6, v0\nv_mov_b32 v3, v0\nv_and_b32 v0, 63, v0')
        s.e('v_readfirstlane_b32 s30, v1')
        if s.o['xcd']:
            s.e('s_and_b32 s31, s2, 7\ns_lshr_b32 s3, s2, 3\ns_lshl_b32 s31, s31, 5\ns_add_u32 s3, s3, s31')
        else: s.e('s_mov_b32 s3, s2')
        s.e('s_lshr_b32 s31, s3, 4\ns_and_b32 s64, s3, 15')
        s.e('s_waitcnt lgkmcnt(0)')
        s.e('s_mov_b32 s40, s28\ns_mov_b32 s41, s29\ns_mov_b32 s42, %d\ns_mov_b32 s43, 0x20000'%WS_SIZE)
        s.e('s_add_u32 s74, s28, %d\ns_addc_u32 s75, s29, 0\ns_load_dword s73, s[74:75], 0'%WS_E)
    def tail(s,name,nv,ns=102):
        if s.o['stamp']: nv=256
        s.e('%s:\ns_endpgm'%s.end)
        s.e('.section .rodata,"a"\n.p2align 6\n.amdhsa_kernel %s\n  .amdhsa_next_free_vgpr %d\n  .amdhsa_next_free_sgpr %d\n  .amdhsa_accum_offset %d\n  .amdhsa_group_segment_fixed_size 0\n  .amdhsa_kernarg_size 104\n  .amdhsa_user_sgpr_count 2\n  .amdhsa_user_sgpr_kernarg_segment_ptr 1\n  .amdhsa_system_sgpr_workgroup_id_x 1\n.end_amdhsa_kernel'%(name,nv,ns,(nv+3)//4*4))
    def q_issue(s,wb,xb):
        e=s.e
        if s.o.get('qpair',1): e('s_and_b32 s65, s64, 4\ns_cmp_eq_u32 s65, 0')
        else: e('s_cmp_lt_u32 s64, 8')
        e('s_cselect_b32 s44, s20, s10\ns_cselect_b32 s45, s21, s11\ns_cselect_b32 s48, s14, s4\ns_cselect_b32 s49, s15, s5')
        e('s_mov_b32 s46, %d\ns_mov_b32 s47, 0x20000\ns_mov_b32 s50, 1152\ns_mov_b32 s51, 0x20000'%(576*8192))
        if s.o.get('qpair',1): e('s_and_b32 s65, s64, 3\ns_lshl_b32 s65, s65, 7\ns_lshr_b32 s66, s64, 3\ns_lshl_b32 s66, s66, 6\ns_add_u32 s65, s65, s66\ns_lshl_b32 s66, s31, 9\ns_add_u32 s65, s65, s66')
        else: e('s_and_b32 s65, s64, 7\ns_lshl_b32 s65, s65, 6\ns_lshl_b32 s66, s31, 9\ns_add_u32 s65, s65, s66')
        e('v_lshrrev_b32 v4, 2, v3\nv_and_b32 v5, 3, v3\nv_lshlrev_b32 v5, 4, v5\nv_lshl_add_u32 v5, v4, 13, v5\nv_lshlrev_b32 v4, 1, v4')
        for i in range(9):
            e('buffer_load_ushort v%d, v4, s[48:51], 0 offen offset:%d'%(xb+i,i*128))
        for i in range(9):
            e('buffer_load_dwordx4 v[%d:%d], v5, s[44:47], s65 offen %s'%(wb+4*i,wb+4*i+3,s.o.get('qfl','nt')))
            if i<8: e('s_add_u32 s65, s65, %d'%(64*8192))
    def q_compute(s,wb,xb,ab,tb,newer,hooks={}):
        e=s.e
        for j in range(8): e('v_mov_b32 v%d, 0'%(ab+j))
        for i in range(9):
            e('s_waitcnt vmcnt(%d)'%(newer+8-i))
            if s.o.get('qst') and i in (0,8): e('s_memrealtime s[%d:%d]'%((84,85) if i==0 else (86,87)))
            if i in hooks: hooks[i][0](); newer+=hooks[i][1]
            e('v_lshlrev_b32 v%d, 16, v%d'%(xb+i,xb+i))
            for d in range(4):
                e('v_lshlrev_b32 v%d, 16, v%d\nv_and_b32 v%d, 0xffff0000, v%d'%(tb,wb+4*i+d,tb+1,wb+4*i+d))
                e('v_fmac_f32 v%d, v%d, v%d\nv_fmac_f32 v%d, v%d, v%d'%(ab+2*d,xb+i,tb,ab+2*d+1,xb+i,tb+1))
        for ror in (4,8):
            e('s_nop 1')
            for j in range(8): e('v_add_f32_dpp v%d, v%d, v%d row_ror:%d row_mask:0xf bank_mask:0xf'%(ab+j,ab+j,ab+j,ror))
        e('v_lshrrev_b32 v%d, 4, v3\nv_and_b32 v%d, 3, v3\nv_lshlrev_b32 v%d, 5, v%d\nv_lshl_add_u32 v%d, v%d, 7, v%d'%(tb,tb+1,tb+1,tb+1,tb,tb,tb+1))
        e('ds_write_b128 v%d, v[%d:%d] offset:%d\nds_write_b128 v%d, v[%d:%d] offset:%d'%(tb,ab,ab+3,L_QR,tb,ab+4,ab+7,L_QR+16))
        e('s_waitcnt lgkmcnt(0)')
    def q_finish(s,tb,fl):
        e=s.e
        e('v_and_b32 v%d, 31, v0\nv_lshlrev_b32 v%d, 2, v%d\nv_lshrrev_b32 v%d, 5, v0\nv_lshl_add_u32 v%d, v%d, 10, v%d'%(tb,tb,tb,tb+1,tb,tb+1,tb))
        for p in range(8): e('ds_read_b32 v%d, v%d offset:%d'%(tb+2+p,tb,L_QR+p*128))
        if s.o.get('qpair',1): e('s_and_b32 s65, s64, 7\ns_lshl_b32 s65, s65, 1\ns_lshr_b32 s66, s64, 3\ns_add_u32 s65, s65, s66\ns_lshl_b32 s66, s31, 4\ns_add_u32 s65, s65, s66\ns_lshl_b32 s65, s65, 7')
        else: e('s_lshl_b32 s65, s3, 7')
        e('v_and_b32 v%d, 31, v0\nv_lshlrev_b32 v%d, 2, v%d'%(tb,tb,tb))
        e('s_waitcnt lgkmcnt(0)')
        for a,b in ((0,1),(2,3),(4,5),(6,7),(0,2),(4,6),(0,4)): e('v_add_f32 v%d, v%d, v%d'%(tb+2+a,tb+2+a,tb+2+b))
        e('v_mov_b32 v%d, v%d\ns_nop 1\nv_permlane32_swap_b32 v%d, v%d\nv_add_f32 v%d, v%d, v%d'%(tb+3,tb+2,tb+2,tb+3,tb+2,tb+2,tb+3))
        e('s_nop 1\nv_mov_b32_dpp v%d, v%d quad_perm:[1,0,3,2] row_mask:0xf bank_mask:0xf'%(tb+3,tb+2))
        e('v_cvt_pk_bf16_f32 v%d, v%d, v%d\nv_mov_b32 v%d, s73'%(tb+2,tb+2,tb+3,tb+3))
        e('s_mov_b32 exec_lo, 0x55555555\ns_mov_b32 exec_hi, 0')
        e('buffer_store_dwordx2 v[%d:%d], v%d, s[40:43], s65 offen %s'%(tb+2,tb+3,tb,fl))
        e('s_mov_b64 exec, -1')
    RING=96
    def att_setup(s):
        e=s.e
        rot=s.o.get('rot',0)
        if rot==1: e('s_mul_i32 s96, s31, 11\ns_lshr_b32 s96, s96, 5\ns_mul_i32 s96, s96, 3\ns_sub_u32 s96, s31, s96')
        else: e('s_mov_b32 s96, 0')
        e('s_mov_b32 s97, s96\ns_lshl_b32 s66, s31, 1\ns_sub_u32 s66, s66, 1')
        for r,(kb,vb) in enumerate(((32,36),(52,54),(56,58))):
            e('s_add_u32 s65, s66, s97\ns_cmp_eq_u32 s97, 0\ns_cselect_b32 s65, s31, s65')
            e('s_cselect_b32 s%d, s16, s6\ns_cselect_b32 s%d, s17, s7\ns_cselect_b32 s%d, s18, s8\ns_cselect_b32 s%d, s19, s9'%(kb,kb+1,vb,vb+1))
            e('s_lshl_b32 s65, s65, 24\ns_add_u32 s%d, s%d, s65\ns_addc_u32 s%d, s%d, 0\ns_add_u32 s%d, s%d, s65\ns_addc_u32 s%d, s%d, 0'%(kb,kb,kb+1,kb+1,vb,vb,vb+1,vb+1))
            if r<2: e('s_add_u32 s97, s97, 1\ns_cmp_eq_u32 s97, 3\ns_cselect_b32 s97, 0, s97')
        e('s_mov_b32 s34, 0x1000000\ns_mov_b32 s35, 0x20000\ns_mov_b32 s38, 0x1000000\ns_mov_b32 s39, 0x20000')
        if s.o['pattern']=='wg': e('s_lshl_b32 s60, s64, 20'); s.step=16384
        else: e('s_lshl_b32 s60, s64, 14'); s.step=262144
        e('s_lshl_b32 s65, s30, 12\ns_add_u32 s60, s60, s65\ns_mov_b32 s61, s60')
        if s.o.get('xm'):
            s.xorval('s64'); e('s_xor_b32 s69, s61, s68')
        e('v_and_b32 v1, 3, v0\nv_lshlrev_b32 v1, 10, v1\nv_bfe_u32 v2, v0, 2, 2\nv_lshl_add_u32 v1, v2, 8, v1\nv_lshrrev_b32 v2, 4, v0\nv_lshl_add_u32 v1, v2, 4, v1')
        e('v_lshlrev_b32 v2, 4, v0')
    def xorval(s,m):
        a,b=s.o['xm']
        s.e('s_mul_i32 s68, %s, %d\ns_mul_i32 s66, s31, %d\ns_add_u32 s68, s68, s66\ns_and_b32 s68, s68, 63\ns_mul_i32 s68, s68, %d'%(m,a,b,s.step))
    def masks(s):
        e=s.e
        e('v_and_b32 v8, 1, v0\nv_cmp_eq_u32 vcc, 1, v8\nv_mov_b32 v9, 0xffff\nv_mov_b32 v10, 0xffff0000\nv_cndmask_b32 v9, v9, v10, vcc\nv_bfe_u32 v8, v0, 1, 2')
        for q in range(4): e('v_cmp_eq_u32 vcc, %d, v8\ns_nop 1\nv_cndmask_b32 v%d, 0, v9, vcc'%(q,4+q))
    def issueK(s,sl):
        for i in range(4):
            r=s.RING+sl*32+4*i
            s.e('buffer_load_dwordx4 v[%d:%d], v1, s[32:35], %s offen offset:%d %s'%(r,r+3,'s69' if s.o.get('xm') else 's61',64*i,s.o['kfl']))
    def issueV(s,sl):
        for i in range(4):
            r=s.RING+sl*32+16+4*i
            s.e('buffer_load_dwordx4 v[%d:%d], v2, s[36:39], %s offen offset:%d %s'%(r,r+3,'s69' if s.o.get('xm') else 's61',1024*i,s.o['vfl']))
        s.e('s_add_u32 s61, s61, %d'%s.step)
        if s.o.get('xm'): s.e('s_xor_b32 s69, s61, s68')
    def wo_issue(s):
        e=s.e
        e('s_cmp_lt_u32 s64, 8\ns_cselect_b32 s44, s22, s12\ns_cselect_b32 s45, s23, s13')
        e('s_and_b32 s65, s64, 7\ns_lshl_b32 s65, s65, 5\ns_lshl_b32 s66, s31, 8\ns_add_u32 s65, s65, s66\ns_mul_i32 s65, s65, 1152')
        e('s_add_u32 s44, s44, s65\ns_addc_u32 s45, s45, 0\ns_sub_u32 s46, %d, s65\ns_mov_b32 s47, 0x20000'%(4096*1152))
        e('s_mul_i32 s65, s30, %d'%(8*1152))
        e('v_lshrrev_b32 v26, 4, v0\nv_mul_u32_u24 v26, 2304, v26\nv_and_b32 v27, 15, v0\nv_lshl_add_u32 v26, v27, 4, v26')
        for cb in range(5):
            if cb==4: e('s_mov_b32 exec_lo, 0x00ff00ff\ns_mov_b32 exec_hi, 0x00ff00ff')
            for rg in range(2):
                r=56+(rg*5+cb)*4
                e('buffer_load_dwordx4 v[%d:%d], v26, s[44:47], s65 offen offset:%d nt'%(r,r+3,rg*1152+cb*256))
        e('s_mov_b64 exec, -1')
    def q_operand(s,first):
        e=s.e
        if not first: e('s_add_u32 s96, s96, 1\ns_cmp_eq_u32 s96, 3\ns_cselect_b32 s96, 0, s96')
        e('s_add_u32 s66, s96, 1\ns_lshl_b32 s66, s66, 8\ns_cmp_eq_u32 s96, 0\ns_cselect_b32 s65, 256, 0\ns_cselect_b32 s66, 0, s66')
        e('v_bfe_u32 v19, v0, 3, 1\nv_mul_u32_u24 v19, s65, v19\nv_lshrrev_b32 v24, 4, v0\nv_lshl_add_u32 v24, v24, 4, s66\nv_add_u32 v19, v19, v24')
        for i in range(4): e('ds_read_b128 v[%d:%d], v19 offset:%d'%(40+4*i,43+4*i,L_Q+64*i))
        e('v_mov_b32 v12, 0\nv_mov_b32 v13, 0\nv_mov_b32 v14, 0\nv_mov_b32 v15, 0\nv_mov_b32 v16, 0xff800000\nv_mov_b32 v17, 0xff800000\nv_mov_b32 v18, 0')
        e('s_waitcnt lgkmcnt(0)')
    def tile(s,sl,n,rare):
        e=s.e
        kb=s.RING+sl*32; vb=kb+16
        if s.o.get('split'):
            e('s_waitcnt vmcnt(%d)'%(s.newer(sl,0)+1)); n=s.newer(sl,1)+1
            for c in range(2):
                for rb in range(2):
                    d=24+4*rb; r=kb+4*(rb*2+c)
                    e('v_mfma_f32_16x16x32_bf16 v[%d:%d], v[%d:%d], v[%d:%d], %s'%(d,d+3,r,r+3,s.Q128+4*c,s.Q128+4*c+3,'0' if c==0 else 'v[%d:%d]'%(d,d+3)))
            s.issueK(sl); e('s_nop 3')
            for r in range(4): e('v_cndmask_b32 v%d, v%d, v%d, s[70:71]'%(8+r,24+2*r,25+2*r))
            for r in range(4): e('v_add_f32_dpp v%d, v%d, v%d quad_perm:[1,0,3,2] row_mask:0xf bank_mask:0xf'%(8+r,8+r,8+r))
        else:
            e('s_waitcnt vmcnt(%d)'%n)
            for i in range(4):
                e('v_mfma_f32_16x16x32_bf16 v[8:11], v[%d:%d], v[%d:%d], %s'%(kb+4*i,kb+4*i+3,40+4*i,43+4*i,'0' if i==0 else 'v[8:11]'))
            s.issueK(sl)
            e('s_nop 3')
        s.rnd(8)
        La=s.lab('rare'); Lb=s.lab('back'); rare.append((La,Lb))
        e('v_max3_f32 v19, v8, v9, v10\nv_max_f32 v19, v19, v11\nv_cmp_gt_f32 vcc, v19, v16\ns_cbranch_vccnz %s\n%s:'%(La,Lb))
        for r in range(4): e('v_fma_f32 v%d, v%d, s67, -v17'%(20+r,8+r))
        for r in range(4): e('v_exp_f32 v%d, v%d'%(20+r,20+r))
        e('v_add_f32 v18, v18, v20\nv_cvt_pk_bf16_f32 v20, v20, v20')
        for r in range(1,4): e('v_add_f32 v18, v18, v%d\nv_cvt_pk_bf16_f32 v%d, v%d, v%d'%(20+r,20+r,20+r,20+r))
        for r in range(4):
            for q in range(4): e('v_and_b32 v%d, v%d, v%d'%(24+4*r+q,20+r,4+q))
        e('s_waitcnt vmcnt(%d)'%n)
        e('s_nop 0')
        for r in range(4):
            e('v_mfma_f32_16x16x32_bf16 v[12:15], v[%d:%d], v[%d:%d], v[12:15]'%(24+4*r,27+4*r,vb+4*r,vb+4*r+3))
        s.issueV(sl)
    def att_loop(s,wo_prefetch):
        e=s.e; R=s.o['R']; n=4+8*(R-1); P=s.o.get('P',0); C=s.o.get('C',2); NI=64//R
        Lr=s.lab('round'); Ll=s.lab('loop'); Ln=s.lab('nosw'); rare=[]; Lfl=s.lab('flush'); Ldyn=s.lab('dyn')
        e('s_mov_b32 s62, 0\ns_mov_b32 s67, 0x%x'%CSC)
        s.q_operand(True)
        e('%s:\ns_mov_b32 s63, %d'%(Lr,NI))
        if P: e('s_cmp_eq_u32 s62, 2\ns_cselect_b32 s63, %d, s63\ns_cselect_b32 s76, 0, 1'%(NI-1-P))
        else: e('s_mov_b32 s76, 1')
        e('%s:'%Ll)
        e('s_cmp_lg_u32 s63, s76\ns_cbranch_scc1 %s'%Ln)
        e('s_mov_b32 s32, s52\ns_mov_b32 s33, s53\ns_mov_b32 s36, s54\ns_mov_b32 s37, s55\ns_mov_b64 s[52:53], s[56:57]\ns_mov_b64 s[54:55], s[58:59]\ns_mov_b32 s61, s60')
        if s.o.get('xm'): e('s_xor_b32 s69, s61, s68')
        e('s_cmp_lt_u32 s62, 2\ns_cselect_b32 s34, s34, 0\ns_mov_b32 s38, s34')
        e('%s:'%Ln)
        for sl in range(R): s.tile(sl,n,rare)
        e('s_sub_u32 s63, s63, 1\ns_cmp_lg_u32 s63, 0\ns_cbranch_scc1 %s'%Ll)
        if P:
            TK=s.RING+32*R; Lp=s.lab('dloop'); LA=s.o.get('LA',2); NS=R//C; PL=s.o.get('perlane',0)
            G_=16 if PL else 64; total=G_*P*R//C; sh=4 if PL else 6
            assert LA in (1,2) and (LA==1 or NS%2==0)
            e('s_cmp_lg_u32 s62, 2\ns_cbranch_scc1 %s'%Lfl)
            if PL: e('s_mov_b32 s77, s64\ns_lshl_b32 s81, s31, 2\ns_add_u32 s81, s81, s30\ns_lshl_b32 s81, s81, 8\ns_lshl_b32 s89, s30, 12\ns_add_u32 s89, s89, %d'%((NI-P)*R*s.step))
            else: e('s_lshl_b32 s77, s64, 2\ns_add_u32 s77, s77, s30\ns_lshl_b32 s81, s31, 10')
            e('s_mov_b32 s80, 0x7fffffff\ns_add_u32 s81, s81, %d\nv_mov_b32 v%d, 0'%(WS_CNT,TK+2))
            if LA==2: e('s_add_u32 s65, s77, %d\nv_mov_b32 v%d, s65'%(G_,TK+1))
            s.stamp(14)
            e('%s:'%Lp)
            msh=20 if s.o['pattern']=='wg' else 14
            for h in range(NS):
                tk=TK+(h%2 if LA==2 else 0); tkn=TK+((h+1)%2 if LA==2 else 0)
                e('s_cmp_lt_u32 s77, %d\ns_cselect_b32 s34, 0x1000000, 0\ns_cselect_b32 s65, s80, %d\ns_mov_b32 s38, s34\ns_min_u32 s80, s80, s65'%(total,R//C))
                e('s_cmp_eq_u32 s80, 0\ns_cbranch_scc1 %s\ns_sub_u32 s80, s80, 1'%Lfl)
                e('v_mov_b32 v%d, 1\ns_lshr_b32 s65, s77, %d\ns_and_b32 s65, s65, 63\ns_mul_i32 s65, s65, %d'%(tk,sh,C*s.step))
                if PL: e('s_add_u32 s61, s65, s89\ns_and_b32 s65, s77, 15')
                else: e('s_add_u32 s61, s65, %d\ns_and_b32 s65, s77, 3\ns_lshl_b32 s65, s65, 12\ns_add_u32 s61, s61, s65\ns_bfe_u32 s65, s77, 0x40002'%((NI-P)*R*s.step))
                if s.o.get('xm'): s.xorval('s65')
                e('s_lshl_b32 s65, s65, %d\ns_add_u32 s61, s61, s65'%msh)
                if s.o.get('xm'): e('s_xor_b32 s69, s61, s68')
                e('s_mov_b64 exec, 1\nbuffer_atomic_add v%d, v%d, s[40:43], s81 offen sc0 sc1\ns_mov_b64 exec, -1'%(tk,TK+2))
                for sl in range(h*C,h*C+C): s.tile(sl,n+1,rare)
                e('s_waitcnt vmcnt(%d)\nv_readfirstlane_b32 s77, v%d'%(8*C if LA==1 else 16*C+1,tkn))
                if s.o['stamp']: e('s_add_u32 s95, s95, 1')
            e('s_branch %s'%Lp)
        e('%s:'%Lfl)
        e('v_mov_b32 v19, v18\ns_nop 1\nv_permlane32_swap_b32 v18, v19\nv_add_f32 v18, v18, v19\nv_mov_b32 v19, v18\ns_nop 1\nv_permlane16_swap_b32 v18, v19\nv_add_f32 v18, v18, v19')
        e('s_lshl_b32 s65, s96, 2\ns_add_u32 s65, s65, s30\ns_mul_i32 s65, s65, 1040')
        e('v_lshrrev_b32 v19, 5, v0\nv_lshlrev_b32 v19, 9, v19\nv_and_b32 v20, 15, v0\nv_lshl_add_u32 v19, v20, 5, v19\nv_bfe_u32 v20, v0, 4, 1\nv_lshl_add_u32 v19, v20, 4, v19\nv_add_u32 v19, s65, v19')
        e('v_bfe_u32 v20, v0, 3, 1\nv_lshl_add_u32 v20, v20, 3, s65\nv_mov_b32 v22, v17\nv_mov_b32 v23, v18')
        e('ds_write_b128 v19, v[12:15] offset:%d\nds_write_b64 v20, v[22:23] offset:%d'%(L_PART,L_PART+1024))
        Ld=s.lab('done')
        e('s_add_u32 s62, s62, 1\ns_cmp_eq_u32 s62, 3\ns_cbranch_scc1 %s'%Ld)
        e('s_waitcnt lgkmcnt(0)')
        if s.o['stamp']:
            La=s.lab('st'); Lb=s.lab('st')
            e('s_cmp_eq_u32 s62, 1\ns_cbranch_scc1 %s'%La); s.stamp(9); e('s_branch %s\n%s:'%(Lb,La)); s.stamp(8); e('%s:'%Lb)
        if wo_prefetch:
            Lw=s.lab('nowo')
            e('s_cmp_lg_u32 s62, 1\ns_cbranch_scc1 %s'%Lw); s.wo_issue(); e('%s:'%Lw)
        s.q_operand(False)
        e('s_branch %s'%Lr)
        for La,Lb in rare:
            e('%s:'%La)
            e('v_max_f32 v19, v19, v16\nv_mov_b32 v24, v19\ns_nop 1\nv_permlane32_swap_b32 v19, v24\nv_max_f32 v19, v19, v24\nv_mov_b32 v24, v19\ns_nop 1\nv_permlane16_swap_b32 v19, v24\nv_max_f32 v16, v19, v24')
            e('v_mul_f32 v24, s67, v16\nv_sub_f32 v25, v17, v24\nv_exp_f32 v25, v25\nv_mov_b32 v17, v24\ns_nop 0\nv_mul_f32 v18, v18, v25')
            e('v_mov_b32_dpp v26, v25 row_newbcast:0 row_mask:0x3 bank_mask:0xf\nv_mov_b32_dpp v26, v25 row_newbcast:8 row_mask:0xc bank_mask:0xf')
            for r in range(4): e('v_mul_f32 v%d, v%d, v26'%(12+r,12+r))
            e('s_branch %s'%Lb)
        e('%s:'%Ld)
    thr=0; VO=228; Q128=236; VS=244; MA0=245; S2=246; MA1=227; K128=250
    def ph_setup(s):
        e=s.e
        e('s_lshl_b32 s65, s31, 24\ns_add_u32 s32, s16, s65\ns_addc_u32 s33, s17, 0\ns_add_u32 s98, s18, s65\ns_addc_u32 s99, s19, 0')
        e('s_lshl_b32 s65, s31, 25\ns_add_u32 s52, s6, s65\ns_addc_u32 s53, s7, 0\ns_add_u32 s54, s8, s65\ns_addc_u32 s55, s9, 0')
        e('s_add_u32 s56, s52, 0x1000000\ns_addc_u32 s57, s53, 0\ns_add_u32 s58, s54, 0x1000000\ns_addc_u32 s59, s55, 0')
        e('s_mov_b32 s34, 0x1000000\ns_mov_b32 s35, 0x20000\ns_mov_b32 s36, s32\ns_mov_b32 s37, s33\ns_mov_b32 s38, 0x1000000\ns_mov_b32 s39, 0x20000')
        s.step=16384
        e('s_lshl_b32 s60, s64, 20\ns_lshl_b32 s65, s30, 12\ns_add_u32 s60, s60, s65\ns_mov_b32 s61, s60\ns_mov_b32 s76, 32768')
        e('v_and_b32 v1, 3, v0\nv_lshlrev_b32 v1, 10, v1\nv_bfe_u32 v2, v0, 2, 2\nv_lshl_add_u32 v1, v2, 8, v1\nv_lshrrev_b32 v2, 4, v0\nv_lshl_add_u32 v1, v2, 4, v1')
        k=s.K128
        e('v_lshlrev_b32 v%d, 4, v2\nv_and_b32 v2, 1, v0\nv_lshl_add_u32 v%d, v2, 6, v%d\nv_bfe_u32 v2, v0, 1, 1\nv_lshl_add_u32 v%d, v2, 10, v%d\nv_bfe_u32 v2, v0, 2, 2\nv_lshl_add_u32 v%d, v2, 8, v%d'%(k,k,k,k,k,k,k))
        e('v_lshlrev_b32 v2, 4, v0')
        s.ph_offs('K')
    def ph_offs(s,kind):
        e=s.e
        k128=[(s.K128,o) for o in (0,128,2048,2176)]; k64=[(1,64*i) for i in range(4)]; vl=[(2,1024*i) for i in range(4)]
        km=s.o.get('kmix','ab')
        ka={'a':k128,'b':k64}[km[0]]; kb={'a':k128,'b':k64}[km[1]]
        sets={'K':ka+[(r,o+16384) for r,o in kb],'V':vl+[(r,o+16384) for r,o in vl],'P':k64+vl}[kind]
        if s.o.get('split'):
            sets={'K':k128+[(r,o+16384) for r,o in k128],'V':sets,'P':k128+vl}[kind]
            e('s_mov_b32 s68, 0x%x\ns_mov_b32 s96, 0x%x'%(0x0f0f0f0f if kind=='V' else 0x55555555, 0x55555555 if kind=='K' else 0x0f0f0f0f))
        for i,(r,o) in enumerate(sets):
            e('v_add_u32 v%d, %d, v%d'%(s.VO+i,o,r) if o else 'v_mov_b32 v%d, v%d'%(s.VO+i,r))
    def nops(s,sl,half):
        sp=s.o.get('split')
        return 8 if (sp and sp[(sl*2+half)%len(sp)]=='1') else 4
    def newer(s,sl,half):
        R=s.o['R']; seq=[(a,h) for a in range(R) for h in range(2)]; k=seq.index((sl,half))
        return sum(s.nops(*seq[(k+j)%(2*R)]) for j in range(1,2*R))
    def ph_issue(s,sl,half):
        if s.nops(sl,half)==8:
            m=(68,69) if half==0 else (96,97)
            for p in range(2):
                s.e('s_mov_b32 exec_lo, s%d\ns_mov_b32 exec_hi, s%d'%(m[0],m[0]) if p==0 else 's_not_b64 exec, exec')
                for i in range(4):
                    r=s.RING+sl*32+half*16+4*i
                    s.e('buffer_load_dwordx4 v[%d:%d], v%d, %s, s61 offen nt'%(r,r+3,s.VO+half*4+i,'s[36:39]' if half else 's[32:35]'))
            s.e('s_mov_b64 exec, -1')
            if half: s.e('s_add_u32 s61, s61, s76')
            return
        for i in range(4):
            r=s.RING+sl*32+half*16+4*i
            if s.thr and i%s.o.get('burst',4)==0: s.e('s_waitcnt vmcnt(%d)'%s.thr)
            s.e('buffer_load_dwordx4 v[%d:%d], v%d, %s, s61 offen nt'%(r,r+3,s.VO+half*4+i,'s[36:39]' if half else 's[32:35]'))
        if half: s.e('s_add_u32 s61, s61, s76')
    def ph_switch(s,kind,a,b,start):
        e=s.e
        e('s_mov_b32 s32, s%d\ns_mov_b32 s33, s%d\ns_mov_b32 s36, s%d\ns_mov_b32 s37, s%d'%(a,a+1,b,b+1))
        e('s_add_u32 s61, s60, %d\ns_mov_b32 s76, %d'%(start,16384 if kind=='P' else 32768))
        s.ph_offs(kind)
    def ph_q(s,ty):
        e=s.e
        e('v_lshrrev_b32 v24, 4, v0\nv_lshlrev_b32 v24, 4, v24')
        if ty==0: e('v_bfe_u32 v19, v0, 3, 1\nv_lshl_add_u32 v24, v19, 8, v24')
        e('v_and_b32 v19, 1, v0\nv_lshl_add_u32 v25, v19, 6, v24')
        o=L_Q+(0 if ty==0 else (ty+1)*256)
        for i in range(0 if s.o.get('split') else 4): e('ds_read_b128 v[%d:%d], v24 offset:%d'%(40+4*i,43+4*i,o+64*i))
        for c in range(2): e('ds_read_b128 v[%d:%d], v25 offset:%d'%(s.Q128+4*c,s.Q128+4*c+3,o+128*c))
        e('v_mov_b32 v16, 0xff800000')
        s.ph_saddr(ty)
        e('s_waitcnt lgkmcnt(0)')
    def ph_saddr(s,ty):
        e=s.e
        e('s_lshl_b32 s65, s30, 13\ns_add_u32 s65, s65, %d\nv_lshrrev_b32 v19, 4, v0\nv_lshl_add_u32 v%d, v19, 4, s65'%(L_S+(64 if ty==2 else 0),s.VS))
        if ty==0: e('v_bfe_u32 v19, v0, 3, 1\nv_lshl_add_u32 v%d, v19, 6, v%d'%(s.VS,s.VS))
    def ph_loop(s,niter,body,switch):
        e=s.e; L=s.lab('pl'); Ln=s.lab('pn')
        e('s_mov_b32 s63, %d\n%s:'%(niter,L))
        if switch:
            e('s_cmp_lg_u32 s63, 1\ns_cbranch_scc1 %s'%Ln); switch(); e('%s:'%Ln)
        for sl in range(s.o['R']): body(sl)
        e('v_add_u32 v%d, %d, v%d\ns_sub_u32 s63, s63, 1\ns_cmp_lg_u32 s63, 0\ns_cbranch_scc1 %s'%(s.VS,256*s.o['R'],s.VS,L))
    def ph_kstep(s,sl):
        e=s.e; km='aa' if s.o.get('split') else s.o.get('kmix','ab')
        for half in range(2):
            kb=s.RING+sl*32+16*half; S=8 if half==0 else 32
            e('s_waitcnt vmcnt(%d)'%s.newer(sl,half))
            if km[half]=='a':
                for c in range(2):
                    for rb in range(2):
                        d=24+4*rb; r=kb+4*(rb*2+c)
                        e('v_mfma_f32_16x16x32_bf16 v[%d:%d], v[%d:%d], v[%d:%d], %s'%(d,d+3,r,r+3,s.Q128+4*c,s.Q128+4*c+3,'0' if c==0 else 'v[%d:%d]'%(d,d+3)))
                s.thr=s.o.get('kthr',0)
                s.ph_issue(sl,half); e('s_nop 3')
                for r in range(4): e('v_add_f32_dpp v%d, v%d, v%d quad_perm:[1,0,3,2] row_mask:0xf bank_mask:0xf'%(S+r,25+2*r,24+2*r))
            else:
                for i in range(4):
                    e('v_mfma_f32_16x16x32_bf16 v[%d:%d], v[%d:%d], v[%d:%d], %s'%(S,S+3,kb+4*i,kb+4*i+3,40+4*i,43+4*i,'0' if i==0 else 'v[%d:%d]'%(S,S+3)))
                s.thr=s.o.get('kthr',0)
                s.ph_issue(sl,half); e('s_nop 3')
            s.rnd(S)
            e('v_max3_f32 v16, v%d, v%d, v16\nv_max3_f32 v16, v%d, v%d, v16'%(S,S+1,S+2,S+3))
            e('s_mov_b64 exec, s[70:71]\nds_write_b128 v%d, v[%d:%d] offset:%d\ns_mov_b64 exec, -1'%(s.VS,S,S+3,(sl*2+half)*128))
    def rnd(s,S):
        if not s.o.get('mimic',1): return
        e=s.e
        for ps in range(2):
            e('v_cvt_pk_bf16_f32 v36, v%d, v%d\nv_cvt_pk_bf16_f32 v37, v%d, v%d'%(S,S+1,S+2,S+3))
            e('v_lshlrev_b32 v%d, 16, v36\nv_and_b32 v%d, s69, v36\nv_lshlrev_b32 v%d, 16, v37\nv_and_b32 v%d, s69, v37'%(S,S+1,S+2,S+3))
            if ps==0:
                for r in range(4): e('v_mul_f32 v%d, s62, v%d'%(S+r,S+r))
    def ph_kend(s,dst):
        e=s.e
        e('v_mov_b32 v19, v16\ns_nop 1\nv_permlane32_swap_b32 v16, v19\nv_max_f32 v16, v16, v19\nv_mov_b32 v19, v16\ns_nop 1\nv_permlane16_swap_b32 v16, v19\nv_max_f32 v16, v16, v19\ns_nop 1')
        e('v_mov_b32_dpp v%d, v16 row_newbcast:0 row_mask:0xf bank_mask:0x3\nv_mov_b32_dpp v%d, v16 row_newbcast:8 row_mask:0xf bank_mask:0xc'%(dst,dst))
    def ph_vstart(s,ty,src):
        e=s.e
        e('v_mov_b32 v16, v%d\nv_mul_f32 v17, s67, v%d\nv_mov_b32 v18, 0\nv_mov_b32 v12, 0\nv_mov_b32 v13, 0\nv_mov_b32 v14, 0\nv_mov_b32 v15, 0'%(src,src))
        s.ph_saddr(ty)
    def ph_vstep(s,sl):
        e=s.e; n=4+8*(s.o['R']-1)
        e('ds_read_b128 v[8:11], v%d offset:%d\nds_read_b128 v[%d:%d], v%d offset:%d'%(s.VS,sl*256,s.S2,s.S2+3,s.VS,sl*256+128))
        for half in range(2):
            vb=s.RING+sl*32+16*half; S=8 if half==0 else s.S2
            e('s_waitcnt lgkmcnt(%d)'%(1-half))
            for r in range(4): e('v_fma_f32 v%d, v%d, s67, -v17'%(20+r,S+r))
            for r in range(4): e('v_exp_f32 v%d, v%d'%(20+r,20+r))
            for r in range(4): e('v_add_f32 v18, v18, v%d\nv_cvt_pk_bf16_f32 v%d, v%d, v%d'%(20+r,20+r,20+r,20+r))
            for r in range(4):
                for q in range(4): e('v_and_b32 v%d, v%d, v%d'%(24+4*r+q,20+r,4+q))
            e('s_waitcnt vmcnt(%d)\ns_nop 0'%s.newer(sl,half))
            for r in range(4):
                e('v_mfma_f32_16x16x32_bf16 v[12:15], v[%d:%d], v[%d:%d], v[12:15]'%(24+4*r,27+4*r,vb+4*r,vb+4*r+3))
            s.thr=s.o.get('vthr',0)
            s.ph_issue(sl,half)
    def flush(s,ty):
        e=s.e
        e('v_mov_b32 v19, v18\ns_nop 1\nv_permlane32_swap_b32 v18, v19\nv_add_f32 v18, v18, v19\nv_mov_b32 v19, v18\ns_nop 1\nv_permlane16_swap_b32 v18, v19\nv_add_f32 v18, v18, v19')
        e('s_mul_i32 s65, s30, 1040\ns_add_u32 s65, s65, %d'%(ty*4160))
        e('v_lshrrev_b32 v19, 5, v0\nv_lshlrev_b32 v19, 9, v19\nv_and_b32 v20, 15, v0\nv_lshl_add_u32 v19, v20, 5, v19\nv_bfe_u32 v20, v0, 4, 1\nv_lshl_add_u32 v19, v20, 4, v19\nv_add_u32 v19, s65, v19')
        e('v_bfe_u32 v20, v0, 3, 1\nv_lshl_add_u32 v20, v20, 3, s65\nv_mov_b32 v22, v17\nv_mov_b32 v23, v18')
        e('ds_write_b128 v19, v[12:15] offset:%d\nds_write_b64 v20, v[22:23] offset:%d\ns_waitcnt lgkmcnt(0)'%(L_PART,L_PART+1024))
    def att_phased(s):
        e=s.e; R=s.o['R']; C=2; n=4+8*(R-1); T=s.o.get('T',16); assert R==4
        NF=32//R; Ns=(64-T)//2; assert Ns%R==0; NS_=Ns//R
        TK=s.RING+32*R; total=16*T//C; rare=[]; Lfl=s.lab('flush'); Lp=s.lab('dloop')
        def draw(): e('v_mov_b32 v%d, 1\ns_mov_b64 exec, 1\nbuffer_atomic_add v%d, v%d, s[40:43], s81 offen sc0 sc1\ns_mov_b64 exec, -1'%(TK,TK,TK+1))
        def take():
            e('s_waitcnt vmcnt(16)\nv_readfirstlane_b32 s77, v%d'%TK)
            if s.o['stamp']: e('s_add_u32 s95, s95, 1')
        def site(k,inpool):
            e('s_cmp_lt_u32 s77, %d\ns_cselect_b32 s34, 0x1000000, 0\ns_cselect_b32 s65, s80, %d\ns_mov_b32 s38, s34\ns_min_u32 s80, s80, s65'%(total,k))
            if inpool: e('s_cmp_eq_u32 s80, 0\ns_cbranch_scc1 %s\ns_sub_u32 s80, s80, 1'%Lfl)
            e('s_lshr_b32 s65, s77, 4\ns_and_b32 s65, s65, 31\ns_lshl_b32 s65, s65, 15\ns_add_u32 s61, s65, s89\ns_and_b32 s65, s77, 15\ns_lshl_b32 s65, s65, 20\ns_add_u32 s61, s61, s65')
            draw()
        e('s_mov_b32 s67, 0x%x\ns_mov_b32 s70, 0x01010101\ns_mov_b32 s71, 0x01010101\ns_mov_b32 s62, 0x%x\ns_mov_b32 s69, 0xffff0000'%(LOG2E if s.o.get('mimic',1) else CSC,SCALE))
        s.ph_q(0); s.ph_loop(NF,s.ph_kstep,lambda: s.ph_switch('V',98,98,0)); s.ph_kend(s.MA0); s.stamp(8)
        s.ph_vstart(0,s.MA0); s.ph_loop(NF,s.ph_vstep,lambda: s.ph_switch('K',52,52,0)); s.flush(0); s.stamp(9)
        s.wo_issue()
        s.ph_q(1); s.ph_loop(NF,s.ph_kstep,lambda: s.ph_switch('K',56,56,0)); s.ph_kend(s.MA0)
        s.ph_q(2); s.ph_loop(NS_,s.ph_kstep,lambda: s.ph_switch('V',54,54,0)); s.ph_kend(s.MA1); s.stamp(13)
        s.ph_vstart(1,s.MA0); s.ph_loop(NF,s.ph_vstep,lambda: s.ph_switch('V',58,58,0)); s.flush(1)
        s.ph_vstart(2,s.MA1); s.ph_loop(NS_-2,s.ph_vstep,None)
        e('s_lshl_b32 s81, s31, 2\ns_add_u32 s81, s81, s30\ns_lshl_b32 s81, s81, 8\ns_add_u32 s81, s81, %d'%WS_CNT)
        e('s_lshl_b32 s89, s30, 12\ns_add_u32 s89, s89, %d\ns_mov_b32 s80, 0x7fffffff\nv_mov_b32 v%d, 0'%(2*Ns*16384,TK+1))
        s.ph_vstep(0); s.ph_vstep(1); draw(); s.ph_vstep(2); s.ph_vstep(3); take()
        e('v_add_u32 v%d, %d, v%d'%(s.VS,256*R,s.VS))
        s.stamp(14)
        s.ph_switch('P',56,58,0)
        site(0,False); s.ph_vstep(0); s.ph_vstep(1); take()
        site(1,False); s.ph_vstep(2); s.ph_vstep(3); take()
        s.issueK=lambda sl: s.ph_issue(sl,0); s.issueV=lambda sl: s.ph_issue(sl,1)
        s.thr=s.o.get('pthr',0)
        e('%s:'%Lp)
        for h in range(2):
            site(2,True)
            for sl in range(h*C,h*C+C): s.tile(sl,n,rare)
            take()
        e('s_branch %s'%Lp)
        s.rare(rare)
        e('%s:'%Lfl); t0=len(s.t); s.flush(2)
        return Lfl,t0
    def rare(s,rare):
        e=s.e
        for La,Lb in rare:
            e('%s:'%La)
            e('v_max_f32 v19, v19, v16\nv_mov_b32 v24, v19\ns_nop 1\nv_permlane32_swap_b32 v19, v24\nv_max_f32 v19, v19, v24\nv_mov_b32 v24, v19\ns_nop 1\nv_permlane16_swap_b32 v19, v24\nv_max_f32 v16, v19, v24')
            e('v_mul_f32 v24, s67, v16\nv_sub_f32 v25, v17, v24\nv_exp_f32 v25, v25\nv_mov_b32 v17, v24\ns_nop 0\nv_mul_f32 v18, v18, v25')
            e('v_mov_b32_dpp v26, v25 row_newbcast:0 row_mask:0x3 bank_mask:0xf\nv_mov_b32_dpp v26, v25 row_newbcast:8 row_mask:0xc bank_mask:0xf')
            for r in range(4): e('v_mul_f32 v%d, v%d, v26'%(12+r,12+r))
            e('s_branch %s'%Lb)
    def wg_combine(s):
        e=s.e
        e('s_sub_u32 s65, s30, 1\ns_max_i32 s65, s65, 0\ns_mul_i32 s65, s65, 4160\ns_cmp_eq_u32 s30, 1\ns_cselect_b32 s66, 512, 0\ns_cselect_b32 s68, 8, 0\ns_add_u32 s66, s66, s65\ns_add_u32 s68, s68, s65')
        e('v_lshl_add_u32 v19, v0, 3, s66\nv_mov_b32 v20, s68')
        for i in range(4):
            e('ds_read_b64 v[%d:%d], v19 offset:%d\nds_read_b64 v[%d:%d], v20 offset:%d'%(24+2*i,25+2*i,L_PART+i*1040,32+2*i,33+2*i,L_PART+1024+i*1040))
        e('s_lshl_b32 s65, s31, 2\ns_add_u32 s65, s65, s30\ns_lshl_b32 s65, s65, 4\ns_add_u32 s65, s65, s64')
        e('s_lshl_b32 s66, s65, 10\ns_add_u32 s66, s66, %d\ns_lshl_b32 s65, s65, 4\ns_add_u32 s65, s65, %d'%(WS_PO,WS_PML))
        e('v_lshlrev_b32 v19, 4, v0\nv_mov_b32 v20, 0\nv_mov_b32 v13, s73\nv_mov_b32 v15, s73\nv_mov_b32 v41, s73\nv_mov_b32 v43, s73')
        e('s_waitcnt lgkmcnt(0)')
        e('v_max3_f32 v40, v32, v34, v36\nv_max_f32 v40, v40, v38')
        for i in range(4): e('v_sub_f32 v%d, v%d, v40'%(32+2*i,32+2*i))
        for i in range(4): e('v_exp_f32 v%d, v%d'%(32+2*i,32+2*i))
        e('s_nop 0\nv_mul_f32 v12, v32, v24\nv_mul_f32 v14, v32, v25\nv_mul_f32 v42, v32, v33')
        for i in range(1,4): e('v_fmac_f32 v12, v%d, v%d\nv_fmac_f32 v14, v%d, v%d\nv_fmac_f32 v42, v%d, v%d'%(32+2*i,24+2*i,32+2*i,25+2*i,32+2*i,33+2*i))
        e('buffer_store_dwordx4 v[12:15], v19, s[40:43], s66 offen sc1')
        e('s_mov_b64 exec, 1\nbuffer_store_dwordx4 v[40:43], v20, s[40:43], s65 offen sc1\ns_mov_b64 exec, -1')
    def tagpoll(s,loads,tagregs,tmp,pipe=True):
        e=s.e; L=s.lab('poll'); Lx=s.lab('pollx')
        if s.o.get('pp') and pipe:
            X=[l.replace('v[24:27]','v[48:51]').replace('v[28:31]','v[52:55]') for l in loads]
            Y=[l.replace('v[24:27]','v[120:123]').replace('v[28:31]','v[124:127]') for l in loads]
            def chk(d,lab):
                e('v_xor_b32 v%d, s73, v%d'%(tmp,tagregs[0]+d))
                for t in tagregs[1:]: e('v_xor_b32 v%d, s73, v%d\nv_or_b32 v%d, v%d, v%d'%(tmp+1,t+d,tmp,tmp,tmp+1))
                for r in (0,2,4,6): e('v_mov_b32 v%d, v%d'%(24+r,24+d+r))
                e('v_cmp_ne_u32 vcc, 0, v%d\ns_cbranch_vccz %s'%(tmp,lab))
            e('s_mov_b32 s72, 0x200000')
            for l in X: e(l)
            e('s_sleep %d\n%s:'%(s.o['pp'],L))
            for l in Y: e(l)
            e('s_waitcnt vmcnt(2)'); chk(24,Lx)
            for l in X: e(l)
            e('s_waitcnt vmcnt(2)'); chk(96,Lx)
            e('s_sub_u32 s72, s72, 1\ns_cmp_lg_u32 s72, 0\ns_cbranch_scc1 %s\n%s:'%(L,Lx))
            return
        e('s_mov_b32 s72, 0x200000\n%s:'%L)
        for l in loads: e(l)
        e('s_waitcnt vmcnt(0)')
        e('v_xor_b32 v%d, s73, v%d'%(tmp,tagregs[0]))
        for t in tagregs[1:]: e('v_xor_b32 v%d, s73, v%d\nv_or_b32 v%d, v%d, v%d'%(tmp+1,t,tmp,tmp,tmp+1))
        e('v_cmp_ne_u32 vcc, 0, v%d\ns_cbranch_vccz %s'%(tmp,Lx))
        if s.o.get('sleep'): e('s_sleep %d'%s.o['sleep'])
        e('s_sub_u32 s72, s72, 1\ns_cmp_lg_u32 s72, 0\ns_cbranch_scc1 %s\n%s:'%(L,Lx))
    def team_loads(s):
        e=s.e
        e('s_lshr_b32 s65, s64, 2\ns_lshl_b32 s66, s31, 2\ns_add_u32 s65, s65, s66')
        e('s_lshl_b32 s66, s65, 14\ns_and_b32 s68, s64, 3\ns_lshl_b32 s68, s68, 8\ns_add_u32 s66, s66, s68\ns_lshl_b32 s68, s30, 6\ns_add_u32 s66, s66, s68\ns_add_u32 s66, s66, %d'%WS_PO)
        e('s_lshl_b32 s65, s65, 8\ns_add_u32 s65, s65, %d'%WS_PML)
        e('v_and_b32 v19, 15, v0\nv_lshlrev_b32 v20, 4, v19\nv_lshlrev_b32 v19, 10, v19\nv_lshrrev_b32 v21, 4, v0\nv_lshl_add_u32 v19, v21, 4, v19')
        s.tagpoll(['buffer_load_dwordx4 v[24:27], v20, s[40:43], s65 offen sc1','buffer_load_dwordx4 v[28:31], v19, s[40:43], s66 offen sc1'],[25,27,29,31],32)
    def rowred(s,op,regs):
        for ror in (8,4,2,1):
            s.e('s_nop 1')
            for r in regs: s.e('%s_dpp v%d, v%d, v%d row_ror:%d row_mask:0xf bank_mask:0xf'%(op,r,r,r,ror))
    def team_proj(s):
        e=s.e
        e('v_mov_b32 v21, v24'); s.rowred('v_max_f32',[21])
        e('v_sub_f32 v24, v24, v21\nv_exp_f32 v24, v24\ns_nop 0\nv_mul_f32 v26, v26, v24\nv_mul_f32 v28, v28, v24\nv_mul_f32 v30, v30, v24')
        s.rowred('v_add_f32',[26,28,30])
        e('v_rcp_f32 v26, v26\ns_nop 0\nv_mul_f32 v28, v28, v26\nv_mul_f32 v30, v30, v26\nv_cvt_pk_bf16_f32 v28, v28, v28\nv_cvt_pk_bf16_f32 v30, v30, v30')
        for rg in range(2):
            for q in range(4): e('v_and_b32 v%d, v%d, v%d'%(32+4*rg+q,28+2*rg,4+q))
        e('s_nop 1')
        for rg in range(2):
            for cb in range(5):
                r=56+(rg*5+cb)*4; d=100+4*cb
                e('v_mfma_f32_16x16x32_bf16 v[%d:%d], v[%d:%d], v[%d:%d], %s'%(d,d+3,32+4*rg,35+4*rg,r,r+3,'0' if rg==0 else 'v[%d:%d]'%(d,d+3)))
        e('s_mul_i32 s65, s30, 2560\nv_and_b32 v19, 15, v0\nv_lshl_add_u32 v19, v19, 5, s65\nv_bfe_u32 v20, v0, 4, 1\nv_lshl_add_u32 v19, v20, 4, v19')
        e('s_nop 4\ns_mov_b32 exec_hi, 0')
        for cb in range(5): e('ds_write_b128 v19, v[%d:%d] offset:%d'%(100+4*cb,103+4*cb,L_YL+cb*512))
        e('s_mov_b64 exec, -1')
        e('s_cmp_lt_u32 s64, 8\ns_cselect_b32 s69, 1, 0\ns_mul_i32 s65, s69, %d\ns_and_b32 s66, s64, 7\ns_lshl_b32 s68, s31, 3\ns_add_u32 s66, s66, s68\ns_lshl_b32 s66, s66, 6\ns_add_u32 s65, s65, s66\ns_add_u32 s65, s65, %d'%(72*8192,WS_Y))
        e('v_lshlrev_b32 v19, 4, v3\nv_lshrrev_b32 v20, 1, v3\nv_lshlrev_b32 v20, 13, v20\nv_and_b32 v21, 1, v3\nv_lshl_add_u32 v20, v21, 5, v20')
        e('v_mov_b32 v41, s73\nv_mov_b32 v43, s73\nv_mov_b32 v45, s73\nv_mov_b32 v47, s73')
        e('s_waitcnt lgkmcnt(0)\ns_barrier')
        Ls=s.lab('noy')
        e('v_cmp_gt_u32 vcc, 144, v3\ns_and_saveexec_b64 s[70:71], vcc\ns_cbranch_execz %s'%Ls)
        for w in range(4): e('ds_read_b128 v[%d:%d], v19 offset:%d'%(24+4*w,27+4*w,L_YL+w*2560))
        e('s_waitcnt lgkmcnt(0)')
        for r in range(4): e('v_add_f32 v%d, v%d, v%d\nv_add_f32 v%d, v%d, v%d'%(24+r,24+r,28+r,32+r,32+r,36+r))
        for r in range(4): e('v_add_f32 v%d, v%d, v%d'%(40+2*r,24+r,32+r))
        e('buffer_store_dwordx4 v[40:43], v20, s[40:43], s65 offen sc1\nbuffer_store_dwordx4 v[44:47], v20, s[40:43], s65 offen offset:16 sc1')
        e('%s:\ns_mov_b64 exec, s[70:71]'%Ls)
    def final(s):
        e=s.e
        e('s_cmp_ge_u32 s3, 144\ns_cbranch_scc1 %s'%s.end)
        e('s_lshl_b32 s65, s3, 13\ns_add_u32 s65, s65, %d\ns_add_u32 s66, s65, 4096\nv_lshlrev_b32 v19, 4, v3'%WS_Y)
        e('s_mov_b32 s44, s24\ns_mov_b32 s45, s25\ns_mov_b32 s46, 2304\ns_mov_b32 s47, 0x20000')
        e('s_lshl_b32 s68, s30, 5\nv_and_b32 v21, 3, v0\nv_lshl_add_u32 v21, v21, 3, s68')
        s.tagpoll(['buffer_load_dwordx4 v[24:27], v19, s[40:43], s65 offen sc1','buffer_load_dwordx4 v[28:31], v19, s[40:43], s66 offen sc1'],[25,27,29,31],32)
        if s.o['stamp']: e('s_sub_u32 s95, 0x200000, s72'); s.stamp(12)
        e('v_add_f32 v24, v24, v28\nv_add_f32 v25, v26, v30')
        for ror in (4,8):
            e('s_nop 1')
            for r in range(2): e('v_add_f32_dpp v%d, v%d, v%d row_ror:%d row_mask:0xf bank_mask:0xf'%(24+r,24+r,24+r,ror))
        for sw in ('32','16'):
            for r in range(2): e('v_mov_b32 v%d, v%d'%(28+r,24+r))
            e('s_nop 1')
            for r in range(2): e('v_permlane%s_swap_b32 v%d, v%d'%(sw,24+r,28+r))
            for r in range(2): e('v_add_f32 v%d, v%d, v%d'%(24+r,24+r,28+r))
        e('s_mov_b64 exec, 0xf\nds_write_b64 v21, v[24:25] offset:%d\ns_mov_b64 exec, -1'%L_FL)
        e('s_waitcnt lgkmcnt(0)\ns_barrier')
        e('s_cmp_lg_u32 s30, 0\ns_cbranch_scc1 %s'%s.end)
        e('s_mov_b64 exec, 0xff\nv_lshlrev_b32 v19, 2, v0')
        for w in range(4): e('ds_read_b32 v%d, v19 offset:%d'%(24+w,L_FL+32*w))
        e('s_lshl_b32 s65, s3, 4\nv_lshlrev_b32 v19, 1, v0\ns_waitcnt lgkmcnt(0)')
        e('v_add_f32 v24, v24, v25\nv_add_f32 v26, v26, v27\nv_add_f32 v24, v24, v26\nv_cvt_pk_bf16_f32 v24, v24, v24')
        e('buffer_store_short v24, v19, s[44:47], s65 offen')
        L=s.lab('noep')
        e('s_cmp_lg_u32 s3, 0\ns_cbranch_scc1 %s'%L)
        e('s_mov_b64 exec, 1\nv_mov_b32 v19, %d\nv_mov_b32 v20, s73\nbuffer_store_dword v20, v19, s[40:43], 0 offen sc1\n%s:'%(WS_E,L))
    def dryify(s,t0):
        lines='\n'.join(s.t[t0:]).split('\n'); out=[]; i=0
        while i<len(lines):
            l=lines[i]
            if l.startswith('buffer_') or l=='s_barrier':
                j=i
                while j<len(lines) and (lines[j].startswith('buffer_') or lines[j]=='s_barrier'): j+=1
                L=s.lab('skip'); out.append('s_cbranch_execz %s'%L); out+=lines[i:j]; out.append('%s:'%L); i=j; continue
            m=re.match(r's_mov_b64 exec, (-1|1|0x[0-9a-f]+)$',l)
            if m: l='s_and_b64 exec, s[82:83], %s'%m.group(1)
            if l.startswith('s_and_saveexec_b64') and lines[i+1].startswith('s_cbranch_execz'):
                out.append(l); tgt=lines[i+1].split()[1]; L=s.lab('fall')
                out.append('s_cmp_eq_u32 s82, 0\ns_cbranch_scc1 %s\ns_cbranch_execz %s\n%s:'%(L,tgt,L)); i+=2; continue
            out.append(l); i+=1
        s.t[t0:]=out
    def stamp(s,slot,kidx=0,first=False,cnt=False):
        if not s.o['stamp']: return
        e=s.e
        e('s_memrealtime s[92:93]\ns_getreg_b32 s94, hwreg(HW_REG_XCC_ID)\ns_waitcnt lgkmcnt(0)')
        e('s_add_u32 s84, s28, 0x60000000\ns_addc_u32 s85, s29, 0\ns_mov_b32 s86, 0x1000000\ns_mov_b32 s87, 0x20000')
        e('s_lshl_b32 s88, s2, 3\ns_add_u32 s88, s88, s30\ns_lshl_b32 s88, s88, 6\ns_add_u32 s88, s88, %d'%(slot*4))
        e('s_mov_b64 s[78:79], exec\ns_mov_b64 exec, 1\nv_mov_b32 v252, 0\nv_mov_b32 v253, s92')
        e('buffer_store_dword v253, v252, s[84:87], s88 offen')
        if first: e('v_mov_b32 v254, s90\nv_mov_b32 v255, s94\nbuffer_store_dwordx2 v[254:255], v252, s[84:87], s88 offen offset:4')
        if cnt: e('v_mov_b32 v253, s95\nbuffer_store_dword v253, v252, s[84:87], s88 offen offset:4')
        if slot==4: e('v_mov_b32 v253, s95\nbuffer_store_dword v253, v252, s[84:87], s88 offen offset:44')
        e('s_mov_b64 exec, s[78:79]')
    def fused(s):
        e=s.e; R=s.o['R']; s.o['perlane']=1; s.o.setdefault('LA',1); s.step=16384
        k=s.px+NAME+'_kernel' if not s.px else s.px+'fused_kernel'
        e('.text\n.globl %s\n.p2align 8\n.type %s,@function\n%s:'%(k,k,k))
        s.end=s.lab('end'); Lsvc=s.lab('svc'); Lq=s.lab('qc'); Lsv2=s.lab('svc2')
        e('s_cmp_ge_u32 s2, 256\ns_cbranch_scc1 %s'%s.end)
        e('s_load_dwordx16 s[4:19], s[0:1], 0\ns_load_dwordx8 s[20:27], s[0:1], 64\ns_load_dwordx2 s[28:29], s[0:1], 96')
        if s.o['stamp']: e('s_memrealtime s[90:91]\ns_mov_b32 s95, 0')
        e('v_lshrrev_b32 v1, 6, v0\nv_mov_b32 v3, v0\nv_and_b32 v0, 63, v0\nv_readfirstlane_b32 s30, v1')
        e('s_mov_b32 s3, s2\ns_lshr_b32 s31, s2, 4\ns_and_b32 s64, s2, 15\ns_mov_b32 s43, 0x20000\ns_mov_b32 s42, %d\ns_mov_b64 s[82:83], -1'%WS_SIZE)
        e('s_cmp_eq_u32 s30, 4\ns_cbranch_scc1 %s'%Lsvc)
        e('v_lshrrev_b32 v4, 2, v3\nv_and_b32 v5, 3, v3\nv_lshlrev_b32 v5, 4, v5\nv_lshl_add_u32 v5, v4, 13, v5\nv_lshlrev_b32 v4, 1, v4')
        e('s_and_b32 s65, s64, 3\ns_lshl_b32 s65, s65, 7\ns_lshr_b32 s66, s64, 3\ns_lshl_b32 s66, s66, 6\ns_add_u32 s65, s65, s66\ns_lshl_b32 s66, s31, 9\ns_add_u32 s65, s65, s66')
        e('s_mov_b32 s46, %d\ns_mov_b32 s47, s43\ns_mov_b32 s50, 1152\ns_mov_b32 s51, s43'%(576*8192))
        e('s_mov_b32 s34, 0x1000000\ns_mov_b32 s35, s43\ns_mov_b32 s38, s34\ns_mov_b32 s39, s43\ns_mov_b32 s76, 32768')
        e('s_lshl_b32 s60, s64, 20\ns_lshl_b32 s61, s30, 12\ns_add_u32 s60, s60, s61\ns_mov_b32 s61, s60\ns_lshl_b32 s62, s31, 24')
        kk=s.K128
        e('v_lshrrev_b32 v2, 4, v0\nv_lshlrev_b32 v%d, 4, v2\nv_bfe_u32 v2, v0, 2, 2\nv_lshl_add_u32 v%d, v2, 8, v%d\nv_and_b32 v2, 3, v0\nv_lshl_add_u32 v1, v2, 10, v%d'%(kk,kk,kk,kk))
        e('v_and_b32 v2, 1, v0\nv_lshl_add_u32 v%d, v2, 6, v%d\nv_bfe_u32 v2, v0, 1, 1\nv_lshl_add_u32 v%d, v2, 10, v%d\nv_lshlrev_b32 v2, 4, v0'%(kk,kk,kk,kk))
        s.ph_offs('K')
        e('s_and_b32 s66, s64, 4\ns_cmp_eq_u32 s66, 0\ns_waitcnt lgkmcnt(0)')
        e('s_cselect_b32 s44, s20, s10\ns_cselect_b32 s45, s21, s11\ns_cselect_b32 s48, s14, s4\ns_cselect_b32 s49, s15, s5')
        e('s_add_u32 s32, s16, s62\ns_addc_u32 s33, s17, 0\ns_mov_b32 s36, s32\ns_mov_b32 s37, s33')
        halves=[]
        for sl in range(R): halves+=[lambda sl=sl: s.ph_issue(sl,0), lambda sl=sl: s.ph_issue(sl,1)]
        pre0,pre,hk,thr=s.o.get('fill',(0,1,(4,8),4))
        for h in halves[:pre0]: h()
        wb,xb,ab,tb=56,40,24,20
        for i in range(9):
            e('buffer_load_ushort v%d, v4, s[48:51], 0 offen offset:%d'%(xb+i,i*128))
            e('buffer_load_dwordx4 v[%d:%d], v5, s[44:47], s65 offen nt'%(wb+4*i,wb+4*i+3))
            if i<8: e('s_add_u32 s65, s65, %d'%(64*8192))
        for h in halves[pre0:pre0+pre]: h()
        if s.o.get('qst'): e('s_memrealtime s[100:101]')
        e('s_mov_b32 s40, s28\ns_mov_b32 s41, s29\ns_add_u32 s74, s28, %d\ns_addc_u32 s75, s29, 0\ns_load_dword s73, s[74:75], 0'%WS_E)
        e('s_add_u32 s98, s18, s62\ns_addc_u32 s99, s19, 0\ns_lshl_b32 s62, s62, 1')
        e('s_add_u32 s52, s6, s62\ns_addc_u32 s53, s7, 0\ns_add_u32 s54, s8, s62\ns_addc_u32 s55, s9, 0')
        e('s_add_u32 s56, s52, s34\ns_addc_u32 s57, s53, 0\ns_add_u32 s58, s54, s34\ns_addc_u32 s59, s55, 0')
        e('%s:\ns_mov_b32 s66, 0xffff0000'%Lq); t0=len(s.t)
        newer=4*pre; nh=pre0+pre
        for i in range(9):
            e('s_waitcnt vmcnt(%d)'%(newer+2*(8-i)))
            if s.o.get('qst') and i in (0,8): e('s_memrealtime s[%d:%d]'%((84,85) if i==0 else (86,87)))
            if i in hk: halves[nh](); nh+=1; newer+=4
            e('v_lshlrev_b32 v%d, 16, v%d'%(xb+i,xb+i))
            for d in range(4):
                e('v_lshlrev_b32 v%d, 16, v%d\nv_and_b32 v%d, s66, v%d'%(tb,wb+4*i+d,tb+1,wb+4*i+d))
                op='v_mul_f32' if i==0 else 'v_fmac_f32'
                e('%s v%d, v%d, v%d\n%s v%d, v%d, v%d'%(op,ab+2*d,xb+i,tb,op,ab+2*d+1,xb+i,tb+1))
        e('v_lshrrev_b32 v%d, 4, v3\nv_and_b32 v%d, 3, v3\nv_lshlrev_b32 v%d, 5, v%d\nv_lshl_add_u32 v%d, v%d, 7, v%d'%(tb,tb+1,tb+1,tb+1,tb,tb,tb+1))
        for ror in (4,8):
            for j in range(8): e('v_add_f32_dpp v%d, v%d, v%d row_ror:%d row_mask:0xf bank_mask:0xf'%(ab+j,ab+j,ab+j,ror))
        e('ds_write_b128 v%d, v[%d:%d] offset:%d\nds_write_b128 v%d, v[%d:%d] offset:%d'%(tb,ab,ab+3,L_QR,tb,ab+4,ab+7,L_QR+16))
        e('s_waitcnt lgkmcnt(0)')
        if s.o.get('qdry',1): s.dryify(t0); e('s_cbranch_execz %s'%Lsv2)
        e('s_barrier')
        e('s_add_u32 s73, s73, 0x%x'%TAGINC)
        if s.o.get('qst'): e('s_mov_b32 s62, s84\ns_mov_b32 s63, s86')
        s.stamp(0,first=True)
        if s.o.get('qst'):
            e('s_mov_b64 exec, 1\nv_mov_b32 v253, s100\nv_mov_b32 v254, s62\nv_mov_b32 v255, s63\nbuffer_store_dword v253, v252, s[84:87], s88 offen offset:20\nbuffer_store_dwordx2 v[254:255], v252, s[84:87], s88 offen offset:24\ns_mov_b64 exec, -1')
        for n_,h in enumerate(halves[nh:]):
            e('s_waitcnt vmcnt(%d)'%thr); h()
            if n_==0: s.masks()
        s.stamp(11)
        e('s_barrier')
        s.stamp(3)
        Ltail,t0=s.att_phased(); s.stamp(4)
        e('s_barrier')
        q=s.o.get('qst')
        s.wg_combine(); (q or s.stamp(5))
        s.team_loads(); (q or s.stamp(6))
        s.team_proj(); (q or s.stamp(7)); s.final(); s.stamp(10)
        s.dryify(t0)
        e('s_endpgm')
        e('%s:\ns_setprio 3\ns_waitcnt lgkmcnt(0)'%Lsvc)
        e('s_mov_b32 s40, s28\ns_mov_b32 s41, s29\ns_add_u32 s74, s28, %d\ns_addc_u32 s75, s29, 0\ns_load_dword s73, s[74:75], 0'%WS_E)
        if s.o.get('touch'):
            e('s_and_b32 s66, s64, 4\ns_cmp_eq_u32 s66, 0\ns_cselect_b32 s44, s20, s10\ns_cselect_b32 s45, s21, s11\ns_mov_b32 s46, %d\ns_mov_b32 s47, s43'%(576*8192))
            e('s_lshl_b32 s62, s31, 24\ns_add_u32 s32, s16, s62\ns_addc_u32 s33, s17, 0\ns_mov_b32 s34, 0x1000000\ns_mov_b32 s35, s43\ns_lshl_b32 s61, s64, 20')
            e('v_lshlrev_b32 v19, 21, v0\nv_mov_b32 v20, 0\ns_mov_b64 exec, 1')
            if 'k' in s.o['touch']: e('buffer_load_dword v22, v20, s[32:35], s61 offen nt')
            if 'w' in s.o['touch']: e('s_mov_b64 exec, 0x6\nbuffer_load_dword v23, v19, s[44:47], 0 offen nt')
            e('s_mov_b64 exec, -1')
        L=s.lab('notlead')
        e('s_cmp_lg_u32 s64, 0\ns_cbranch_scc1 %s'%L)
        e('s_lshl_b32 s65, s31, 10\ns_add_u32 s65, s65, %d\nv_lshlrev_b32 v19, 8, v0\nv_mov_b32 v20, 0\ns_mov_b64 exec, 0xf'%(WS_CNT))
        e('buffer_store_dword v20, v19, s[40:43], s65 offen sc1\ns_mov_b64 exec, -1\n%s:'%L)
        if s.o.get('qdry',1):
            for r in range(8): e('v_mov_b32 v%d, 0'%(s.VO+r))
            e('s_mov_b64 s[32:33], s[28:29]\ns_mov_b32 s34, 0\ns_mov_b32 s35, s43\ns_mov_b64 s[36:37], s[28:29]\ns_mov_b32 s38, 0\ns_mov_b32 s39, s43\ns_mov_b32 s61, 0\ns_mov_b32 s76, 0')
            e('s_mov_b64 s[82:83], 0\ns_mov_b64 exec, 0\ns_branch %s\n%s:\ns_mov_b64 exec, -1'%(Lq,Lsv2))
        e('s_waitcnt vmcnt(0) lgkmcnt(0)\ns_add_u32 s73, s73, 0x%x'%TAGINC)
        e('s_barrier')
        s.q_finish(24,'sc1')
        s.stamp(12)
        e('s_lshl_b32 s65, s31, 11\nv_lshlrev_b32 v19, 5, v0\nv_lshlrev_b32 v21, 4, v0')
        s.tagpoll(['buffer_load_dwordx4 v[24:27], v19, s[40:43], s65 offen sc1','buffer_load_dwordx4 v[28:31], v19, s[40:43], s65 offen offset:16 sc1'],[25,27,29,31],32,pipe=False)
        e('v_mov_b32 v25, v26\nv_mov_b32 v26, v28\nv_mov_b32 v27, v30')
        e('ds_write_b128 v21, v[24:27] offset:%d\ns_waitcnt lgkmcnt(0)'%L_Q)
        e('s_barrier')
        e('s_setprio 0\nv_mov_b32 v19, 0\nv_mov_b32 v20, 0\nv_mov_b32 v21, 0\ns_mov_b64 s[82:83], 0\ns_mov_b64 exec, 0\ns_mov_b32 s3, 0\ns_mov_b32 s30, 0\ns_branch %s'%Ltail)
        nv=251
        s.tail(k,nv)
        launch='; @launch grid=(256,1,1) block=(320,1,1) lds=%d'%LDS_SIZE
        return launch,'%s:256:320:%d'%(k,LDS_SIZE),[(k,nv,320)]
    def build(s):
        launch,spec,ks=getattr(s,s.o['mode'])()
        return HDR+launch+'\n.amdgcn_target "amdgcn-amd-amdhsa--gfx950"\n'+'\n'.join(s.t)+'\n',spec,ks
def write(path,**o):
    t,spec,ks=G(**o).build(); open(path,'w').write(t); return spec,ks
if __name__=='__main__':
    o=eval('dict(%s)'%(sys.argv[2] if len(sys.argv)>2 else ''))
    print(write(sys.argv[1],**o))
```

```python
import sys, re, math, struct
NAME='concat_heads__mha_block_cached__gqa_block_cached__decode'
HDR=open('cdna_kernels/%s.s.ref'%NAME).read().split('; Override launch')[0]

WS_Q=0; WS_PO=0x10000; WS_PML=0x110000; WS_Y=0x120000; WS_E=0x240000; WS_CNT=0x241000; WS_SIZE=0x250000
TAGINC=0x9E3779B1
L_Q=0; L_QR=1024; L_PART=3072; L_YL=16384; L_FL=16384+4*2560; L_S=L_FL+256; LDS_SIZE=L_S+32768
CSC=struct.unpack('<I',struct.pack('<f',math.log2(math.e)/math.sqrt(128)))[0]
LOG2E=struct.unpack('<I',struct.pack('<f',math.log2(math.e)))[0]
SCALE=struct.unpack('<I',struct.pack('<f',128**-0.5))[0]

class G:
    def __init__(s, **o):
        s.o=dict(mode='fused', pattern='wg', kfl='nt', vfl='nt', R=4, stamp=False, xcd=False, T=8, tlb='spo', vthr=5, kthr=5, pthr=6, burst=2); s.o.update(o)
        s.t=[]; s.uid=0; s.px=s.o.get('prefix','')
    def e(s,x): s.t.append(x)
    def lab(s,n): s.uid+=1; return 'L_%s%s_%d'%(s.px,n,s.uid)
    def head(s,name,nwg):
        s.e('.text\n.globl %s\n.p2align 8\n.type %s,@function\n%s:'%(name,name,name))
        s.end=s.lab('end')
        s.e('s_cmp_ge_u32 s2, %d\ns_cbranch_scc1 %s'%(nwg,s.end))
        s.e('s_load_dwordx16 s[4:19], s[0:1], 0\ns_load_dwordx8 s[20:27], s[0:1], 64\ns_load_dwordx2 s[28:29], s[0:1], 96')
        if s.o['stamp']: s.e('s_memrealtime s[90:91]\ns_mov_b32 s95, 0')
        s.e('v_lshrrev_b32 v1, 6, v0\nv_mov_b32 v3, v0\nv_and_b32 v0, 63, v0')
        s.e('v_readfirstlane_b32 s30, v1')
        if s.o['xcd']:
            s.e('s_and_b32 s31, s2, 7\ns_lshr_b32 s3, s2, 3\ns_lshl_b32 s31, s31, 5\ns_add_u32 s3, s3, s31')
        else: s.e('s_mov_b32 s3, s2')
        s.e('s_lshr_b32 s31, s3, 4\ns_and_b32 s64, s3, 15')
        s.e('s_waitcnt lgkmcnt(0)')
        s.e('s_mov_b32 s40, s28\ns_mov_b32 s41, s29\ns_mov_b32 s42, %d\ns_mov_b32 s43, 0x20000'%WS_SIZE)
        s.e('s_add_u32 s74, s28, %d\ns_addc_u32 s75, s29, 0\ns_load_dword s73, s[74:75], 0'%WS_E)
    def tail(s,name,nv,ns=102):
        if s.o['stamp']: nv=256
        s.e('%s:\ns_endpgm'%s.end)
        s.e('.section .rodata,"a"\n.p2align 6\n.amdhsa_kernel %s\n  .amdhsa_next_free_vgpr %d\n  .amdhsa_next_free_sgpr %d\n  .amdhsa_accum_offset %d\n  .amdhsa_group_segment_fixed_size 0\n  .amdhsa_kernarg_size 104\n  .amdhsa_user_sgpr_count 2\n  .amdhsa_user_sgpr_kernarg_segment_ptr 1\n  .amdhsa_system_sgpr_workgroup_id_x 1\n.end_amdhsa_kernel'%(name,nv,ns,(nv+3)//4*4))
    def q_issue(s,wb,xb):
        e=s.e
        if s.o.get('qpair',1): e('s_and_b32 s65, s64, 4\ns_cmp_eq_u32 s65, 0')
        else: e('s_cmp_lt_u32 s64, 8')
        e('s_cselect_b32 s44, s20, s10\ns_cselect_b32 s45, s21, s11\ns_cselect_b32 s48, s14, s4\ns_cselect_b32 s49, s15, s5')
        e('s_mov_b32 s46, %d\ns_mov_b32 s47, 0x20000\ns_mov_b32 s50, 1152\ns_mov_b32 s51, 0x20000'%(576*8192))
        if s.o.get('qpair',1): e('s_and_b32 s65, s64, 3\ns_lshl_b32 s65, s65, 7\ns_lshr_b32 s66, s64, 3\ns_lshl_b32 s66, s66, 6\ns_add_u32 s65, s65, s66\ns_lshl_b32 s66, s31, 9\ns_add_u32 s65, s65, s66')
        else: e('s_and_b32 s65, s64, 7\ns_lshl_b32 s65, s65, 6\ns_lshl_b32 s66, s31, 9\ns_add_u32 s65, s65, s66')
        e('v_lshrrev_b32 v4, 2, v3\nv_and_b32 v5, 3, v3\nv_lshlrev_b32 v5, 4, v5\nv_lshl_add_u32 v5, v4, 13, v5\nv_lshlrev_b32 v4, 1, v4')
        for i in range(9):
            e('buffer_load_ushort v%d, v4, s[48:51], 0 offen offset:%d'%(xb+i,i*128))
        for i in range(9):
            e('buffer_load_dwordx4 v[%d:%d], v5, s[44:47], s65 offen %s'%(wb+4*i,wb+4*i+3,s.o.get('qfl','nt')))
            if i<8: e('s_add_u32 s65, s65, %d'%(64*8192))
    def q_compute(s,wb,xb,ab,tb,newer,hooks={}):
        e=s.e
        for j in range(8): e('v_mov_b32 v%d, 0'%(ab+j))
        for i in range(9):
            e('s_waitcnt vmcnt(%d)'%(newer+8-i))
            if s.o.get('qst') and i in (0,8): e('s_memrealtime s[%d:%d]'%((84,85) if i==0 else (86,87)))
            if i in hooks: hooks[i][0](); newer+=hooks[i][1]
            e('v_lshlrev_b32 v%d, 16, v%d'%(xb+i,xb+i))
            for d in range(4):
                e('v_lshlrev_b32 v%d, 16, v%d\nv_and_b32 v%d, 0xffff0000, v%d'%(tb,wb+4*i+d,tb+1,wb+4*i+d))
                e('v_fmac_f32 v%d, v%d, v%d\nv_fmac_f32 v%d, v%d, v%d'%(ab+2*d,xb+i,tb,ab+2*d+1,xb+i,tb+1))
        for ror in (4,8):
            e('s_nop 1')
            for j in range(8): e('v_add_f32_dpp v%d, v%d, v%d row_ror:%d row_mask:0xf bank_mask:0xf'%(ab+j,ab+j,ab+j,ror))
        e('v_lshrrev_b32 v%d, 4, v3\nv_and_b32 v%d, 3, v3\nv_lshlrev_b32 v%d, 5, v%d\nv_lshl_add_u32 v%d, v%d, 7, v%d'%(tb,tb+1,tb+1,tb+1,tb,tb,tb+1))
        e('ds_write_b128 v%d, v[%d:%d] offset:%d\nds_write_b128 v%d, v[%d:%d] offset:%d'%(tb,ab,ab+3,L_QR,tb,ab+4,ab+7,L_QR+16))
        e('s_waitcnt lgkmcnt(0)')
    def q_finish(s,tb,fl):
        e=s.e
        e('v_and_b32 v%d, 31, v0\nv_lshlrev_b32 v%d, 2, v%d\nv_lshrrev_b32 v%d, 5, v0\nv_lshl_add_u32 v%d, v%d, 10, v%d'%(tb,tb,tb,tb+1,tb,tb+1,tb))
        for p in range(8): e('ds_read_b32 v%d, v%d offset:%d'%(tb+2+p,tb,L_QR+p*128))
        if s.o.get('qpair',1): e('s_and_b32 s65, s64, 7\ns_lshl_b32 s65, s65, 1\ns_lshr_b32 s66, s64, 3\ns_add_u32 s65, s65, s66\ns_lshl_b32 s66, s31, 4\ns_add_u32 s65, s65, s66\ns_lshl_b32 s65, s65, 7')
        else: e('s_lshl_b32 s65, s3, 7')
        e('v_and_b32 v%d, 31, v0\nv_lshlrev_b32 v%d, 2, v%d'%(tb,tb,tb))
        e('s_waitcnt lgkmcnt(0)')
        for a,b in ((0,1),(2,3),(4,5),(6,7),(0,2),(4,6),(0,4)): e('v_add_f32 v%d, v%d, v%d'%(tb+2+a,tb+2+a,tb+2+b))
        e('v_mov_b32 v%d, v%d\ns_nop 1\nv_permlane32_swap_b32 v%d, v%d\nv_add_f32 v%d, v%d, v%d'%(tb+3,tb+2,tb+2,tb+3,tb+2,tb+2,tb+3))
        e('s_nop 1\nv_mov_b32_dpp v%d, v%d quad_perm:[1,0,3,2] row_mask:0xf bank_mask:0xf'%(tb+3,tb+2))
        e('v_cvt_pk_bf16_f32 v%d, v%d, v%d\nv_mov_b32 v%d, s73'%(tb+2,tb+2,tb+3,tb+3))
        e('s_mov_b32 exec_lo, 0x55555555\ns_mov_b32 exec_hi, 0')
        e('buffer_store_dwordx2 v[%d:%d], v%d, s[40:43], s65 offen %s'%(tb+2,tb+3,tb,fl))
        e('s_mov_b64 exec, -1')
    RING=96
    def att_setup(s):
        e=s.e
        rot=s.o.get('rot',0)
        if rot==1: e('s_mul_i32 s96, s31, 11\ns_lshr_b32 s96, s96, 5\ns_mul_i32 s96, s96, 3\ns_sub_u32 s96, s31, s96')
        else: e('s_mov_b32 s96, 0')
        e('s_mov_b32 s97, s96\ns_lshl_b32 s66, s31, 1\ns_sub_u32 s66, s66, 1')
        for r,(kb,vb) in enumerate(((32,36),(52,54),(56,58))):
            e('s_add_u32 s65, s66, s97\ns_cmp_eq_u32 s97, 0\ns_cselect_b32 s65, s31, s65')
            e('s_cselect_b32 s%d, s16, s6\ns_cselect_b32 s%d, s17, s7\ns_cselect_b32 s%d, s18, s8\ns_cselect_b32 s%d, s19, s9'%(kb,kb+1,vb,vb+1))
            e('s_lshl_b32 s65, s65, 24\ns_add_u32 s%d, s%d, s65\ns_addc_u32 s%d, s%d, 0\ns_add_u32 s%d, s%d, s65\ns_addc_u32 s%d, s%d, 0'%(kb,kb,kb+1,kb+1,vb,vb,vb+1,vb+1))
            if r<2: e('s_add_u32 s97, s97, 1\ns_cmp_eq_u32 s97, 3\ns_cselect_b32 s97, 0, s97')
        e('s_mov_b32 s34, 0x1000000\ns_mov_b32 s35, 0x20000\ns_mov_b32 s38, 0x1000000\ns_mov_b32 s39, 0x20000')
        if s.o['pattern']=='wg': e('s_lshl_b32 s60, s64, 20'); s.step=16384
        else: e('s_lshl_b32 s60, s64, 14'); s.step=262144
        e('s_lshl_b32 s65, s30, 12\ns_add_u32 s60, s60, s65\ns_mov_b32 s61, s60')
        if s.o.get('xm'):
            s.xorval('s64'); e('s_xor_b32 s69, s61, s68')
        e('v_and_b32 v1, 3, v0\nv_lshlrev_b32 v1, 10, v1\nv_bfe_u32 v2, v0, 2, 2\nv_lshl_add_u32 v1, v2, 8, v1\nv_lshrrev_b32 v2, 4, v0\nv_lshl_add_u32 v1, v2, 4, v1')
        e('v_lshlrev_b32 v2, 4, v0')
    def xorval(s,m):
        a,b=s.o['xm']
        s.e('s_mul_i32 s68, %s, %d\ns_mul_i32 s66, s31, %d\ns_add_u32 s68, s68, s66\ns_and_b32 s68, s68, 63\ns_mul_i32 s68, s68, %d'%(m,a,b,s.step))
    def masks(s):
        e=s.e
        e('v_and_b32 v8, 1, v0\nv_cmp_eq_u32 vcc, 1, v8\nv_mov_b32 v9, 0xffff\nv_mov_b32 v10, 0xffff0000\nv_cndmask_b32 v9, v9, v10, vcc\nv_bfe_u32 v8, v0, 1, 2')
        for q in range(4): e('v_cmp_eq_u32 vcc, %d, v8\ns_nop 1\nv_cndmask_b32 v%d, 0, v9, vcc'%(q,4+q))
    def issueK(s,sl):
        for i in range(4):
            r=s.RING+sl*32+4*i
            s.e('buffer_load_dwordx4 v[%d:%d], v1, s[32:35], %s offen offset:%d %s'%(r,r+3,'s69' if s.o.get('xm') else 's61',64*i,s.o['kfl']))
    def issueV(s,sl):
        for i in range(4):
            r=s.RING+sl*32+16+4*i
            s.e('buffer_load_dwordx4 v[%d:%d], v2, s[36:39], %s offen offset:%d %s'%(r,r+3,'s69' if s.o.get('xm') else 's61',1024*i,s.o['vfl']))
        s.e('s_add_u32 s61, s61, %d'%s.step)
        if s.o.get('xm'): s.e('s_xor_b32 s69, s61, s68')
    def wo_issue(s):
        e=s.e
        e('s_cmp_lt_u32 s64, 8\ns_cselect_b32 s44, s22, s12\ns_cselect_b32 s45, s23, s13')
        e('s_and_b32 s65, s64, 7\ns_lshl_b32 s65, s65, 5\ns_lshl_b32 s66, s31, 8\ns_add_u32 s65, s65, s66\ns_mul_i32 s65, s65, 1152')
        e('s_add_u32 s44, s44, s65\ns_addc_u32 s45, s45, 0\ns_sub_u32 s46, %d, s65\ns_mov_b32 s47, 0x20000'%(4096*1152))
        e('s_mul_i32 s65, s30, %d'%(8*1152))
        e('v_lshrrev_b32 v26, 4, v0\nv_mul_u32_u24 v26, 2304, v26\nv_and_b32 v27, 15, v0\nv_lshl_add_u32 v26, v27, 4, v26')
        for cb in range(5):
            if cb==4: e('s_mov_b32 exec_lo, 0x00ff00ff\ns_mov_b32 exec_hi, 0x00ff00ff')
            for rg in range(2):
                r=56+(rg*5+cb)*4
                e('buffer_load_dwordx4 v[%d:%d], v26, s[44:47], s65 offen offset:%d nt'%(r,r+3,rg*1152+cb*256))
        e('s_mov_b64 exec, -1')
    def q_operand(s,first):
        e=s.e
        if not first: e('s_add_u32 s96, s96, 1\ns_cmp_eq_u32 s96, 3\ns_cselect_b32 s96, 0, s96')
        e('s_add_u32 s66, s96, 1\ns_lshl_b32 s66, s66, 8\ns_cmp_eq_u32 s96, 0\ns_cselect_b32 s65, 256, 0\ns_cselect_b32 s66, 0, s66')
        e('v_bfe_u32 v19, v0, 3, 1\nv_mul_u32_u24 v19, s65, v19\nv_lshrrev_b32 v24, 4, v0\nv_lshl_add_u32 v24, v24, 4, s66\nv_add_u32 v19, v19, v24')
        for i in range(4): e('ds_read_b128 v[%d:%d], v19 offset:%d'%(40+4*i,43+4*i,L_Q+64*i))
        e('v_mov_b32 v12, 0\nv_mov_b32 v13, 0\nv_mov_b32 v14, 0\nv_mov_b32 v15, 0\nv_mov_b32 v16, 0xff800000\nv_mov_b32 v17, 0xff800000\nv_mov_b32 v18, 0')
        e('s_waitcnt lgkmcnt(0)')
    def tile(s,sl,n,rare):
        e=s.e
        kb=s.RING+sl*32; vb=kb+16
        if s.o.get('split'):
            e('s_waitcnt vmcnt(%d)'%(s.newer(sl,0)+1)); n=s.newer(sl,1)+1
            for c in range(2):
                for rb in range(2):
                    d=24+4*rb; r=kb+4*(rb*2+c)
                    e('v_mfma_f32_16x16x32_bf16 v[%d:%d], v[%d:%d], v[%d:%d], %s'%(d,d+3,r,r+3,s.Q128+4*c,s.Q128+4*c+3,'0' if c==0 else 'v[%d:%d]'%(d,d+3)))
            s.issueK(sl); e('s_nop 3')
            for r in range(4): e('v_cndmask_b32 v%d, v%d, v%d, s[70:71]'%(8+r,24+2*r,25+2*r))
            for r in range(4): e('v_add_f32_dpp v%d, v%d, v%d quad_perm:[1,0,3,2] row_mask:0xf bank_mask:0xf'%(8+r,8+r,8+r))
        else:
            e('s_waitcnt vmcnt(%d)'%n)
            for i in range(4):
                e('v_mfma_f32_16x16x32_bf16 v[8:11], v[%d:%d], v[%d:%d], %s'%(kb+4*i,kb+4*i+3,40+4*i,43+4*i,'0' if i==0 else 'v[8:11]'))
            s.issueK(sl)
            e('s_nop 3')
        s.rnd(8)
        La=s.lab('rare'); Lb=s.lab('back'); rare.append((La,Lb))
        e('v_max3_f32 v19, v8, v9, v10\nv_max_f32 v19, v19, v11\nv_cmp_gt_f32 vcc, v19, v16\ns_cbranch_vccnz %s\n%s:'%(La,Lb))
        for r in range(4): e('v_fma_f32 v%d, v%d, s67, -v17'%(20+r,8+r))
        for r in range(4): e('v_exp_f32 v%d, v%d'%(20+r,20+r))
        e('v_add_f32 v18, v18, v20\nv_cvt_pk_bf16_f32 v20, v20, v20')
        for r in range(1,4): e('v_add_f32 v18, v18, v%d\nv_cvt_pk_bf16_f32 v%d, v%d, v%d'%(20+r,20+r,20+r,20+r))
        for r in range(4):
            for q in range(4): e('v_and_b32 v%d, v%d, v%d'%(24+4*r+q,20+r,4+q))
        e('s_waitcnt vmcnt(%d)'%n)
        e('s_nop 0')
        for r in range(4):
            e('v_mfma_f32_16x16x32_bf16 v[12:15], v[%d:%d], v[%d:%d], v[12:15]'%(24+4*r,27+4*r,vb+4*r,vb+4*r+3))
        s.issueV(sl)
    def att_loop(s,wo_prefetch):
        e=s.e; R=s.o['R']; n=4+8*(R-1); P=s.o.get('P',0); C=s.o.get('C',2); NI=64//R
        Lr=s.lab('round'); Ll=s.lab('loop'); Ln=s.lab('nosw'); rare=[]; Lfl=s.lab('flush'); Ldyn=s.lab('dyn')
        e('s_mov_b32 s62, 0\ns_mov_b32 s67, 0x%x'%CSC)
        s.q_operand(True)
        e('%s:\ns_mov_b32 s63, %d'%(Lr,NI))
        if P: e('s_cmp_eq_u32 s62, 2\ns_cselect_b32 s63, %d, s63\ns_cselect_b32 s76, 0, 1'%(NI-1-P))
        else: e('s_mov_b32 s76, 1')
        e('%s:'%Ll)
        e('s_cmp_lg_u32 s63, s76\ns_cbranch_scc1 %s'%Ln)
        e('s_mov_b32 s32, s52\ns_mov_b32 s33, s53\ns_mov_b32 s36, s54\ns_mov_b32 s37, s55\ns_mov_b64 s[52:53], s[56:57]\ns_mov_b64 s[54:55], s[58:59]\ns_mov_b32 s61, s60')
        if s.o.get('xm'): e('s_xor_b32 s69, s61, s68')
        e('s_cmp_lt_u32 s62, 2\ns_cselect_b32 s34, s34, 0\ns_mov_b32 s38, s34')
        e('%s:'%Ln)
        for sl in range(R): s.tile(sl,n,rare)
        e('s_sub_u32 s63, s63, 1\ns_cmp_lg_u32 s63, 0\ns_cbranch_scc1 %s'%Ll)
        if P:
            TK=s.RING+32*R; Lp=s.lab('dloop'); LA=s.o.get('LA',2); NS=R//C; PL=s.o.get('perlane',0)
            G_=16 if PL else 64; total=G_*P*R//C; sh=4 if PL else 6
            assert LA in (1,2) and (LA==1 or NS%2==0)
            e('s_cmp_lg_u32 s62, 2\ns_cbranch_scc1 %s'%Lfl)
            if PL: e('s_mov_b32 s77, s64\ns_lshl_b32 s81, s31, 2\ns_add_u32 s81, s81, s30\ns_lshl_b32 s81, s81, 8\ns_lshl_b32 s89, s30, 12\ns_add_u32 s89, s89, %d'%((NI-P)*R*s.step))
            else: e('s_lshl_b32 s77, s64, 2\ns_add_u32 s77, s77, s30\ns_lshl_b32 s81, s31, 10')
            e('s_mov_b32 s80, 0x7fffffff\ns_add_u32 s81, s81, %d\nv_mov_b32 v%d, 0'%(WS_CNT,TK+2))
            if LA==2: e('s_add_u32 s65, s77, %d\nv_mov_b32 v%d, s65'%(G_,TK+1))
            s.stamp(14)
            e('%s:'%Lp)
            msh=20 if s.o['pattern']=='wg' else 14
            for h in range(NS):
                tk=TK+(h%2 if LA==2 else 0); tkn=TK+((h+1)%2 if LA==2 else 0)
                e('s_cmp_lt_u32 s77, %d\ns_cselect_b32 s34, 0x1000000, 0\ns_cselect_b32 s65, s80, %d\ns_mov_b32 s38, s34\ns_min_u32 s80, s80, s65'%(total,R//C))
                e('s_cmp_eq_u32 s80, 0\ns_cbranch_scc1 %s\ns_sub_u32 s80, s80, 1'%Lfl)
                e('v_mov_b32 v%d, 1\ns_lshr_b32 s65, s77, %d\ns_and_b32 s65, s65, 63\ns_mul_i32 s65, s65, %d'%(tk,sh,C*s.step))
                if PL: e('s_add_u32 s61, s65, s89\ns_and_b32 s65, s77, 15')
                else: e('s_add_u32 s61, s65, %d\ns_and_b32 s65, s77, 3\ns_lshl_b32 s65, s65, 12\ns_add_u32 s61, s61, s65\ns_bfe_u32 s65, s77, 0x40002'%((NI-P)*R*s.step))
                if s.o.get('xm'): s.xorval('s65')
                e('s_lshl_b32 s65, s65, %d\ns_add_u32 s61, s61, s65'%msh)
                if s.o.get('xm'): e('s_xor_b32 s69, s61, s68')
                e('s_mov_b64 exec, 1\nbuffer_atomic_add v%d, v%d, s[40:43], s81 offen sc0 sc1\ns_mov_b64 exec, -1'%(tk,TK+2))
                for sl in range(h*C,h*C+C): s.tile(sl,n+1,rare)
                e('s_waitcnt vmcnt(%d)\nv_readfirstlane_b32 s77, v%d'%(8*C if LA==1 else 16*C+1,tkn))
                if s.o['stamp']: e('s_add_u32 s95, s95, 1')
            e('s_branch %s'%Lp)
        e('%s:'%Lfl)
        e('v_mov_b32 v19, v18\ns_nop 1\nv_permlane32_swap_b32 v18, v19\nv_add_f32 v18, v18, v19\nv_mov_b32 v19, v18\ns_nop 1\nv_permlane16_swap_b32 v18, v19\nv_add_f32 v18, v18, v19')
        e('s_lshl_b32 s65, s96, 2\ns_add_u32 s65, s65, s30\ns_mul_i32 s65, s65, 1040')
        e('v_lshrrev_b32 v19, 5, v0\nv_lshlrev_b32 v19, 9, v19\nv_and_b32 v20, 15, v0\nv_lshl_add_u32 v19, v20, 5, v19\nv_bfe_u32 v20, v0, 4, 1\nv_lshl_add_u32 v19, v20, 4, v19\nv_add_u32 v19, s65, v19')
        e('v_bfe_u32 v20, v0, 3, 1\nv_lshl_add_u32 v20, v20, 3, s65\nv_mov_b32 v22, v17\nv_mov_b32 v23, v18')
        e('ds_write_b128 v19, v[12:15] offset:%d\nds_write_b64 v20, v[22:23] offset:%d'%(L_PART,L_PART+1024))
        Ld=s.lab('done')
        e('s_add_u32 s62, s62, 1\ns_cmp_eq_u32 s62, 3\ns_cbranch_scc1 %s'%Ld)
        e('s_waitcnt lgkmcnt(0)')
        if s.o['stamp']:
            La=s.lab('st'); Lb=s.lab('st')
            e('s_cmp_eq_u32 s62, 1\ns_cbranch_scc1 %s'%La); s.stamp(9); e('s_branch %s\n%s:'%(Lb,La)); s.stamp(8); e('%s:'%Lb)
        if wo_prefetch:
            Lw=s.lab('nowo')
            e('s_cmp_lg_u32 s62, 1\ns_cbranch_scc1 %s'%Lw); s.wo_issue(); e('%s:'%Lw)
        s.q_operand(False)
        e('s_branch %s'%Lr)
        for La,Lb in rare:
            e('%s:'%La)
            e('v_max_f32 v19, v19, v16\nv_mov_b32 v24, v19\ns_nop 1\nv_permlane32_swap_b32 v19, v24\nv_max_f32 v19, v19, v24\nv_mov_b32 v24, v19\ns_nop 1\nv_permlane16_swap_b32 v19, v24\nv_max_f32 v16, v19, v24')
            e('v_mul_f32 v24, s67, v16\nv_sub_f32 v25, v17, v24\nv_exp_f32 v25, v25\nv_mov_b32 v17, v24\ns_nop 0\nv_mul_f32 v18, v18, v25')
            e('v_mov_b32_dpp v26, v25 row_newbcast:0 row_mask:0x3 bank_mask:0xf\nv_mov_b32_dpp v26, v25 row_newbcast:8 row_mask:0xc bank_mask:0xf')
            for r in range(4): e('v_mul_f32 v%d, v%d, v26'%(12+r,12+r))
            e('s_branch %s'%Lb)
        e('%s:'%Ld)
    thr=0; VO=228; Q128=236; VS=244; MA0=245; S2=246; MA1=227; K128=250
    def ph_setup(s):
        e=s.e
        e('s_lshl_b32 s65, s31, 24\ns_add_u32 s32, s16, s65\ns_addc_u32 s33, s17, 0\ns_add_u32 s98, s18, s65\ns_addc_u32 s99, s19, 0')
        e('s_lshl_b32 s65, s31, 25\ns_add_u32 s52, s6, s65\ns_addc_u32 s53, s7, 0\ns_add_u32 s54, s8, s65\ns_addc_u32 s55, s9, 0')
        e('s_add_u32 s56, s52, 0x1000000\ns_addc_u32 s57, s53, 0\ns_add_u32 s58, s54, 0x1000000\ns_addc_u32 s59, s55, 0')
        e('s_mov_b32 s34, 0x1000000\ns_mov_b32 s35, 0x20000\ns_mov_b32 s36, s32\ns_mov_b32 s37, s33\ns_mov_b32 s38, 0x1000000\ns_mov_b32 s39, 0x20000')
        s.step=16384
        e('s_lshl_b32 s60, s64, 20\ns_lshl_b32 s65, s30, 12\ns_add_u32 s60, s60, s65\ns_mov_b32 s61, s60\ns_mov_b32 s76, 32768')
        e('v_and_b32 v1, 3, v0\nv_lshlrev_b32 v1, 10, v1\nv_bfe_u32 v2, v0, 2, 2\nv_lshl_add_u32 v1, v2, 8, v1\nv_lshrrev_b32 v2, 4, v0\nv_lshl_add_u32 v1, v2, 4, v1')
        k=s.K128
        e('v_lshlrev_b32 v%d, 4, v2\nv_and_b32 v2, 1, v0\nv_lshl_add_u32 v%d, v2, 6, v%d\nv_bfe_u32 v2, v0, 1, 1\nv_lshl_add_u32 v%d, v2, 10, v%d\nv_bfe_u32 v2, v0, 2, 2\nv_lshl_add_u32 v%d, v2, 8, v%d'%(k,k,k,k,k,k,k))
        e('v_lshlrev_b32 v2, 4, v0')
        s.ph_offs('K')
    def ph_offs(s,kind):
        e=s.e
        k128=[(s.K128,o) for o in (0,128,2048,2176)]; k64=[(1,64*i) for i in range(4)]; vl=[(2,1024*i) for i in range(4)]
        km=s.o.get('kmix','ab')
        ka={'a':k128,'b':k64}[km[0]]; kb={'a':k128,'b':k64}[km[1]]
        sets={'K':ka+[(r,o+16384) for r,o in kb],'V':vl+[(r,o+16384) for r,o in vl],'P':k64+vl}[kind]
        if s.o.get('split'):
            sets={'K':k128+[(r,o+16384) for r,o in k128],'V':sets,'P':k128+vl}[kind]
            e('s_mov_b32 s68, 0x%x\ns_mov_b32 s96, 0x%x'%(0x0f0f0f0f if kind=='V' else 0x55555555, 0x55555555 if kind=='K' else 0x0f0f0f0f))
        for i,(r,o) in enumerate(sets):
            e('v_add_u32 v%d, %d, v%d'%(s.VO+i,o,r) if o else 'v_mov_b32 v%d, v%d'%(s.VO+i,r))
    def nops(s,sl,half):
        sp=s.o.get('split')
        return 8 if (sp and sp[(sl*2+half)%len(sp)]=='1') else 4
    def newer(s,sl,half):
        R=s.o['R']; seq=[(a,h) for a in range(R) for h in range(2)]; k=seq.index((sl,half))
        return sum(s.nops(*seq[(k+j)%(2*R)]) for j in range(1,2*R))
    def ph_issue(s,sl,half):
        if s.nops(sl,half)==8:
            m=(68,69) if half==0 else (96,97)
            for p in range(2):
                s.e('s_mov_b32 exec_lo, s%d\ns_mov_b32 exec_hi, s%d'%(m[0],m[0]) if p==0 else 's_not_b64 exec, exec')
                for i in range(4):
                    r=s.RING+sl*32+half*16+4*i
                    s.e('buffer_load_dwordx4 v[%d:%d], v%d, %s, s61 offen nt'%(r,r+3,s.VO+half*4+i,'s[36:39]' if half else 's[32:35]'))
            s.e('s_mov_b64 exec, -1')
            if half: s.e('s_add_u32 s61, s61, s76')
            return
        for i in range(4):
            r=s.RING+sl*32+half*16+4*i
            if s.thr and i%(s.thr//100 or s.o.get('burst',4))==0: s.e('s_waitcnt vmcnt(%d)'%(s.thr%100))
            s.e('buffer_load_dwordx4 v[%d:%d], v%d, %s, s61 offen nt'%(r,r+3,s.VO+half*4+i,'s[36:39]' if half else 's[32:35]'))
        if half: s.e('s_add_u32 s61, s61, s76')
    def ph_switch(s,kind,a,b,start):
        e=s.e
        e('s_mov_b32 s32, s%d\ns_mov_b32 s33, s%d\ns_mov_b32 s36, s%d\ns_mov_b32 s37, s%d'%(a,a+1,b,b+1))
        e('s_add_u32 s61, s60, %d\ns_mov_b32 s76, %d'%(start,16384 if kind=='P' else 32768))
        s.ph_offs(kind)
    def ph_q(s,ty):
        e=s.e
        e('v_lshrrev_b32 v24, 4, v0\nv_lshlrev_b32 v24, 4, v24')
        if ty==0: e('v_bfe_u32 v19, v0, 3, 1\nv_lshl_add_u32 v24, v19, 8, v24')
        e('v_and_b32 v19, 1, v0\nv_lshl_add_u32 v25, v19, 6, v24')
        o=L_Q+(0 if ty==0 else (ty+1)*256)
        for i in range(0 if s.o.get('split') else 4): e('ds_read_b128 v[%d:%d], v24 offset:%d'%(40+4*i,43+4*i,o+64*i))
        for c in range(2): e('ds_read_b128 v[%d:%d], v25 offset:%d'%(s.Q128+4*c,s.Q128+4*c+3,o+128*c))
        e('v_mov_b32 v16, 0xff800000')
        s.ph_saddr(ty)
        e('s_waitcnt lgkmcnt(0)')
    def ph_saddr(s,ty):
        e=s.e
        e('s_lshl_b32 s65, s30, 13\ns_add_u32 s65, s65, %d\nv_lshrrev_b32 v19, 4, v0\nv_lshl_add_u32 v%d, v19, 4, s65'%(L_S+(64 if ty==2 else 0),s.VS))
        if ty==0: e('v_bfe_u32 v19, v0, 3, 1\nv_lshl_add_u32 v%d, v19, 6, v%d'%(s.VS,s.VS))
    def ph_loop(s,niter,body,switch):
        e=s.e; L=s.lab('pl'); Ln=s.lab('pn')
        e('s_mov_b32 s63, %d\n%s:'%(niter,L))
        if switch:
            e('s_cmp_lg_u32 s63, 1\ns_cbranch_scc1 %s'%Ln); switch(); e('%s:'%Ln)
        for sl in range(s.o['R']): body(sl)
        e('v_add_u32 v%d, %d, v%d\ns_sub_u32 s63, s63, 1\ns_cmp_lg_u32 s63, 0\ns_cbranch_scc1 %s'%(s.VS,256*s.o['R'],s.VS,L))
    def ph_kstep(s,sl):
        e=s.e; km='aa' if s.o.get('split') else s.o.get('kmix','ab')
        for half in range(2):
            kb=s.RING+sl*32+16*half; S=8 if half==0 else 32
            e('s_waitcnt vmcnt(%d)'%s.newer(sl,half))
            if km[half]=='a':
                for c in range(2):
                    for rb in range(2):
                        d=24+4*rb; r=kb+4*(rb*2+c)
                        e('v_mfma_f32_16x16x32_bf16 v[%d:%d], v[%d:%d], v[%d:%d], %s'%(d,d+3,r,r+3,s.Q128+4*c,s.Q128+4*c+3,'0' if c==0 else 'v[%d:%d]'%(d,d+3)))
                s.thr=s.o.get('kthr',0)
                s.ph_issue(sl,half); e('s_nop 3')
                for r in range(4): e('v_add_f32_dpp v%d, v%d, v%d quad_perm:[1,0,3,2] row_mask:0xf bank_mask:0xf'%(S+r,25+2*r,24+2*r))
            else:
                for i in range(4):
                    e('v_mfma_f32_16x16x32_bf16 v[%d:%d], v[%d:%d], v[%d:%d], %s'%(S,S+3,kb+4*i,kb+4*i+3,40+4*i,43+4*i,'0' if i==0 else 'v[%d:%d]'%(S,S+3)))
                s.thr=s.o.get('kthr',0)
                s.ph_issue(sl,half); e('s_nop 3')
            s.rnd(S)
            e('v_max3_f32 v16, v%d, v%d, v16\nv_max3_f32 v16, v%d, v%d, v16'%(S,S+1,S+2,S+3))
            e('s_mov_b64 exec, s[70:71]\nds_write_b128 v%d, v[%d:%d] offset:%d\ns_mov_b64 exec, -1'%(s.VS,S,S+3,(sl*2+half)*128))
    def rnd(s,S):
        if not s.o.get('mimic',1): return
        e=s.e
        for ps in range(2):
            e('v_cvt_pk_bf16_f32 v36, v%d, v%d\nv_cvt_pk_bf16_f32 v37, v%d, v%d'%(S,S+1,S+2,S+3))
            e('v_lshlrev_b32 v%d, 16, v36\nv_and_b32 v%d, s69, v36\nv_lshlrev_b32 v%d, 16, v37\nv_and_b32 v%d, s69, v37'%(S,S+1,S+2,S+3))
            if ps==0:
                for r in range(4): e('v_mul_f32 v%d, s62, v%d'%(S+r,S+r))
    def ph_kend(s,dst):
        e=s.e
        e('v_mov_b32 v19, v16\ns_nop 1\nv_permlane32_swap_b32 v16, v19\nv_max_f32 v16, v16, v19\nv_mov_b32 v19, v16\ns_nop 1\nv_permlane16_swap_b32 v16, v19\nv_max_f32 v16, v16, v19\ns_nop 1')
        e('v_mov_b32_dpp v%d, v16 row_newbcast:0 row_mask:0xf bank_mask:0x3\nv_mov_b32_dpp v%d, v16 row_newbcast:8 row_mask:0xf bank_mask:0xc'%(dst,dst))
    def ph_vstart(s,ty,src):
        e=s.e
        e('v_mov_b32 v16, v%d\nv_mul_f32 v17, s67, v%d\nv_mov_b32 v18, 0\nv_mov_b32 v12, 0\nv_mov_b32 v13, 0\nv_mov_b32 v14, 0\nv_mov_b32 v15, 0'%(src,src))
        s.ph_saddr(ty)
    def ph_vstep(s,sl):
        e=s.e; n=4+8*(s.o['R']-1)
        e('ds_read_b128 v[8:11], v%d offset:%d\nds_read_b128 v[%d:%d], v%d offset:%d'%(s.VS,sl*256,s.S2,s.S2+3,s.VS,sl*256+128))
        for half in range(2):
            vb=s.RING+sl*32+16*half; S=8 if half==0 else s.S2
            e('s_waitcnt lgkmcnt(%d)'%(1-half))
            for r in range(4): e('v_fma_f32 v%d, v%d, s67, -v17'%(20+r,S+r))
            for r in range(4): e('v_exp_f32 v%d, v%d'%(20+r,20+r))
            for r in range(4): e('v_add_f32 v18, v18, v%d\nv_cvt_pk_bf16_f32 v%d, v%d, v%d'%(20+r,20+r,20+r,20+r))
            for r in range(4):
                for q in range(4): e('v_and_b32 v%d, v%d, v%d'%(24+4*r+q,20+r,4+q))
            e('s_waitcnt vmcnt(%d)\ns_nop 0'%s.newer(sl,half))
            for r in range(4):
                e('v_mfma_f32_16x16x32_bf16 v[12:15], v[%d:%d], v[%d:%d], v[12:15]'%(24+4*r,27+4*r,vb+4*r,vb+4*r+3))
            s.thr=s.o.get('vthr',0)
            s.ph_issue(sl,half)
    def flush(s,ty):
        e=s.e
        e('v_mov_b32 v19, v18\ns_nop 1\nv_permlane32_swap_b32 v18, v19\nv_add_f32 v18, v18, v19\nv_mov_b32 v19, v18\ns_nop 1\nv_permlane16_swap_b32 v18, v19\nv_add_f32 v18, v18, v19')
        e('s_mul_i32 s65, s30, 1040\ns_add_u32 s65, s65, %d'%(ty*4160))
        e('v_lshrrev_b32 v19, 5, v0\nv_lshlrev_b32 v19, 9, v19\nv_and_b32 v20, 15, v0\nv_lshl_add_u32 v19, v20, 5, v19\nv_bfe_u32 v20, v0, 4, 1\nv_lshl_add_u32 v19, v20, 4, v19\nv_add_u32 v19, s65, v19')
        e('v_bfe_u32 v20, v0, 3, 1\nv_lshl_add_u32 v20, v20, 3, s65\nv_mov_b32 v22, v17\nv_mov_b32 v23, v18')
        e('ds_write_b128 v19, v[12:15] offset:%d\nds_write_b64 v20, v[22:23] offset:%d\ns_waitcnt lgkmcnt(0)'%(L_PART,L_PART+1024))
    def att_phased(s):
        e=s.e; R=s.o['R']; C=2; n=4+8*(R-1); T=s.o.get('T',16); assert R==4
        NF=32//R; Ns=(64-T)//2; assert Ns%R==0; NS_=Ns//R
        TK=s.RING+32*R; total=16*T//C; rare=[]; Lfl=s.lab('flush'); Lp=s.lab('dloop')
        def draw(): e('v_mov_b32 v%d, 1\ns_mov_b64 exec, 1\nbuffer_atomic_add v%d, v%d, s[40:43], s81 offen sc0 sc1\ns_mov_b64 exec, -1'%(TK,TK,TK+1))
        def take():
            e('s_waitcnt vmcnt(16)\nv_readfirstlane_b32 s77, v%d'%TK)
            if s.o['stamp']: e('s_add_u32 s95, s95, 1')
        def site(k,inpool):
            e('s_cmp_lt_u32 s77, %d\ns_cselect_b32 s34, 0x1000000, 0\ns_cselect_b32 s65, s80, %d\ns_mov_b32 s38, s34\ns_min_u32 s80, s80, s65'%(total,k))
            if inpool: e('s_cmp_eq_u32 s80, 0\ns_cbranch_scc1 %s\ns_sub_u32 s80, s80, 1'%Lfl)
            e('s_lshr_b32 s65, s77, 4\ns_and_b32 s65, s65, 31\ns_lshl_b32 s65, s65, 15\ns_add_u32 s61, s65, s89\ns_and_b32 s65, s77, 15\ns_lshl_b32 s65, s65, 20\ns_add_u32 s61, s61, s65')
            draw()
        e('s_mov_b32 s67, 0x%x\ns_mov_b32 s70, 0x01010101\ns_mov_b32 s71, 0x01010101\ns_mov_b32 s62, 0x%x\ns_mov_b32 s69, 0xffff0000'%(LOG2E if s.o.get('mimic',1) else CSC,SCALE))
        s.ph_q(0); s.ph_loop(NF,s.ph_kstep,lambda: s.ph_switch('V',98,98,0)); s.ph_kend(s.MA0); s.stamp(8)
        s.ph_vstart(0,s.MA0); s.ph_loop(NF,s.ph_vstep,lambda: s.ph_switch('K',52,52,0)); s.flush(0); s.stamp(9)
        s.wo_issue()
        s.ph_q(1); s.ph_loop(NF,s.ph_kstep,lambda: s.ph_switch('K',56,56,0)); s.ph_kend(s.MA0)
        s.ph_q(2); s.ph_loop(NS_,s.ph_kstep,lambda: s.ph_switch('V',54,54,0)); s.ph_kend(s.MA1); s.stamp(13)
        s.ph_vstart(1,s.MA0); s.ph_loop(NF,s.ph_vstep,lambda: s.ph_switch('V',58,58,0)); s.flush(1)
        if 'b' in s.o.get('tlb',''): e('s_barrier')
        s.ph_vstart(2,s.MA1); s.ph_loop(NS_-2,s.ph_vstep,None)
        e('s_lshl_b32 s81, s31, 2\ns_add_u32 s81, s81, s30\ns_lshl_b32 s81, s81, 8\ns_add_u32 s81, s81, %d'%WS_CNT)
        e('s_lshl_b32 s89, s30, 12\ns_add_u32 s89, s89, %d\ns_mov_b32 s80, 0x7fffffff\nv_mov_b32 v%d, 0'%(2*Ns*16384,TK+1))
        s.ph_vstep(0); s.ph_vstep(1); draw(); s.ph_vstep(2); s.ph_vstep(3); take()
        e('v_add_u32 v%d, %d, v%d'%(s.VS,256*R,s.VS))
        s.stamp(14)
        s.ph_switch('P',56,58,0)
        site(0,False); s.ph_vstep(0); s.ph_vstep(1); take()
        site(1,False); s.ph_vstep(2); s.ph_vstep(3); take()
        s.issueK=lambda sl: s.ph_issue(sl,0); s.issueV=lambda sl: s.ph_issue(sl,1)
        s.thr=s.o.get('pthr',0)
        e('%s:'%Lp)
        for h in range(2):
            site(2,True)
            for sl in range(h*C,h*C+C): s.tile(sl,n,rare)
            take()
        e('s_branch %s'%Lp)
        s.rare(rare)
        e('%s:'%Lfl); t0=len(s.t); s.flush(2)
        return Lfl,t0
    def rare(s,rare):
        e=s.e
        for La,Lb in rare:
            e('%s:'%La)
            e('v_max_f32 v19, v19, v16\nv_mov_b32 v24, v19\ns_nop 1\nv_permlane32_swap_b32 v19, v24\nv_max_f32 v19, v19, v24\nv_mov_b32 v24, v19\ns_nop 1\nv_permlane16_swap_b32 v19, v24\nv_max_f32 v16, v19, v24')
            e('v_mul_f32 v24, s67, v16\nv_sub_f32 v25, v17, v24\nv_exp_f32 v25, v25\nv_mov_b32 v17, v24\ns_nop 0\nv_mul_f32 v18, v18, v25')
            e('v_mov_b32_dpp v26, v25 row_newbcast:0 row_mask:0x3 bank_mask:0xf\nv_mov_b32_dpp v26, v25 row_newbcast:8 row_mask:0xc bank_mask:0xf')
            for r in range(4): e('v_mul_f32 v%d, v%d, v26'%(12+r,12+r))
            e('s_branch %s'%Lb)
    def wg_combine(s):
        e=s.e
        e('s_sub_u32 s65, s30, 1\ns_max_i32 s65, s65, 0\ns_mul_i32 s65, s65, 4160\ns_cmp_eq_u32 s30, 1\ns_cselect_b32 s66, 512, 0\ns_cselect_b32 s68, 8, 0\ns_add_u32 s66, s66, s65\ns_add_u32 s68, s68, s65')
        e('v_lshl_add_u32 v19, v0, 3, s66\nv_mov_b32 v20, s68')
        for i in range(4):
            e('ds_read_b64 v[%d:%d], v19 offset:%d\nds_read_b64 v[%d:%d], v20 offset:%d'%(24+2*i,25+2*i,L_PART+i*1040,32+2*i,33+2*i,L_PART+1024+i*1040))
        e('s_lshl_b32 s65, s31, 2\ns_add_u32 s65, s65, s30\ns_lshl_b32 s65, s65, 4\ns_add_u32 s65, s65, s64')
        e('s_lshl_b32 s66, s65, 10\ns_add_u32 s66, s66, %d\ns_lshl_b32 s65, s65, 4\ns_add_u32 s65, s65, %d'%(WS_PO,WS_PML))
        e('v_lshlrev_b32 v19, 4, v0\nv_mov_b32 v20, 0\nv_mov_b32 v13, s73\nv_mov_b32 v15, s73\nv_mov_b32 v41, s73\nv_mov_b32 v43, s73')
        e('s_waitcnt lgkmcnt(0)')
        e('v_max3_f32 v40, v32, v34, v36\nv_max_f32 v40, v40, v38')
        for i in range(4): e('v_sub_f32 v%d, v%d, v40'%(32+2*i,32+2*i))
        for i in range(4): e('v_exp_f32 v%d, v%d'%(32+2*i,32+2*i))
        e('s_nop 0\nv_mul_f32 v12, v32, v24\nv_mul_f32 v14, v32, v25\nv_mul_f32 v42, v32, v33')
        for i in range(1,4): e('v_fmac_f32 v12, v%d, v%d\nv_fmac_f32 v14, v%d, v%d\nv_fmac_f32 v42, v%d, v%d'%(32+2*i,24+2*i,32+2*i,25+2*i,32+2*i,33+2*i))
        e('buffer_store_dwordx4 v[12:15], v19, s[40:43], s66 offen sc1')
        e('s_mov_b64 exec, 1\nbuffer_store_dwordx4 v[40:43], v20, s[40:43], s65 offen sc1\ns_mov_b64 exec, -1')
    def tagpoll(s,loads,tagregs,tmp,pipe=True):
        e=s.e; L=s.lab('poll'); Lx=s.lab('pollx')
        if s.o.get('pp') and pipe:
            X=[l.replace('v[24:27]','v[48:51]').replace('v[28:31]','v[52:55]') for l in loads]
            Y=[l.replace('v[24:27]','v[120:123]').replace('v[28:31]','v[124:127]') for l in loads]
            def chk(d,lab):
                e('v_xor_b32 v%d, s73, v%d'%(tmp,tagregs[0]+d))
                for t in tagregs[1:]: e('v_xor_b32 v%d, s73, v%d\nv_or_b32 v%d, v%d, v%d'%(tmp+1,t+d,tmp,tmp,tmp+1))
                for r in (0,2,4,6): e('v_mov_b32 v%d, v%d'%(24+r,24+d+r))
                e('v_cmp_ne_u32 vcc, 0, v%d\ns_cbranch_vccz %s'%(tmp,lab))
            e('s_mov_b32 s72, 0x200000')
            for l in X: e(l)
            e('s_sleep %d\n%s:'%(s.o['pp'],L))
            for l in Y: e(l)
            e('s_waitcnt vmcnt(2)'); chk(24,Lx)
            for l in X: e(l)
            e('s_waitcnt vmcnt(2)'); chk(96,Lx)
            e('s_sub_u32 s72, s72, 1\ns_cmp_lg_u32 s72, 0\ns_cbranch_scc1 %s\n%s:'%(L,Lx))
            return
        e('s_mov_b32 s72, 0x200000\n%s:'%L)
        for l in loads: e(l)
        e('s_waitcnt vmcnt(0)')
        e('v_xor_b32 v%d, s73, v%d'%(tmp,tagregs[0]))
        for t in tagregs[1:]: e('v_xor_b32 v%d, s73, v%d\nv_or_b32 v%d, v%d, v%d'%(tmp+1,t,tmp,tmp,tmp+1))
        e('v_cmp_ne_u32 vcc, 0, v%d\ns_cbranch_vccz %s'%(tmp,Lx))
        if s.o.get('sleep'): e('s_sleep %d'%s.o['sleep'])
        e('s_sub_u32 s72, s72, 1\ns_cmp_lg_u32 s72, 0\ns_cbranch_scc1 %s\n%s:'%(L,Lx))
    def team_loads(s):
        e=s.e
        e('s_lshr_b32 s65, s64, 2\ns_lshl_b32 s66, s31, 2\ns_add_u32 s65, s65, s66')
        e('s_lshl_b32 s66, s65, 14\ns_and_b32 s68, s64, 3\ns_lshl_b32 s68, s68, 8\ns_add_u32 s66, s66, s68\ns_lshl_b32 s68, s30, 6\ns_add_u32 s66, s66, s68\ns_add_u32 s66, s66, %d'%WS_PO)
        e('s_lshl_b32 s65, s65, 8\ns_add_u32 s65, s65, %d'%WS_PML)
        e('v_and_b32 v19, 15, v0\nv_lshlrev_b32 v20, 4, v19\nv_lshlrev_b32 v19, 10, v19\nv_lshrrev_b32 v21, 4, v0\nv_lshl_add_u32 v19, v21, 4, v19')
        s.tagpoll(['buffer_load_dwordx4 v[24:27], v20, s[40:43], s65 offen sc1','buffer_load_dwordx4 v[28:31], v19, s[40:43], s66 offen sc1'],[25,27,29,31],32)
    def rowred(s,op,regs):
        for ror in (8,4,2,1):
            s.e('s_nop 1')
            for r in regs: s.e('%s_dpp v%d, v%d, v%d row_ror:%d row_mask:0xf bank_mask:0xf'%(op,r,r,r,ror))
    def team_proj(s):
        e=s.e
        e('v_mov_b32 v21, v24'); s.rowred('v_max_f32',[21])
        e('v_sub_f32 v24, v24, v21\nv_exp_f32 v24, v24\ns_nop 0\nv_mul_f32 v26, v26, v24\nv_mul_f32 v28, v28, v24\nv_mul_f32 v30, v30, v24')
        s.rowred('v_add_f32',[26,28,30])
        e('v_rcp_f32 v26, v26\ns_nop 0\nv_mul_f32 v28, v28, v26\nv_mul_f32 v30, v30, v26\nv_cvt_pk_bf16_f32 v28, v28, v28\nv_cvt_pk_bf16_f32 v30, v30, v30')
        for rg in range(2):
            for q in range(4): e('v_and_b32 v%d, v%d, v%d'%(32+4*rg+q,28+2*rg,4+q))
        e('s_nop 1')
        for rg in range(2):
            for cb in range(5):
                r=56+(rg*5+cb)*4; d=100+4*cb
                e('v_mfma_f32_16x16x32_bf16 v[%d:%d], v[%d:%d], v[%d:%d], %s'%(d,d+3,32+4*rg,35+4*rg,r,r+3,'0' if rg==0 else 'v[%d:%d]'%(d,d+3)))
        e('s_mul_i32 s65, s30, 2560\nv_and_b32 v19, 15, v0\nv_lshl_add_u32 v19, v19, 5, s65\nv_bfe_u32 v20, v0, 4, 1\nv_lshl_add_u32 v19, v20, 4, v19')
        e('s_nop 4\ns_mov_b32 exec_hi, 0')
        for cb in range(5): e('ds_write_b128 v19, v[%d:%d] offset:%d'%(100+4*cb,103+4*cb,L_YL+cb*512))
        e('s_mov_b64 exec, -1')
        e('s_cmp_lt_u32 s64, 8\ns_cselect_b32 s69, 1, 0\ns_mul_i32 s65, s69, %d\ns_and_b32 s66, s64, 7\ns_lshl_b32 s68, s31, 3\ns_add_u32 s66, s66, s68\ns_lshl_b32 s66, s66, 6\ns_add_u32 s65, s65, s66\ns_add_u32 s65, s65, %d'%(72*8192,WS_Y))
        e('v_lshlrev_b32 v19, 4, v3\nv_lshrrev_b32 v20, 1, v3\nv_lshlrev_b32 v20, 13, v20\nv_and_b32 v21, 1, v3\nv_lshl_add_u32 v20, v21, 5, v20')
        e('v_mov_b32 v41, s73\nv_mov_b32 v43, s73\nv_mov_b32 v45, s73\nv_mov_b32 v47, s73')
        e('s_waitcnt lgkmcnt(0)\ns_barrier')
        Ls=s.lab('noy')
        e('v_cmp_gt_u32 vcc, 144, v3\ns_and_saveexec_b64 s[70:71], vcc\ns_cbranch_execz %s'%Ls)
        for w in range(4): e('ds_read_b128 v[%d:%d], v19 offset:%d'%(24+4*w,27+4*w,L_YL+w*2560))
        e('s_waitcnt lgkmcnt(0)')
        for r in range(4): e('v_add_f32 v%d, v%d, v%d\nv_add_f32 v%d, v%d, v%d'%(24+r,24+r,28+r,32+r,32+r,36+r))
        for r in range(4): e('v_add_f32 v%d, v%d, v%d'%(40+2*r,24+r,32+r))
        e('buffer_store_dwordx4 v[40:43], v20, s[40:43], s65 offen sc1\nbuffer_store_dwordx4 v[44:47], v20, s[40:43], s65 offen offset:16 sc1')
        e('%s:\ns_mov_b64 exec, s[70:71]'%Ls)
    def final(s):
        e=s.e
        e('s_cmp_ge_u32 s3, 144\ns_cbranch_scc1 %s'%s.end)
        e('s_lshl_b32 s65, s3, 13\ns_add_u32 s65, s65, %d\ns_add_u32 s66, s65, 4096\nv_lshlrev_b32 v19, 4, v3'%WS_Y)
        e('s_mov_b32 s44, s24\ns_mov_b32 s45, s25\ns_mov_b32 s46, 2304\ns_mov_b32 s47, 0x20000')
        e('s_lshl_b32 s68, s30, 5\nv_and_b32 v21, 3, v0\nv_lshl_add_u32 v21, v21, 3, s68')
        s.tagpoll(['buffer_load_dwordx4 v[24:27], v19, s[40:43], s65 offen sc1','buffer_load_dwordx4 v[28:31], v19, s[40:43], s66 offen sc1'],[25,27,29,31],32)
        if s.o['stamp']: e('s_sub_u32 s95, 0x200000, s72'); s.stamp(12)
        e('v_add_f32 v24, v24, v28\nv_add_f32 v25, v26, v30')
        for ror in (4,8):
            e('s_nop 1')
            for r in range(2): e('v_add_f32_dpp v%d, v%d, v%d row_ror:%d row_mask:0xf bank_mask:0xf'%(24+r,24+r,24+r,ror))
        for sw in ('32','16'):
            for r in range(2): e('v_mov_b32 v%d, v%d'%(28+r,24+r))
            e('s_nop 1')
            for r in range(2): e('v_permlane%s_swap_b32 v%d, v%d'%(sw,24+r,28+r))
            for r in range(2): e('v_add_f32 v%d, v%d, v%d'%(24+r,24+r,28+r))
        e('s_mov_b64 exec, 0xf\nds_write_b64 v21, v[24:25] offset:%d\ns_mov_b64 exec, -1'%L_FL)
        e('s_waitcnt lgkmcnt(0)\ns_barrier')
        e('s_cmp_lg_u32 s30, 0\ns_cbranch_scc1 %s'%s.end)
        e('s_mov_b64 exec, 0xff\nv_lshlrev_b32 v19, 2, v0')
        for w in range(4): e('ds_read_b32 v%d, v19 offset:%d'%(24+w,L_FL+32*w))
        e('s_lshl_b32 s65, s3, 4\nv_lshlrev_b32 v19, 1, v0\ns_waitcnt lgkmcnt(0)')
        e('v_add_f32 v24, v24, v25\nv_add_f32 v26, v26, v27\nv_add_f32 v24, v24, v26\nv_cvt_pk_bf16_f32 v24, v24, v24')
        e('buffer_store_short v24, v19, s[44:47], s65 offen')
        L=s.lab('noep')
        e('s_cmp_lg_u32 s3, 0\ns_cbranch_scc1 %s'%L)
        e('s_mov_b64 exec, 1\nv_mov_b32 v19, %d\nv_mov_b32 v20, s73\nbuffer_store_dword v20, v19, s[40:43], 0 offen sc1\n%s:'%(WS_E,L))
    def dryify(s,t0):
        lines='\n'.join(s.t[t0:]).split('\n'); out=[]; i=0
        while i<len(lines):
            l=lines[i]
            if l.startswith('buffer_') or l=='s_barrier':
                j=i
                while j<len(lines) and (lines[j].startswith('buffer_') or lines[j]=='s_barrier'): j+=1
                L=s.lab('skip'); out.append('s_cbranch_execz %s'%L); out+=lines[i:j]; out.append('%s:'%L); i=j; continue
            m=re.match(r's_mov_b64 exec, (-1|1|0x[0-9a-f]+)$',l)
            if m: l='s_and_b64 exec, s[82:83], %s'%m.group(1)
            if l.startswith('s_and_saveexec_b64') and lines[i+1].startswith('s_cbranch_execz'):
                out.append(l); tgt=lines[i+1].split()[1]; L=s.lab('fall')
                out.append('s_cmp_eq_u32 s82, 0\ns_cbranch_scc1 %s\ns_cbranch_execz %s\n%s:'%(L,tgt,L)); i+=2; continue
            out.append(l); i+=1
        s.t[t0:]=out
    def stamp(s,slot,kidx=0,first=False,cnt=False):
        if not s.o['stamp']: return
        e=s.e
        e('s_memrealtime s[92:93]\ns_getreg_b32 s94, hwreg(HW_REG_XCC_ID)\ns_waitcnt lgkmcnt(0)')
        e('s_add_u32 s84, s28, 0x60000000\ns_addc_u32 s85, s29, 0\ns_mov_b32 s86, 0x1000000\ns_mov_b32 s87, 0x20000')
        e('s_lshl_b32 s88, s2, 3\ns_add_u32 s88, s88, s30\ns_lshl_b32 s88, s88, 6\ns_add_u32 s88, s88, %d'%(slot*4))
        e('s_mov_b64 s[78:79], exec\ns_mov_b64 exec, 1\nv_mov_b32 v252, 0\nv_mov_b32 v253, s92')
        e('buffer_store_dword v253, v252, s[84:87], s88 offen')
        if first: e('v_mov_b32 v254, s90\nv_mov_b32 v255, s94\nbuffer_store_dwordx2 v[254:255], v252, s[84:87], s88 offen offset:4')
        if cnt: e('v_mov_b32 v253, s95\nbuffer_store_dword v253, v252, s[84:87], s88 offen offset:4')
        if slot==4: e('v_mov_b32 v253, s95\nbuffer_store_dword v253, v252, s[84:87], s88 offen offset:44')
        e('s_mov_b64 exec, s[78:79]')
    def fused(s):
        e=s.e; R=s.o['R']; s.o['perlane']=1; s.o.setdefault('LA',1); s.step=16384
        k=s.px+NAME+'_kernel' if not s.px else s.px+'fused_kernel'
        e('.text\n.globl %s\n.p2align 8\n.type %s,@function\n%s:'%(k,k,k))
        s.end=s.lab('end'); Lsvc=s.lab('svc'); Lq=s.lab('qc'); Lsv2=s.lab('svc2')
        e('s_cmp_ge_u32 s2, 256\ns_cbranch_scc1 %s'%s.end)
        e('s_load_dwordx16 s[4:19], s[0:1], 0\ns_load_dwordx8 s[20:27], s[0:1], 64\ns_load_dwordx2 s[28:29], s[0:1], 96')
        if s.o['stamp']: e('s_memrealtime s[90:91]\ns_mov_b32 s95, 0')
        e('v_lshrrev_b32 v1, 6, v0\nv_mov_b32 v3, v0\nv_and_b32 v0, 63, v0\nv_readfirstlane_b32 s30, v1')
        e('s_mov_b32 s3, s2\ns_lshr_b32 s31, s2, 4\ns_and_b32 s64, s2, 15\ns_mov_b32 s43, 0x20000\ns_mov_b32 s42, %d\ns_mov_b64 s[82:83], -1'%WS_SIZE)
        e('s_cmp_eq_u32 s30, 4\ns_cbranch_scc1 %s'%Lsvc)
        e('v_lshrrev_b32 v4, 2, v3\nv_and_b32 v5, 3, v3\nv_lshlrev_b32 v5, 4, v5\nv_lshl_add_u32 v5, v4, 13, v5\nv_lshlrev_b32 v4, 1, v4')
        e('s_and_b32 s65, s64, 3\ns_lshl_b32 s65, s65, 7\ns_lshr_b32 s66, s64, 3\ns_lshl_b32 s66, s66, 6\ns_add_u32 s65, s65, s66\ns_lshl_b32 s66, s31, 9\ns_add_u32 s65, s65, s66')
        e('s_mov_b32 s46, %d\ns_mov_b32 s47, s43\ns_mov_b32 s50, 1152\ns_mov_b32 s51, s43'%(576*8192))
        e('s_mov_b32 s34, 0x1000000\ns_mov_b32 s35, s43\ns_mov_b32 s38, s34\ns_mov_b32 s39, s43\ns_mov_b32 s76, 32768')
        e('s_lshl_b32 s60, s64, 20\ns_lshl_b32 s61, s30, 12\ns_add_u32 s60, s60, s61\ns_mov_b32 s61, s60\ns_lshl_b32 s62, s31, 24')
        kk=s.K128
        e('v_lshrrev_b32 v2, 4, v0\nv_lshlrev_b32 v%d, 4, v2\nv_bfe_u32 v2, v0, 2, 2\nv_lshl_add_u32 v%d, v2, 8, v%d\nv_and_b32 v2, 3, v0\nv_lshl_add_u32 v1, v2, 10, v%d'%(kk,kk,kk,kk))
        e('v_and_b32 v2, 1, v0\nv_lshl_add_u32 v%d, v2, 6, v%d\nv_bfe_u32 v2, v0, 1, 1\nv_lshl_add_u32 v%d, v2, 10, v%d\nv_lshlrev_b32 v2, 4, v0'%(kk,kk,kk,kk))
        s.ph_offs('K')
        e('s_and_b32 s66, s64, 4\ns_cmp_eq_u32 s66, 0\ns_waitcnt lgkmcnt(0)')
        e('s_cselect_b32 s44, s20, s10\ns_cselect_b32 s45, s21, s11\ns_cselect_b32 s48, s14, s4\ns_cselect_b32 s49, s15, s5')
        e('s_add_u32 s32, s16, s62\ns_addc_u32 s33, s17, 0\ns_mov_b32 s36, s32\ns_mov_b32 s37, s33')
        halves=[]
        for sl in range(R): halves+=[lambda sl=sl: s.ph_issue(sl,0), lambda sl=sl: s.ph_issue(sl,1)]
        pre0,pre,hk,thr=s.o.get('fill',(0,1,(4,8),4))
        for h in halves[:pre0]: h()
        wb,xb,ab,tb=56,40,24,20
        for i in range(9):
            e('buffer_load_ushort v%d, v4, s[48:51], 0 offen offset:%d'%(xb+i,i*128))
            e('buffer_load_dwordx4 v[%d:%d], v5, s[44:47], s65 offen nt'%(wb+4*i,wb+4*i+3))
            if i<8: e('s_add_u32 s65, s65, %d'%(64*8192))
        for h in halves[pre0:pre0+pre]: h()
        if s.o.get('qst'): e('s_memrealtime s[100:101]')
        e('s_mov_b32 s40, s28\ns_mov_b32 s41, s29\ns_add_u32 s74, s28, %d\ns_addc_u32 s75, s29, 0\ns_load_dword s73, s[74:75], 0'%WS_E)
        e('s_add_u32 s98, s18, s62\ns_addc_u32 s99, s19, 0\ns_lshl_b32 s62, s62, 1')
        e('s_add_u32 s52, s6, s62\ns_addc_u32 s53, s7, 0\ns_add_u32 s54, s8, s62\ns_addc_u32 s55, s9, 0')
        e('s_add_u32 s56, s52, s34\ns_addc_u32 s57, s53, 0\ns_add_u32 s58, s54, s34\ns_addc_u32 s59, s55, 0')
        e('%s:\ns_mov_b32 s66, 0xffff0000'%Lq); t0=len(s.t)
        newer=4*pre; nh=pre0+pre
        for i in range(9):
            e('s_waitcnt vmcnt(%d)'%(newer+2*(8-i)))
            if s.o.get('qst') and i in (0,8): e('s_memrealtime s[%d:%d]'%((84,85) if i==0 else (86,87)))
            if i in hk: halves[nh](); nh+=1; newer+=4
            e('v_lshlrev_b32 v%d, 16, v%d'%(xb+i,xb+i))
            for d in range(4):
                e('v_lshlrev_b32 v%d, 16, v%d\nv_and_b32 v%d, s66, v%d'%(tb,wb+4*i+d,tb+1,wb+4*i+d))
                op='v_mul_f32' if i==0 else 'v_fmac_f32'
                e('%s v%d, v%d, v%d\n%s v%d, v%d, v%d'%(op,ab+2*d,xb+i,tb,op,ab+2*d+1,xb+i,tb+1))
        e('v_lshrrev_b32 v%d, 4, v3\nv_and_b32 v%d, 3, v3\nv_lshlrev_b32 v%d, 5, v%d\nv_lshl_add_u32 v%d, v%d, 7, v%d'%(tb,tb+1,tb+1,tb+1,tb,tb,tb+1))
        for ror in (4,8):
            for j in range(8): e('v_add_f32_dpp v%d, v%d, v%d row_ror:%d row_mask:0xf bank_mask:0xf'%(ab+j,ab+j,ab+j,ror))
        e('ds_write_b128 v%d, v[%d:%d] offset:%d\nds_write_b128 v%d, v[%d:%d] offset:%d'%(tb,ab,ab+3,L_QR,tb,ab+4,ab+7,L_QR+16))
        e('s_waitcnt lgkmcnt(0)')
        if s.o.get('qdry',1): s.dryify(t0); e('s_cbranch_execz %s'%Lsv2)
        e('s_barrier')
        e('s_add_u32 s73, s73, 0x%x'%TAGINC)
        if s.o.get('qst'): e('s_mov_b32 s62, s84\ns_mov_b32 s63, s86')
        s.stamp(0,first=True)
        if s.o.get('qst'):
            e('s_mov_b64 exec, 1\nv_mov_b32 v253, s100\nv_mov_b32 v254, s62\nv_mov_b32 v255, s63\nbuffer_store_dword v253, v252, s[84:87], s88 offen offset:20\nbuffer_store_dwordx2 v[254:255], v252, s[84:87], s88 offen offset:24\ns_mov_b64 exec, -1')
        for n_,h in enumerate(halves[nh:]):
            e('s_waitcnt vmcnt(%d)'%thr); h()
            if n_==0: s.masks()
        s.stamp(11)
        e('s_barrier')
        s.stamp(3)
        Ltail,t0=s.att_phased(); s.stamp(4)
        e('s_barrier')
        q=s.o.get('qst')
        s.wg_combine(); (q or s.stamp(5))
        s.team_loads(); (q or s.stamp(6))
        s.team_proj(); (q or s.stamp(7)); s.final(); s.stamp(10)
        s.dryify(t0)
        e('s_endpgm')
        e('%s:\ns_setprio 3\ns_waitcnt lgkmcnt(0)'%Lsvc)
        e('s_mov_b32 s40, s28\ns_mov_b32 s41, s29\ns_add_u32 s74, s28, %d\ns_addc_u32 s75, s29, 0\ns_load_dword s73, s[74:75], 0'%WS_E)
        if s.o.get('touch'):
            e('s_and_b32 s66, s64, 4\ns_cmp_eq_u32 s66, 0\ns_cselect_b32 s44, s20, s10\ns_cselect_b32 s45, s21, s11\ns_mov_b32 s46, %d\ns_mov_b32 s47, s43'%(576*8192))
            e('s_lshl_b32 s62, s31, 24\ns_add_u32 s32, s16, s62\ns_addc_u32 s33, s17, 0\ns_mov_b32 s34, 0x1000000\ns_mov_b32 s35, s43\ns_lshl_b32 s61, s64, 20')
            e('v_lshlrev_b32 v19, 21, v0\nv_mov_b32 v20, 0\ns_mov_b64 exec, 1')
            if 'k' in s.o['touch']: e('buffer_load_dword v22, v20, s[32:35], s61 offen nt')
            if 'w' in s.o['touch']: e('s_mov_b64 exec, 0x6\nbuffer_load_dword v23, v19, s[44:47], 0 offen nt')
            e('s_mov_b64 exec, -1')
        L=s.lab('notlead')
        e('s_cmp_lg_u32 s64, 0\ns_cbranch_scc1 %s'%L)
        e('s_lshl_b32 s65, s31, 10\ns_add_u32 s65, s65, %d\nv_lshlrev_b32 v19, 8, v0\nv_mov_b32 v20, 0\ns_mov_b64 exec, 0xf'%(WS_CNT))
        e('buffer_store_dword v20, v19, s[40:43], s65 offen sc1\ns_mov_b64 exec, -1\n%s:'%L)
        if s.o.get('qdry',1):
            for r in range(8): e('v_mov_b32 v%d, 0'%(s.VO+r))
            e('s_mov_b64 s[32:33], s[28:29]\ns_mov_b32 s34, 0\ns_mov_b32 s35, s43\ns_mov_b64 s[36:37], s[28:29]\ns_mov_b32 s38, 0\ns_mov_b32 s39, s43\ns_mov_b32 s61, 0\ns_mov_b32 s76, 0')
            e('s_mov_b64 s[82:83], 0\ns_mov_b64 exec, 0\ns_branch %s\n%s:\ns_mov_b64 exec, -1'%(Lq,Lsv2))
        e('s_waitcnt vmcnt(0) lgkmcnt(0)\ns_add_u32 s73, s73, 0x%x'%TAGINC)
        e('s_barrier')
        s.q_finish(24,'sc1')
        s.stamp(12)
        e('s_lshl_b32 s65, s31, 11\nv_lshlrev_b32 v19, 5, v0\nv_lshlrev_b32 v21, 4, v0')
        s.tagpoll(['buffer_load_dwordx4 v[24:27], v19, s[40:43], s65 offen sc1','buffer_load_dwordx4 v[28:31], v19, s[40:43], s65 offen offset:16 sc1'],[25,27,29,31],32,pipe=False)
        e('v_mov_b32 v25, v26\nv_mov_b32 v26, v28\nv_mov_b32 v27, v30')
        e('ds_write_b128 v21, v[24:27] offset:%d\ns_waitcnt lgkmcnt(0)'%L_Q)
        e('s_barrier')
        tl=s.o.get('tlb','')
        if tl:
            def touch(p,off):
                e('s_add_u32 s44, s%d, %s\ns_addc_u32 s45, s%d, 0\ns_load_dword s46, s[44:45], 0'%(p,off,p+1))
            if 's' in tl:
                e('s_lshl_b32 s65, s31, 4\ns_add_u32 s65, s65, s64\ns_lshl_b32 s65, s65, 20'); touch(18,'s65')
                e('s_lshl_b32 s65, s31, 5\ns_add_u32 s65, s65, s64\ns_lshl_b32 s65, s65, 20'); touch(6,'s65'); touch(8,'s65')
                e('s_add_u32 s65, s65, 0x1000000'); touch(6,'s65'); touch(8,'s65')
            if 'b' in tl: e('s_waitcnt lgkmcnt(0)\ns_barrier')
            if 'p' in tl:
                e('s_lshl_b32 s65, s31, 25\ns_add_u32 s65, s65, 0x10f0000')
                for j in range(8):
                    touch(6,'s65'); touch(8,'s65'); e('s_add_u32 s65, s65, 0x200000')
                    if j%2: e('s_waitcnt lgkmcnt(0)')
            if 'o' in tl: e('s_load_dword s46, s[24:25], 0\ns_mov_b32 s65, %d'%WS_Y); touch(28,'s65')
            e('s_waitcnt lgkmcnt(0)')
        e('s_setprio 0\nv_mov_b32 v19, 0\nv_mov_b32 v20, 0\nv_mov_b32 v21, 0\ns_mov_b64 s[82:83], 0\ns_mov_b64 exec, 0\ns_mov_b32 s3, 0\ns_mov_b32 s30, 0\ns_branch %s'%Ltail)
        nv=251
        s.tail(k,nv)
        launch='; @launch grid=(256,1,1) block=(320,1,1) lds=%d'%LDS_SIZE
        return launch,'%s:256:320:%d'%(k,LDS_SIZE),[(k,nv,320)]
    def build(s):
        launch,spec,ks=getattr(s,s.o['mode'])()
        return HDR+launch+'\n.amdgcn_target "amdgcn-amd-amdhsa--gfx950"\n'+'\n'.join(s.t)+'\n',spec,ks
def write(path,**o):
    t,spec,ks=G(**o).build(); open(path,'w').write(t); return spec,ks
if __name__=='__main__':
    o=eval('dict(%s)'%(sys.argv[2] if len(sys.argv)>2 else ''))
    print(write(sys.argv[1],**o))
```

```python
import sys, re, math, struct
NAME='concat_heads__mha_block_cached__gqa_block_cached__decode'
HDR=open('cdna_kernels/%s.s.ref'%NAME).read().split('; Override launch')[0]

WS_Q=0; WS_PO=0x10000; WS_PML=0x110000; WS_Y=0x120000; WS_E=0x240000; WS_CNT=0x241000; WS_SIZE=0x250000
TAGINC=0x9E3779B1
L_Q=0; L_QR=1024; L_PART=3072; L_YL=16384; L_FL=16384+4*2560; L_S=L_FL+256; LDS_SIZE=L_S+32768
CSC=struct.unpack('<I',struct.pack('<f',math.log2(math.e)/math.sqrt(128)))[0]
LOG2E=struct.unpack('<I',struct.pack('<f',math.log2(math.e)))[0]
SCALE=struct.unpack('<I',struct.pack('<f',128**-0.5))[0]

class G:
    def __init__(s, **o):
        s.o=dict(mode='fused', pattern='wg', kfl='nt', vfl='nt', R=4, stamp=False, xcd=False, T=8, tlb='spo', vthr=204, kthr=412, pthr=410, burst=2); s.o.update(o)
        s.t=[]; s.uid=0; s.px=s.o.get('prefix','')
    def e(s,x): s.t.append(x)
    def lab(s,n): s.uid+=1; return 'L_%s%s_%d'%(s.px,n,s.uid)
    def head(s,name,nwg):
        s.e('.text\n.globl %s\n.p2align 8\n.type %s,@function\n%s:'%(name,name,name))
        s.end=s.lab('end')
        s.e('s_cmp_ge_u32 s2, %d\ns_cbranch_scc1 %s'%(nwg,s.end))
        s.e('s_load_dwordx16 s[4:19], s[0:1], 0\ns_load_dwordx8 s[20:27], s[0:1], 64\ns_load_dwordx2 s[28:29], s[0:1], 96')
        if s.o['stamp']: s.e('s_memrealtime s[90:91]\ns_mov_b32 s95, 0')
        s.e('v_lshrrev_b32 v1, 6, v0\nv_mov_b32 v3, v0\nv_and_b32 v0, 63, v0')
        s.e('v_readfirstlane_b32 s30, v1')
        if s.o['xcd']:
            s.e('s_and_b32 s31, s2, 7\ns_lshr_b32 s3, s2, 3\ns_lshl_b32 s31, s31, 5\ns_add_u32 s3, s3, s31')
        else: s.e('s_mov_b32 s3, s2')
        s.e('s_lshr_b32 s31, s3, 4\ns_and_b32 s64, s3, 15')
        s.e('s_waitcnt lgkmcnt(0)')
        s.e('s_mov_b32 s40, s28\ns_mov_b32 s41, s29\ns_mov_b32 s42, %d\ns_mov_b32 s43, 0x20000'%WS_SIZE)
        s.e('s_add_u32 s74, s28, %d\ns_addc_u32 s75, s29, 0\ns_load_dword s73, s[74:75], 0'%WS_E)
    def tail(s,name,nv,ns=102):
        if s.o['stamp']: nv=256
        s.e('%s:\ns_endpgm'%s.end)
        s.e('.section .rodata,"a"\n.p2align 6\n.amdhsa_kernel %s\n  .amdhsa_next_free_vgpr %d\n  .amdhsa_next_free_sgpr %d\n  .amdhsa_accum_offset %d\n  .amdhsa_group_segment_fixed_size 0\n  .amdhsa_kernarg_size 104\n  .amdhsa_user_sgpr_count 2\n  .amdhsa_user_sgpr_kernarg_segment_ptr 1\n  .amdhsa_system_sgpr_workgroup_id_x 1\n.end_amdhsa_kernel'%(name,nv,ns,(nv+3)//4*4))
    def q_issue(s,wb,xb):
        e=s.e
        if s.o.get('qpair',1): e('s_and_b32 s65, s64, 4\ns_cmp_eq_u32 s65, 0')
        else: e('s_cmp_lt_u32 s64, 8')
        e('s_cselect_b32 s44, s20, s10\ns_cselect_b32 s45, s21, s11\ns_cselect_b32 s48, s14, s4\ns_cselect_b32 s49, s15, s5')
        e('s_mov_b32 s46, %d\ns_mov_b32 s47, 0x20000\ns_mov_b32 s50, 1152\ns_mov_b32 s51, 0x20000'%(576*8192))
        if s.o.get('qpair',1): e('s_and_b32 s65, s64, 3\ns_lshl_b32 s65, s65, 7\ns_lshr_b32 s66, s64, 3\ns_lshl_b32 s66, s66, 6\ns_add_u32 s65, s65, s66\ns_lshl_b32 s66, s31, 9\ns_add_u32 s65, s65, s66')
        else: e('s_and_b32 s65, s64, 7\ns_lshl_b32 s65, s65, 6\ns_lshl_b32 s66, s31, 9\ns_add_u32 s65, s65, s66')
        e('v_lshrrev_b32 v4, 2, v3\nv_and_b32 v5, 3, v3\nv_lshlrev_b32 v5, 4, v5\nv_lshl_add_u32 v5, v4, 13, v5\nv_lshlrev_b32 v4, 1, v4')
        for i in range(9):
            e('buffer_load_ushort v%d, v4, s[48:51], 0 offen offset:%d'%(xb+i,i*128))
        for i in range(9):
            e('buffer_load_dwordx4 v[%d:%d], v5, s[44:47], s65 offen %s'%(wb+4*i,wb+4*i+3,s.o.get('qfl','nt')))
            if i<8: e('s_add_u32 s65, s65, %d'%(64*8192))
    def q_compute(s,wb,xb,ab,tb,newer,hooks={}):
        e=s.e
        for j in range(8): e('v_mov_b32 v%d, 0'%(ab+j))
        for i in range(9):
            e('s_waitcnt vmcnt(%d)'%(newer+8-i))
            if s.o.get('qst') and i in (0,8): e('s_memrealtime s[%d:%d]'%((84,85) if i==0 else (86,87)))
            if i in hooks: hooks[i][0](); newer+=hooks[i][1]
            e('v_lshlrev_b32 v%d, 16, v%d'%(xb+i,xb+i))
            for d in range(4):
                e('v_lshlrev_b32 v%d, 16, v%d\nv_and_b32 v%d, 0xffff0000, v%d'%(tb,wb+4*i+d,tb+1,wb+4*i+d))
                e('v_fmac_f32 v%d, v%d, v%d\nv_fmac_f32 v%d, v%d, v%d'%(ab+2*d,xb+i,tb,ab+2*d+1,xb+i,tb+1))
        for ror in (4,8):
            e('s_nop 1')
            for j in range(8): e('v_add_f32_dpp v%d, v%d, v%d row_ror:%d row_mask:0xf bank_mask:0xf'%(ab+j,ab+j,ab+j,ror))
        e('v_lshrrev_b32 v%d, 4, v3\nv_and_b32 v%d, 3, v3\nv_lshlrev_b32 v%d, 5, v%d\nv_lshl_add_u32 v%d, v%d, 7, v%d'%(tb,tb+1,tb+1,tb+1,tb,tb,tb+1))
        e('ds_write_b128 v%d, v[%d:%d] offset:%d\nds_write_b128 v%d, v[%d:%d] offset:%d'%(tb,ab,ab+3,L_QR,tb,ab+4,ab+7,L_QR+16))
        e('s_waitcnt lgkmcnt(0)')
    def q_finish(s,tb,fl):
        e=s.e
        e('v_and_b32 v%d, 31, v0\nv_lshlrev_b32 v%d, 2, v%d\nv_lshrrev_b32 v%d, 5, v0\nv_lshl_add_u32 v%d, v%d, 10, v%d'%(tb,tb,tb,tb+1,tb,tb+1,tb))
        for p in range(8): e('ds_read_b32 v%d, v%d offset:%d'%(tb+2+p,tb,L_QR+p*128))
        if s.o.get('qpair',1): e('s_and_b32 s65, s64, 7\ns_lshl_b32 s65, s65, 1\ns_lshr_b32 s66, s64, 3\ns_add_u32 s65, s65, s66\ns_lshl_b32 s66, s31, 4\ns_add_u32 s65, s65, s66\ns_lshl_b32 s65, s65, 7')
        else: e('s_lshl_b32 s65, s3, 7')
        e('v_and_b32 v%d, 31, v0\nv_lshlrev_b32 v%d, 2, v%d'%(tb,tb,tb))
        e('s_waitcnt lgkmcnt(0)')
        for a,b in ((0,1),(2,3),(4,5),(6,7),(0,2),(4,6),(0,4)): e('v_add_f32 v%d, v%d, v%d'%(tb+2+a,tb+2+a,tb+2+b))
        e('v_mov_b32 v%d, v%d\ns_nop 1\nv_permlane32_swap_b32 v%d, v%d\nv_add_f32 v%d, v%d, v%d'%(tb+3,tb+2,tb+2,tb+3,tb+2,tb+2,tb+3))
        e('s_nop 1\nv_mov_b32_dpp v%d, v%d quad_perm:[1,0,3,2] row_mask:0xf bank_mask:0xf'%(tb+3,tb+2))
        e('v_cvt_pk_bf16_f32 v%d, v%d, v%d\nv_mov_b32 v%d, s73'%(tb+2,tb+2,tb+3,tb+3))
        e('s_mov_b32 exec_lo, 0x55555555\ns_mov_b32 exec_hi, 0')
        e('buffer_store_dwordx2 v[%d:%d], v%d, s[40:43], s65 offen %s'%(tb+2,tb+3,tb,fl))
        e('s_mov_b64 exec, -1')
    RING=96
    def att_setup(s):
        e=s.e
        rot=s.o.get('rot',0)
        if rot==1: e('s_mul_i32 s96, s31, 11\ns_lshr_b32 s96, s96, 5\ns_mul_i32 s96, s96, 3\ns_sub_u32 s96, s31, s96')
        else: e('s_mov_b32 s96, 0')
        e('s_mov_b32 s97, s96\ns_lshl_b32 s66, s31, 1\ns_sub_u32 s66, s66, 1')
        for r,(kb,vb) in enumerate(((32,36),(52,54),(56,58))):
            e('s_add_u32 s65, s66, s97\ns_cmp_eq_u32 s97, 0\ns_cselect_b32 s65, s31, s65')
            e('s_cselect_b32 s%d, s16, s6\ns_cselect_b32 s%d, s17, s7\ns_cselect_b32 s%d, s18, s8\ns_cselect_b32 s%d, s19, s9'%(kb,kb+1,vb,vb+1))
            e('s_lshl_b32 s65, s65, 24\ns_add_u32 s%d, s%d, s65\ns_addc_u32 s%d, s%d, 0\ns_add_u32 s%d, s%d, s65\ns_addc_u32 s%d, s%d, 0'%(kb,kb,kb+1,kb+1,vb,vb,vb+1,vb+1))
            if r<2: e('s_add_u32 s97, s97, 1\ns_cmp_eq_u32 s97, 3\ns_cselect_b32 s97, 0, s97')
        e('s_mov_b32 s34, 0x1000000\ns_mov_b32 s35, 0x20000\ns_mov_b32 s38, 0x1000000\ns_mov_b32 s39, 0x20000')
        if s.o['pattern']=='wg': e('s_lshl_b32 s60, s64, 20'); s.step=16384
        else: e('s_lshl_b32 s60, s64, 14'); s.step=262144
        e('s_lshl_b32 s65, s30, 12\ns_add_u32 s60, s60, s65\ns_mov_b32 s61, s60')
        if s.o.get('xm'):
            s.xorval('s64'); e('s_xor_b32 s69, s61, s68')
        e('v_and_b32 v1, 3, v0\nv_lshlrev_b32 v1, 10, v1\nv_bfe_u32 v2, v0, 2, 2\nv_lshl_add_u32 v1, v2, 8, v1\nv_lshrrev_b32 v2, 4, v0\nv_lshl_add_u32 v1, v2, 4, v1')
        e('v_lshlrev_b32 v2, 4, v0')
    def xorval(s,m):
        a,b=s.o['xm']
        s.e('s_mul_i32 s68, %s, %d\ns_mul_i32 s66, s31, %d\ns_add_u32 s68, s68, s66\ns_and_b32 s68, s68, 63\ns_mul_i32 s68, s68, %d'%(m,a,b,s.step))
    def masks(s):
        e=s.e
        e('v_and_b32 v8, 1, v0\nv_cmp_eq_u32 vcc, 1, v8\nv_mov_b32 v9, 0xffff\nv_mov_b32 v10, 0xffff0000\nv_cndmask_b32 v9, v9, v10, vcc\nv_bfe_u32 v8, v0, 1, 2')
        for q in range(4): e('v_cmp_eq_u32 vcc, %d, v8\ns_nop 1\nv_cndmask_b32 v%d, 0, v9, vcc'%(q,4+q))
    def issueK(s,sl):
        for i in range(4):
            r=s.RING+sl*32+4*i
            s.e('buffer_load_dwordx4 v[%d:%d], v1, s[32:35], %s offen offset:%d %s'%(r,r+3,'s69' if s.o.get('xm') else 's61',64*i,s.o['kfl']))
    def issueV(s,sl):
        for i in range(4):
            r=s.RING+sl*32+16+4*i
            s.e('buffer_load_dwordx4 v[%d:%d], v2, s[36:39], %s offen offset:%d %s'%(r,r+3,'s69' if s.o.get('xm') else 's61',1024*i,s.o['vfl']))
        s.e('s_add_u32 s61, s61, %d'%s.step)
        if s.o.get('xm'): s.e('s_xor_b32 s69, s61, s68')
    def wo_issue(s):
        e=s.e
        e('s_cmp_lt_u32 s64, 8\ns_cselect_b32 s44, s22, s12\ns_cselect_b32 s45, s23, s13')
        e('s_and_b32 s65, s64, 7\ns_lshl_b32 s65, s65, 5\ns_lshl_b32 s66, s31, 8\ns_add_u32 s65, s65, s66\ns_mul_i32 s65, s65, 1152')
        e('s_add_u32 s44, s44, s65\ns_addc_u32 s45, s45, 0\ns_sub_u32 s46, %d, s65\ns_mov_b32 s47, 0x20000'%(4096*1152))
        e('s_mul_i32 s65, s30, %d'%(8*1152))
        e('v_lshrrev_b32 v26, 4, v0\nv_mul_u32_u24 v26, 2304, v26\nv_and_b32 v27, 15, v0\nv_lshl_add_u32 v26, v27, 4, v26')
        for cb in range(5):
            if cb==4: e('s_mov_b32 exec_lo, 0x00ff00ff\ns_mov_b32 exec_hi, 0x00ff00ff')
            for rg in range(2):
                r=56+(rg*5+cb)*4
                e('buffer_load_dwordx4 v[%d:%d], v26, s[44:47], s65 offen offset:%d nt'%(r,r+3,rg*1152+cb*256))
        e('s_mov_b64 exec, -1')
    def q_operand(s,first):
        e=s.e
        if not first: e('s_add_u32 s96, s96, 1\ns_cmp_eq_u32 s96, 3\ns_cselect_b32 s96, 0, s96')
        e('s_add_u32 s66, s96, 1\ns_lshl_b32 s66, s66, 8\ns_cmp_eq_u32 s96, 0\ns_cselect_b32 s65, 256, 0\ns_cselect_b32 s66, 0, s66')
        e('v_bfe_u32 v19, v0, 3, 1\nv_mul_u32_u24 v19, s65, v19\nv_lshrrev_b32 v24, 4, v0\nv_lshl_add_u32 v24, v24, 4, s66\nv_add_u32 v19, v19, v24')
        for i in range(4): e('ds_read_b128 v[%d:%d], v19 offset:%d'%(40+4*i,43+4*i,L_Q+64*i))
        e('v_mov_b32 v12, 0\nv_mov_b32 v13, 0\nv_mov_b32 v14, 0\nv_mov_b32 v15, 0\nv_mov_b32 v16, 0xff800000\nv_mov_b32 v17, 0xff800000\nv_mov_b32 v18, 0')
        e('s_waitcnt lgkmcnt(0)')
    def tile(s,sl,n,rare):
        e=s.e
        kb=s.RING+sl*32; vb=kb+16
        if s.o.get('split'):
            e('s_waitcnt vmcnt(%d)'%(s.newer(sl,0)+1)); n=s.newer(sl,1)+1
            for c in range(2):
                for rb in range(2):
                    d=24+4*rb; r=kb+4*(rb*2+c)
                    e('v_mfma_f32_16x16x32_bf16 v[%d:%d], v[%d:%d], v[%d:%d], %s'%(d,d+3,r,r+3,s.Q128+4*c,s.Q128+4*c+3,'0' if c==0 else 'v[%d:%d]'%(d,d+3)))
            s.issueK(sl); e('s_nop 3')
            for r in range(4): e('v_cndmask_b32 v%d, v%d, v%d, s[70:71]'%(8+r,24+2*r,25+2*r))
            for r in range(4): e('v_add_f32_dpp v%d, v%d, v%d quad_perm:[1,0,3,2] row_mask:0xf bank_mask:0xf'%(8+r,8+r,8+r))
        else:
            e('s_waitcnt vmcnt(%d)'%n)
            for i in range(4):
                e('v_mfma_f32_16x16x32_bf16 v[8:11], v[%d:%d], v[%d:%d], %s'%(kb+4*i,kb+4*i+3,40+4*i,43+4*i,'0' if i==0 else 'v[8:11]'))
            s.issueK(sl)
            e('s_nop 3')
        s.rnd(8)
        La=s.lab('rare'); Lb=s.lab('back'); rare.append((La,Lb))
        e('v_max3_f32 v19, v8, v9, v10\nv_max_f32 v19, v19, v11\nv_cmp_gt_f32 vcc, v19, v16\ns_cbranch_vccnz %s\n%s:'%(La,Lb))
        for r in range(4): e('v_fma_f32 v%d, v%d, s67, -v17'%(20+r,8+r))
        for r in range(4): e('v_exp_f32 v%d, v%d'%(20+r,20+r))
        e('v_add_f32 v18, v18, v20\nv_cvt_pk_bf16_f32 v20, v20, v20')
        for r in range(1,4): e('v_add_f32 v18, v18, v%d\nv_cvt_pk_bf16_f32 v%d, v%d, v%d'%(20+r,20+r,20+r,20+r))
        for r in range(4):
            for q in range(4): e('v_and_b32 v%d, v%d, v%d'%(24+4*r+q,20+r,4+q))
        e('s_waitcnt vmcnt(%d)'%n)
        e('s_nop 0')
        for r in range(4):
            e('v_mfma_f32_16x16x32_bf16 v[12:15], v[%d:%d], v[%d:%d], v[12:15]'%(24+4*r,27+4*r,vb+4*r,vb+4*r+3))
        s.issueV(sl)
    def att_loop(s,wo_prefetch):
        e=s.e; R=s.o['R']; n=4+8*(R-1); P=s.o.get('P',0); C=s.o.get('C',2); NI=64//R
        Lr=s.lab('round'); Ll=s.lab('loop'); Ln=s.lab('nosw'); rare=[]; Lfl=s.lab('flush'); Ldyn=s.lab('dyn')
        e('s_mov_b32 s62, 0\ns_mov_b32 s67, 0x%x'%CSC)
        s.q_operand(True)
        e('%s:\ns_mov_b32 s63, %d'%(Lr,NI))
        if P: e('s_cmp_eq_u32 s62, 2\ns_cselect_b32 s63, %d, s63\ns_cselect_b32 s76, 0, 1'%(NI-1-P))
        else: e('s_mov_b32 s76, 1')
        e('%s:'%Ll)
        e('s_cmp_lg_u32 s63, s76\ns_cbranch_scc1 %s'%Ln)
        e('s_mov_b32 s32, s52\ns_mov_b32 s33, s53\ns_mov_b32 s36, s54\ns_mov_b32 s37, s55\ns_mov_b64 s[52:53], s[56:57]\ns_mov_b64 s[54:55], s[58:59]\ns_mov_b32 s61, s60')
        if s.o.get('xm'): e('s_xor_b32 s69, s61, s68')
        e('s_cmp_lt_u32 s62, 2\ns_cselect_b32 s34, s34, 0\ns_mov_b32 s38, s34')
        e('%s:'%Ln)
        for sl in range(R): s.tile(sl,n,rare)
        e('s_sub_u32 s63, s63, 1\ns_cmp_lg_u32 s63, 0\ns_cbranch_scc1 %s'%Ll)
        if P:
            TK=s.RING+32*R; Lp=s.lab('dloop'); LA=s.o.get('LA',2); NS=R//C; PL=s.o.get('perlane',0)
            G_=16 if PL else 64; total=G_*P*R//C; sh=4 if PL else 6
            assert LA in (1,2) and (LA==1 or NS%2==0)
            e('s_cmp_lg_u32 s62, 2\ns_cbranch_scc1 %s'%Lfl)
            if PL: e('s_mov_b32 s77, s64\ns_lshl_b32 s81, s31, 2\ns_add_u32 s81, s81, s30\ns_lshl_b32 s81, s81, 8\ns_lshl_b32 s89, s30, 12\ns_add_u32 s89, s89, %d'%((NI-P)*R*s.step))
            else: e('s_lshl_b32 s77, s64, 2\ns_add_u32 s77, s77, s30\ns_lshl_b32 s81, s31, 10')
            e('s_mov_b32 s80, 0x7fffffff\ns_add_u32 s81, s81, %d\nv_mov_b32 v%d, 0'%(WS_CNT,TK+2))
            if LA==2: e('s_add_u32 s65, s77, %d\nv_mov_b32 v%d, s65'%(G_,TK+1))
            s.stamp(14)
            e('%s:'%Lp)
            msh=20 if s.o['pattern']=='wg' else 14
            for h in range(NS):
                tk=TK+(h%2 if LA==2 else 0); tkn=TK+((h+1)%2 if LA==2 else 0)
                e('s_cmp_lt_u32 s77, %d\ns_cselect_b32 s34, 0x1000000, 0\ns_cselect_b32 s65, s80, %d\ns_mov_b32 s38, s34\ns_min_u32 s80, s80, s65'%(total,R//C))
                e('s_cmp_eq_u32 s80, 0\ns_cbranch_scc1 %s\ns_sub_u32 s80, s80, 1'%Lfl)
                e('v_mov_b32 v%d, 1\ns_lshr_b32 s65, s77, %d\ns_and_b32 s65, s65, 63\ns_mul_i32 s65, s65, %d'%(tk,sh,C*s.step))
                if PL: e('s_add_u32 s61, s65, s89\ns_and_b32 s65, s77, 15')
                else: e('s_add_u32 s61, s65, %d\ns_and_b32 s65, s77, 3\ns_lshl_b32 s65, s65, 12\ns_add_u32 s61, s61, s65\ns_bfe_u32 s65, s77, 0x40002'%((NI-P)*R*s.step))
                if s.o.get('xm'): s.xorval('s65')
                e('s_lshl_b32 s65, s65, %d\ns_add_u32 s61, s61, s65'%msh)
                if s.o.get('xm'): e('s_xor_b32 s69, s61, s68')
                e('s_mov_b64 exec, 1\nbuffer_atomic_add v%d, v%d, s[40:43], s81 offen sc0 sc1\ns_mov_b64 exec, -1'%(tk,TK+2))
                for sl in range(h*C,h*C+C): s.tile(sl,n+1,rare)
                e('s_waitcnt vmcnt(%d)\nv_readfirstlane_b32 s77, v%d'%(8*C if LA==1 else 16*C+1,tkn))
                if s.o['stamp']: e('s_add_u32 s95, s95, 1')
            e('s_branch %s'%Lp)
        e('%s:'%Lfl)
        e('v_mov_b32 v19, v18\ns_nop 1\nv_permlane32_swap_b32 v18, v19\nv_add_f32 v18, v18, v19\nv_mov_b32 v19, v18\ns_nop 1\nv_permlane16_swap_b32 v18, v19\nv_add_f32 v18, v18, v19')
        e('s_lshl_b32 s65, s96, 2\ns_add_u32 s65, s65, s30\ns_mul_i32 s65, s65, 1040')
        e('v_lshrrev_b32 v19, 5, v0\nv_lshlrev_b32 v19, 9, v19\nv_and_b32 v20, 15, v0\nv_lshl_add_u32 v19, v20, 5, v19\nv_bfe_u32 v20, v0, 4, 1\nv_lshl_add_u32 v19, v20, 4, v19\nv_add_u32 v19, s65, v19')
        e('v_bfe_u32 v20, v0, 3, 1\nv_lshl_add_u32 v20, v20, 3, s65\nv_mov_b32 v22, v17\nv_mov_b32 v23, v18')
        e('ds_write_b128 v19, v[12:15] offset:%d\nds_write_b64 v20, v[22:23] offset:%d'%(L_PART,L_PART+1024))
        Ld=s.lab('done')
        e('s_add_u32 s62, s62, 1\ns_cmp_eq_u32 s62, 3\ns_cbranch_scc1 %s'%Ld)
        e('s_waitcnt lgkmcnt(0)')
        if s.o['stamp']:
            La=s.lab('st'); Lb=s.lab('st')
            e('s_cmp_eq_u32 s62, 1\ns_cbranch_scc1 %s'%La); s.stamp(9); e('s_branch %s\n%s:'%(Lb,La)); s.stamp(8); e('%s:'%Lb)
        if wo_prefetch:
            Lw=s.lab('nowo')
            e('s_cmp_lg_u32 s62, 1\ns_cbranch_scc1 %s'%Lw); s.wo_issue(); e('%s:'%Lw)
        s.q_operand(False)
        e('s_branch %s'%Lr)
        for La,Lb in rare:
            e('%s:'%La)
            e('v_max_f32 v19, v19, v16\nv_mov_b32 v24, v19\ns_nop 1\nv_permlane32_swap_b32 v19, v24\nv_max_f32 v19, v19, v24\nv_mov_b32 v24, v19\ns_nop 1\nv_permlane16_swap_b32 v19, v24\nv_max_f32 v16, v19, v24')
            e('v_mul_f32 v24, s67, v16\nv_sub_f32 v25, v17, v24\nv_exp_f32 v25, v25\nv_mov_b32 v17, v24\ns_nop 0\nv_mul_f32 v18, v18, v25')
            e('v_mov_b32_dpp v26, v25 row_newbcast:0 row_mask:0x3 bank_mask:0xf\nv_mov_b32_dpp v26, v25 row_newbcast:8 row_mask:0xc bank_mask:0xf')
            for r in range(4): e('v_mul_f32 v%d, v%d, v26'%(12+r,12+r))
            e('s_branch %s'%Lb)
        e('%s:'%Ld)
    thr=0; VO=228; Q128=236; VS=244; MA0=245; S2=246; MA1=227; K128=250
    def ph_setup(s):
        e=s.e
        e('s_lshl_b32 s65, s31, 24\ns_add_u32 s32, s16, s65\ns_addc_u32 s33, s17, 0\ns_add_u32 s98, s18, s65\ns_addc_u32 s99, s19, 0')
        e('s_lshl_b32 s65, s31, 25\ns_add_u32 s52, s6, s65\ns_addc_u32 s53, s7, 0\ns_add_u32 s54, s8, s65\ns_addc_u32 s55, s9, 0')
        e('s_add_u32 s56, s52, 0x1000000\ns_addc_u32 s57, s53, 0\ns_add_u32 s58, s54, 0x1000000\ns_addc_u32 s59, s55, 0')
        e('s_mov_b32 s34, 0x1000000\ns_mov_b32 s35, 0x20000\ns_mov_b32 s36, s32\ns_mov_b32 s37, s33\ns_mov_b32 s38, 0x1000000\ns_mov_b32 s39, 0x20000')
        s.step=16384
        e('s_lshl_b32 s60, s64, 20\ns_lshl_b32 s65, s30, 12\ns_add_u32 s60, s60, s65\ns_mov_b32 s61, s60\ns_mov_b32 s76, 32768')
        e('v_and_b32 v1, 3, v0\nv_lshlrev_b32 v1, 10, v1\nv_bfe_u32 v2, v0, 2, 2\nv_lshl_add_u32 v1, v2, 8, v1\nv_lshrrev_b32 v2, 4, v0\nv_lshl_add_u32 v1, v2, 4, v1')
        k=s.K128
        e('v_lshlrev_b32 v%d, 4, v2\nv_and_b32 v2, 1, v0\nv_lshl_add_u32 v%d, v2, 6, v%d\nv_bfe_u32 v2, v0, 1, 1\nv_lshl_add_u32 v%d, v2, 10, v%d\nv_bfe_u32 v2, v0, 2, 2\nv_lshl_add_u32 v%d, v2, 8, v%d'%(k,k,k,k,k,k,k))
        e('v_lshlrev_b32 v2, 4, v0')
        s.ph_offs('K')
    def ph_offs(s,kind):
        e=s.e
        k128=[(s.K128,o) for o in (0,128,2048,2176)]; k64=[(1,64*i) for i in range(4)]; vl=[(2,1024*i) for i in range(4)]
        km=s.o.get('kmix','ab')
        ka={'a':k128,'b':k64}[km[0]]; kb={'a':k128,'b':k64}[km[1]]
        sets={'K':ka+[(r,o+16384) for r,o in kb],'V':vl+[(r,o+16384) for r,o in vl],'P':k64+vl}[kind]
        if s.o.get('split'):
            sets={'K':k128+[(r,o+16384) for r,o in k128],'V':sets,'P':k128+vl}[kind]
            e('s_mov_b32 s68, 0x%x\ns_mov_b32 s96, 0x%x'%(0x0f0f0f0f if kind=='V' else 0x55555555, 0x55555555 if kind=='K' else 0x0f0f0f0f))
        for i,(r,o) in enumerate(sets):
            e('v_add_u32 v%d, %d, v%d'%(s.VO+i,o,r) if o else 'v_mov_b32 v%d, v%d'%(s.VO+i,r))
    def nops(s,sl,half):
        sp=s.o.get('split')
        return 8 if (sp and sp[(sl*2+half)%len(sp)]=='1') else 4
    def newer(s,sl,half):
        R=s.o['R']; seq=[(a,h) for a in range(R) for h in range(2)]; k=seq.index((sl,half))
        return sum(s.nops(*seq[(k+j)%(2*R)]) for j in range(1,2*R))
    def ph_issue(s,sl,half):
        if s.nops(sl,half)==8:
            m=(68,69) if half==0 else (96,97)
            for p in range(2):
                s.e('s_mov_b32 exec_lo, s%d\ns_mov_b32 exec_hi, s%d'%(m[0],m[0]) if p==0 else 's_not_b64 exec, exec')
                for i in range(4):
                    r=s.RING+sl*32+half*16+4*i
                    s.e('buffer_load_dwordx4 v[%d:%d], v%d, %s, s61 offen nt'%(r,r+3,s.VO+half*4+i,'s[36:39]' if half else 's[32:35]'))
            s.e('s_mov_b64 exec, -1')
            if half: s.e('s_add_u32 s61, s61, s76')
            return
        for i in range(4):
            r=s.RING+sl*32+half*16+4*i
            if s.thr and i%(s.thr//100 or s.o.get('burst',4))==0: s.e('s_waitcnt vmcnt(%d)'%(s.thr%100))
            s.e('buffer_load_dwordx4 v[%d:%d], v%d, %s, s61 offen nt'%(r,r+3,s.VO+half*4+i,'s[36:39]' if half else 's[32:35]'))
        if half: s.e('s_add_u32 s61, s61, s76')
    def ph_switch(s,kind,a,b,start):
        e=s.e
        e('s_mov_b32 s32, s%d\ns_mov_b32 s33, s%d\ns_mov_b32 s36, s%d\ns_mov_b32 s37, s%d'%(a,a+1,b,b+1))
        e('s_add_u32 s61, s60, %d\ns_mov_b32 s76, %d'%(start,16384 if kind=='P' else 32768))
        s.ph_offs(kind)
    def ph_q(s,ty):
        e=s.e
        e('v_lshrrev_b32 v24, 4, v0\nv_lshlrev_b32 v24, 4, v24')
        if ty==0: e('v_bfe_u32 v19, v0, 3, 1\nv_lshl_add_u32 v24, v19, 8, v24')
        e('v_and_b32 v19, 1, v0\nv_lshl_add_u32 v25, v19, 6, v24')
        o=L_Q+(0 if ty==0 else (ty+1)*256)
        for i in range(0 if s.o.get('split') else 4): e('ds_read_b128 v[%d:%d], v24 offset:%d'%(40+4*i,43+4*i,o+64*i))
        for c in range(2): e('ds_read_b128 v[%d:%d], v25 offset:%d'%(s.Q128+4*c,s.Q128+4*c+3,o+128*c))
        e('v_mov_b32 v16, 0xff800000')
        s.ph_saddr(ty)
        e('s_waitcnt lgkmcnt(0)')
    def ph_saddr(s,ty):
        e=s.e
        e('s_lshl_b32 s65, s30, 13\ns_add_u32 s65, s65, %d\nv_lshrrev_b32 v19, 4, v0\nv_lshl_add_u32 v%d, v19, 4, s65'%(L_S+(64 if ty==2 else 0),s.VS))
        if ty==0: e('v_bfe_u32 v19, v0, 3, 1\nv_lshl_add_u32 v%d, v19, 6, v%d'%(s.VS,s.VS))
    def ph_loop(s,niter,body,switch):
        e=s.e; L=s.lab('pl'); Ln=s.lab('pn')
        e('s_mov_b32 s63, %d\n%s:'%(niter,L))
        if switch:
            e('s_cmp_lg_u32 s63, 1\ns_cbranch_scc1 %s'%Ln); switch(); e('%s:'%Ln)
        for sl in range(s.o['R']): body(sl)
        e('v_add_u32 v%d, %d, v%d\ns_sub_u32 s63, s63, 1\ns_cmp_lg_u32 s63, 0\ns_cbranch_scc1 %s'%(s.VS,256*s.o['R'],s.VS,L))
    def ph_kstep(s,sl):
        e=s.e; km='aa' if s.o.get('split') else s.o.get('kmix','ab')
        for half in range(2):
            kb=s.RING+sl*32+16*half; S=8 if half==0 else 32
            e('s_waitcnt vmcnt(%d)'%s.newer(sl,half))
            if km[half]=='a':
                for c in range(2):
                    for rb in range(2):
                        d=24+4*rb; r=kb+4*(rb*2+c)
                        e('v_mfma_f32_16x16x32_bf16 v[%d:%d], v[%d:%d], v[%d:%d], %s'%(d,d+3,r,r+3,s.Q128+4*c,s.Q128+4*c+3,'0' if c==0 else 'v[%d:%d]'%(d,d+3)))
                s.thr=s.o.get('kthr',0)
                s.ph_issue(sl,half); e('s_nop 3')
                for r in range(4): e('v_add_f32_dpp v%d, v%d, v%d quad_perm:[1,0,3,2] row_mask:0xf bank_mask:0xf'%(S+r,25+2*r,24+2*r))
            else:
                for i in range(4):
                    e('v_mfma_f32_16x16x32_bf16 v[%d:%d], v[%d:%d], v[%d:%d], %s'%(S,S+3,kb+4*i,kb+4*i+3,40+4*i,43+4*i,'0' if i==0 else 'v[%d:%d]'%(S,S+3)))
                s.thr=s.o.get('kthr',0)
                s.ph_issue(sl,half); e('s_nop 3')
            s.rnd(S)
            e('v_max3_f32 v16, v%d, v%d, v16\nv_max3_f32 v16, v%d, v%d, v16'%(S,S+1,S+2,S+3))
            e('s_mov_b64 exec, s[70:71]\nds_write_b128 v%d, v[%d:%d] offset:%d\ns_mov_b64 exec, -1'%(s.VS,S,S+3,(sl*2+half)*128))
    def rnd(s,S):
        if not s.o.get('mimic',1): return
        e=s.e
        for ps in range(2):
            e('v_cvt_pk_bf16_f32 v36, v%d, v%d\nv_cvt_pk_bf16_f32 v37, v%d, v%d'%(S,S+1,S+2,S+3))
            e('v_lshlrev_b32 v%d, 16, v36\nv_and_b32 v%d, s69, v36\nv_lshlrev_b32 v%d, 16, v37\nv_and_b32 v%d, s69, v37'%(S,S+1,S+2,S+3))
            if ps==0:
                for r in range(4): e('v_mul_f32 v%d, s62, v%d'%(S+r,S+r))
    def ph_kend(s,dst):
        e=s.e
        e('v_mov_b32 v19, v16\ns_nop 1\nv_permlane32_swap_b32 v16, v19\nv_max_f32 v16, v16, v19\nv_mov_b32 v19, v16\ns_nop 1\nv_permlane16_swap_b32 v16, v19\nv_max_f32 v16, v16, v19\ns_nop 1')
        e('v_mov_b32_dpp v%d, v16 row_newbcast:0 row_mask:0xf bank_mask:0x3\nv_mov_b32_dpp v%d, v16 row_newbcast:8 row_mask:0xf bank_mask:0xc'%(dst,dst))
    def ph_vstart(s,ty,src):
        e=s.e
        e('v_mov_b32 v16, v%d\nv_mul_f32 v17, s67, v%d\nv_mov_b32 v18, 0\nv_mov_b32 v12, 0\nv_mov_b32 v13, 0\nv_mov_b32 v14, 0\nv_mov_b32 v15, 0'%(src,src))
        s.ph_saddr(ty)
    def ph_vstep(s,sl):
        e=s.e; n=4+8*(s.o['R']-1)
        e('ds_read_b128 v[8:11], v%d offset:%d\nds_read_b128 v[%d:%d], v%d offset:%d'%(s.VS,sl*256,s.S2,s.S2+3,s.VS,sl*256+128))
        for half in range(2):
            vb=s.RING+sl*32+16*half; S=8 if half==0 else s.S2
            e('s_waitcnt lgkmcnt(%d)'%(1-half))
            for r in range(4): e('v_fma_f32 v%d, v%d, s67, -v17'%(20+r,S+r))
            for r in range(4): e('v_exp_f32 v%d, v%d'%(20+r,20+r))
            for r in range(4): e('v_add_f32 v18, v18, v%d\nv_cvt_pk_bf16_f32 v%d, v%d, v%d'%(20+r,20+r,20+r,20+r))
            for r in range(4):
                for q in range(4): e('v_and_b32 v%d, v%d, v%d'%(24+4*r+q,20+r,4+q))
            e('s_waitcnt vmcnt(%d)\ns_nop 0'%s.newer(sl,half))
            for r in range(4):
                e('v_mfma_f32_16x16x32_bf16 v[12:15], v[%d:%d], v[%d:%d], v[12:15]'%(24+4*r,27+4*r,vb+4*r,vb+4*r+3))
            s.thr=s.o.get('vthr',0)
            s.ph_issue(sl,half)
    def flush(s,ty):
        e=s.e
        e('v_mov_b32 v19, v18\ns_nop 1\nv_permlane32_swap_b32 v18, v19\nv_add_f32 v18, v18, v19\nv_mov_b32 v19, v18\ns_nop 1\nv_permlane16_swap_b32 v18, v19\nv_add_f32 v18, v18, v19')
        e('s_mul_i32 s65, s30, 1040\ns_add_u32 s65, s65, %d'%(ty*4160))
        e('v_lshrrev_b32 v19, 5, v0\nv_lshlrev_b32 v19, 9, v19\nv_and_b32 v20, 15, v0\nv_lshl_add_u32 v19, v20, 5, v19\nv_bfe_u32 v20, v0, 4, 1\nv_lshl_add_u32 v19, v20, 4, v19\nv_add_u32 v19, s65, v19')
        e('v_bfe_u32 v20, v0, 3, 1\nv_lshl_add_u32 v20, v20, 3, s65\nv_mov_b32 v22, v17\nv_mov_b32 v23, v18')
        e('ds_write_b128 v19, v[12:15] offset:%d\nds_write_b64 v20, v[22:23] offset:%d\ns_waitcnt lgkmcnt(0)'%(L_PART,L_PART+1024))
    def att_phased(s):
        e=s.e; R=s.o['R']; C=2; n=4+8*(R-1); T=s.o.get('T',16); assert R==4
        NF=32//R; Ns=(64-T)//2; assert Ns%R==0; NS_=Ns//R
        TK=s.RING+32*R; total=16*T//C; rare=[]; Lfl=s.lab('flush'); Lp=s.lab('dloop')
        def draw(): e('v_mov_b32 v%d, 1\ns_mov_b64 exec, 1\nbuffer_atomic_add v%d, v%d, s[40:43], s81 offen sc0 sc1\ns_mov_b64 exec, -1'%(TK,TK,TK+1))
        def take():
            e('s_waitcnt vmcnt(16)\nv_readfirstlane_b32 s77, v%d'%TK)
            if s.o['stamp']: e('s_add_u32 s95, s95, 1')
        def site(k,inpool):
            e('s_cmp_lt_u32 s77, %d\ns_cselect_b32 s34, 0x1000000, 0\ns_cselect_b32 s65, s80, %d\ns_mov_b32 s38, s34\ns_min_u32 s80, s80, s65'%(total,k))
            if inpool: e('s_cmp_eq_u32 s80, 0\ns_cbranch_scc1 %s\ns_sub_u32 s80, s80, 1'%Lfl)
            e('s_lshr_b32 s65, s77, 4\ns_and_b32 s65, s65, 31\ns_lshl_b32 s65, s65, 15\ns_add_u32 s61, s65, s89\ns_and_b32 s65, s77, 15\ns_lshl_b32 s65, s65, 20\ns_add_u32 s61, s61, s65')
            draw()
        e('s_mov_b32 s67, 0x%x\ns_mov_b32 s70, 0x01010101\ns_mov_b32 s71, 0x01010101\ns_mov_b32 s62, 0x%x\ns_mov_b32 s69, 0xffff0000'%(LOG2E if s.o.get('mimic',1) else CSC,SCALE))
        s.ph_q(0); s.ph_loop(NF,s.ph_kstep,lambda: s.ph_switch('V',98,98,0)); s.ph_kend(s.MA0); s.stamp(8)
        s.ph_vstart(0,s.MA0); s.ph_loop(NF,s.ph_vstep,lambda: s.ph_switch('K',52,52,0)); s.flush(0); s.stamp(9)
        s.wo_issue()
        s.ph_q(1); s.ph_loop(NF,s.ph_kstep,lambda: s.ph_switch('K',56,56,0)); s.ph_kend(s.MA0)
        s.ph_q(2); s.ph_loop(NS_,s.ph_kstep,lambda: s.ph_switch('V',54,54,0)); s.ph_kend(s.MA1); s.stamp(13)
        s.ph_vstart(1,s.MA0); s.ph_loop(NF,s.ph_vstep,lambda: s.ph_switch('V',58,58,0)); s.flush(1)
        if 'b' in s.o.get('tlb',''): e('s_barrier')
        s.ph_vstart(2,s.MA1); s.ph_loop(NS_-2,s.ph_vstep,None)
        e('s_lshl_b32 s81, s31, 2\ns_add_u32 s81, s81, s30\ns_lshl_b32 s81, s81, 8\ns_add_u32 s81, s81, %d'%WS_CNT)
        e('s_lshl_b32 s89, s30, 12\ns_add_u32 s89, s89, %d\ns_mov_b32 s80, 0x7fffffff\nv_mov_b32 v%d, 0'%(2*Ns*16384,TK+1))
        s.ph_vstep(0); s.ph_vstep(1); draw(); s.ph_vstep(2); s.ph_vstep(3); take()
        e('v_add_u32 v%d, %d, v%d'%(s.VS,256*R,s.VS))
        s.stamp(14)
        s.ph_switch('P',56,58,0)
        site(0,False); s.ph_vstep(0); s.ph_vstep(1); take()
        site(1,False); s.ph_vstep(2); s.ph_vstep(3); take()
        s.issueK=lambda sl: s.ph_issue(sl,0); s.issueV=lambda sl: s.ph_issue(sl,1)
        s.thr=s.o.get('pthr',0)
        e('%s:'%Lp)
        for h in range(2):
            site(2,True)
            for sl in range(h*C,h*C+C): s.tile(sl,n,rare)
            take()
        e('s_branch %s'%Lp)
        s.rare(rare)
        e('%s:'%Lfl); t0=len(s.t); s.flush(2)
        return Lfl,t0
    def rare(s,rare):
        e=s.e
        for La,Lb in rare:
            e('%s:'%La)
            e('v_max_f32 v19, v19, v16\nv_mov_b32 v24, v19\ns_nop 1\nv_permlane32_swap_b32 v19, v24\nv_max_f32 v19, v19, v24\nv_mov_b32 v24, v19\ns_nop 1\nv_permlane16_swap_b32 v19, v24\nv_max_f32 v16, v19, v24')
            e('v_mul_f32 v24, s67, v16\nv_sub_f32 v25, v17, v24\nv_exp_f32 v25, v25\nv_mov_b32 v17, v24\ns_nop 0\nv_mul_f32 v18, v18, v25')
            e('v_mov_b32_dpp v26, v25 row_newbcast:0 row_mask:0x3 bank_mask:0xf\nv_mov_b32_dpp v26, v25 row_newbcast:8 row_mask:0xc bank_mask:0xf')
            for r in range(4): e('v_mul_f32 v%d, v%d, v26'%(12+r,12+r))
            e('s_branch %s'%Lb)
    def wg_combine(s):
        e=s.e
        e('s_sub_u32 s65, s30, 1\ns_max_i32 s65, s65, 0\ns_mul_i32 s65, s65, 4160\ns_cmp_eq_u32 s30, 1\ns_cselect_b32 s66, 512, 0\ns_cselect_b32 s68, 8, 0\ns_add_u32 s66, s66, s65\ns_add_u32 s68, s68, s65')
        e('v_lshl_add_u32 v19, v0, 3, s66\nv_mov_b32 v20, s68')
        for i in range(4):
            e('ds_read_b64 v[%d:%d], v19 offset:%d\nds_read_b64 v[%d:%d], v20 offset:%d'%(24+2*i,25+2*i,L_PART+i*1040,32+2*i,33+2*i,L_PART+1024+i*1040))
        e('s_lshl_b32 s65, s31, 2\ns_add_u32 s65, s65, s30\ns_lshl_b32 s65, s65, 4\ns_add_u32 s65, s65, s64')
        e('s_lshl_b32 s66, s65, 10\ns_add_u32 s66, s66, %d\ns_lshl_b32 s65, s65, 4\ns_add_u32 s65, s65, %d'%(WS_PO,WS_PML))
        e('v_lshlrev_b32 v19, 4, v0\nv_mov_b32 v20, 0\nv_mov_b32 v13, s73\nv_mov_b32 v15, s73\nv_mov_b32 v41, s73\nv_mov_b32 v43, s73')
        e('s_waitcnt lgkmcnt(0)')
        e('v_max3_f32 v40, v32, v34, v36\nv_max_f32 v40, v40, v38')
        for i in range(4): e('v_sub_f32 v%d, v%d, v40'%(32+2*i,32+2*i))
        for i in range(4): e('v_exp_f32 v%d, v%d'%(32+2*i,32+2*i))
        e('s_nop 0\nv_mul_f32 v12, v32, v24\nv_mul_f32 v14, v32, v25\nv_mul_f32 v42, v32, v33')
        for i in range(1,4): e('v_fmac_f32 v12, v%d, v%d\nv_fmac_f32 v14, v%d, v%d\nv_fmac_f32 v42, v%d, v%d'%(32+2*i,24+2*i,32+2*i,25+2*i,32+2*i,33+2*i))
        e('buffer_store_dwordx4 v[12:15], v19, s[40:43], s66 offen sc1')
        e('s_mov_b64 exec, 1\nbuffer_store_dwordx4 v[40:43], v20, s[40:43], s65 offen sc1\ns_mov_b64 exec, -1')
    def tagpoll(s,loads,tagregs,tmp,pipe=True):
        e=s.e; L=s.lab('poll'); Lx=s.lab('pollx')
        if s.o.get('pp') and pipe:
            X=[l.replace('v[24:27]','v[48:51]').replace('v[28:31]','v[52:55]') for l in loads]
            Y=[l.replace('v[24:27]','v[120:123]').replace('v[28:31]','v[124:127]') for l in loads]
            def chk(d,lab):
                e('v_xor_b32 v%d, s73, v%d'%(tmp,tagregs[0]+d))
                for t in tagregs[1:]: e('v_xor_b32 v%d, s73, v%d\nv_or_b32 v%d, v%d, v%d'%(tmp+1,t+d,tmp,tmp,tmp+1))
                for r in (0,2,4,6): e('v_mov_b32 v%d, v%d'%(24+r,24+d+r))
                e('v_cmp_ne_u32 vcc, 0, v%d\ns_cbranch_vccz %s'%(tmp,lab))
            e('s_mov_b32 s72, 0x200000')
            for l in X: e(l)
            e('s_sleep %d\n%s:'%(s.o['pp'],L))
            for l in Y: e(l)
            e('s_waitcnt vmcnt(2)'); chk(24,Lx)
            for l in X: e(l)
            e('s_waitcnt vmcnt(2)'); chk(96,Lx)
            e('s_sub_u32 s72, s72, 1\ns_cmp_lg_u32 s72, 0\ns_cbranch_scc1 %s\n%s:'%(L,Lx))
            return
        e('s_mov_b32 s72, 0x200000\n%s:'%L)
        for l in loads: e(l)
        e('s_waitcnt vmcnt(0)')
        e('v_xor_b32 v%d, s73, v%d'%(tmp,tagregs[0]))
        for t in tagregs[1:]: e('v_xor_b32 v%d, s73, v%d\nv_or_b32 v%d, v%d, v%d'%(tmp+1,t,tmp,tmp,tmp+1))
        e('v_cmp_ne_u32 vcc, 0, v%d\ns_cbranch_vccz %s'%(tmp,Lx))
        if s.o.get('sleep'): e('s_sleep %d'%s.o['sleep'])
        e('s_sub_u32 s72, s72, 1\ns_cmp_lg_u32 s72, 0\ns_cbranch_scc1 %s\n%s:'%(L,Lx))
    def team_loads(s):
        e=s.e
        e('s_lshr_b32 s65, s64, 2\ns_lshl_b32 s66, s31, 2\ns_add_u32 s65, s65, s66')
        e('s_lshl_b32 s66, s65, 14\ns_and_b32 s68, s64, 3\ns_lshl_b32 s68, s68, 8\ns_add_u32 s66, s66, s68\ns_lshl_b32 s68, s30, 6\ns_add_u32 s66, s66, s68\ns_add_u32 s66, s66, %d'%WS_PO)
        e('s_lshl_b32 s65, s65, 8\ns_add_u32 s65, s65, %d'%WS_PML)
        e('v_and_b32 v19, 15, v0\nv_lshlrev_b32 v20, 4, v19\nv_lshlrev_b32 v19, 10, v19\nv_lshrrev_b32 v21, 4, v0\nv_lshl_add_u32 v19, v21, 4, v19')
        s.tagpoll(['buffer_load_dwordx4 v[24:27], v20, s[40:43], s65 offen sc1','buffer_load_dwordx4 v[28:31], v19, s[40:43], s66 offen sc1'],[25,27,29,31],32)
    def rowred(s,op,regs):
        for ror in (8,4,2,1):
            s.e('s_nop 1')
            for r in regs: s.e('%s_dpp v%d, v%d, v%d row_ror:%d row_mask:0xf bank_mask:0xf'%(op,r,r,r,ror))
    def team_proj(s):
        e=s.e
        e('v_mov_b32 v21, v24'); s.rowred('v_max_f32',[21])
        e('v_sub_f32 v24, v24, v21\nv_exp_f32 v24, v24\ns_nop 0\nv_mul_f32 v26, v26, v24\nv_mul_f32 v28, v28, v24\nv_mul_f32 v30, v30, v24')
        s.rowred('v_add_f32',[26,28,30])
        e('v_rcp_f32 v26, v26\ns_nop 0\nv_mul_f32 v28, v28, v26\nv_mul_f32 v30, v30, v26\nv_cvt_pk_bf16_f32 v28, v28, v28\nv_cvt_pk_bf16_f32 v30, v30, v30')
        for rg in range(2):
            for q in range(4): e('v_and_b32 v%d, v%d, v%d'%(32+4*rg+q,28+2*rg,4+q))
        e('s_nop 1')
        for rg in range(2):
            for cb in range(5):
                r=56+(rg*5+cb)*4; d=100+4*cb
                e('v_mfma_f32_16x16x32_bf16 v[%d:%d], v[%d:%d], v[%d:%d], %s'%(d,d+3,32+4*rg,35+4*rg,r,r+3,'0' if rg==0 else 'v[%d:%d]'%(d,d+3)))
        e('s_mul_i32 s65, s30, 2560\nv_and_b32 v19, 15, v0\nv_lshl_add_u32 v19, v19, 5, s65\nv_bfe_u32 v20, v0, 4, 1\nv_lshl_add_u32 v19, v20, 4, v19')
        e('s_nop 4\ns_mov_b32 exec_hi, 0')
        for cb in range(5): e('ds_write_b128 v19, v[%d:%d] offset:%d'%(100+4*cb,103+4*cb,L_YL+cb*512))
        e('s_mov_b64 exec, -1')
        e('s_cmp_lt_u32 s64, 8\ns_cselect_b32 s69, 1, 0\ns_mul_i32 s65, s69, %d\ns_and_b32 s66, s64, 7\ns_lshl_b32 s68, s31, 3\ns_add_u32 s66, s66, s68\ns_lshl_b32 s66, s66, 6\ns_add_u32 s65, s65, s66\ns_add_u32 s65, s65, %d'%(72*8192,WS_Y))
        e('v_lshlrev_b32 v19, 4, v3\nv_lshrrev_b32 v20, 1, v3\nv_lshlrev_b32 v20, 13, v20\nv_and_b32 v21, 1, v3\nv_lshl_add_u32 v20, v21, 5, v20')
        e('v_mov_b32 v41, s73\nv_mov_b32 v43, s73\nv_mov_b32 v45, s73\nv_mov_b32 v47, s73')
        e('s_waitcnt lgkmcnt(0)\ns_barrier')
        Ls=s.lab('noy')
        e('v_cmp_gt_u32 vcc, 144, v3\ns_and_saveexec_b64 s[70:71], vcc\ns_cbranch_execz %s'%Ls)
        for w in range(4): e('ds_read_b128 v[%d:%d], v19 offset:%d'%(24+4*w,27+4*w,L_YL+w*2560))
        e('s_waitcnt lgkmcnt(0)')
        for r in range(4): e('v_add_f32 v%d, v%d, v%d\nv_add_f32 v%d, v%d, v%d'%(24+r,24+r,28+r,32+r,32+r,36+r))
        for r in range(4): e('v_add_f32 v%d, v%d, v%d'%(40+2*r,24+r,32+r))
        e('buffer_store_dwordx4 v[40:43], v20, s[40:43], s65 offen sc1\nbuffer_store_dwordx4 v[44:47], v20, s[40:43], s65 offen offset:16 sc1')
        e('%s:\ns_mov_b64 exec, s[70:71]'%Ls)
    def final(s):
        e=s.e
        e('s_cmp_ge_u32 s3, 144\ns_cbranch_scc1 %s'%s.end)
        e('s_lshl_b32 s65, s3, 13\ns_add_u32 s65, s65, %d\ns_add_u32 s66, s65, 4096\nv_lshlrev_b32 v19, 4, v3'%WS_Y)
        e('s_mov_b32 s44, s24\ns_mov_b32 s45, s25\ns_mov_b32 s46, 2304\ns_mov_b32 s47, 0x20000')
        e('s_lshl_b32 s68, s30, 5\nv_and_b32 v21, 3, v0\nv_lshl_add_u32 v21, v21, 3, s68')
        s.tagpoll(['buffer_load_dwordx4 v[24:27], v19, s[40:43], s65 offen sc1','buffer_load_dwordx4 v[28:31], v19, s[40:43], s66 offen sc1'],[25,27,29,31],32)
        if s.o['stamp']: e('s_sub_u32 s95, 0x200000, s72'); s.stamp(12)
        e('v_add_f32 v24, v24, v28\nv_add_f32 v25, v26, v30')
        for ror in (4,8):
            e('s_nop 1')
            for r in range(2): e('v_add_f32_dpp v%d, v%d, v%d row_ror:%d row_mask:0xf bank_mask:0xf'%(24+r,24+r,24+r,ror))
        for sw in ('32','16'):
            for r in range(2): e('v_mov_b32 v%d, v%d'%(28+r,24+r))
            e('s_nop 1')
            for r in range(2): e('v_permlane%s_swap_b32 v%d, v%d'%(sw,24+r,28+r))
            for r in range(2): e('v_add_f32 v%d, v%d, v%d'%(24+r,24+r,28+r))
        e('s_mov_b64 exec, 0xf\nds_write_b64 v21, v[24:25] offset:%d\ns_mov_b64 exec, -1'%L_FL)
        e('s_waitcnt lgkmcnt(0)\ns_barrier')
        e('s_cmp_lg_u32 s30, 0\ns_cbranch_scc1 %s'%s.end)
        e('s_mov_b64 exec, 0xff\nv_lshlrev_b32 v19, 2, v0')
        for w in range(4): e('ds_read_b32 v%d, v19 offset:%d'%(24+w,L_FL+32*w))
        e('s_lshl_b32 s65, s3, 4\nv_lshlrev_b32 v19, 1, v0\ns_waitcnt lgkmcnt(0)')
        e('v_add_f32 v24, v24, v25\nv_add_f32 v26, v26, v27\nv_add_f32 v24, v24, v26\nv_cvt_pk_bf16_f32 v24, v24, v24')
        e('buffer_store_short v24, v19, s[44:47], s65 offen')
        L=s.lab('noep')
        e('s_cmp_lg_u32 s3, 0\ns_cbranch_scc1 %s'%L)
        e('s_mov_b64 exec, 1\nv_mov_b32 v19, %d\nv_mov_b32 v20, s73\nbuffer_store_dword v20, v19, s[40:43], 0 offen sc1\n%s:'%(WS_E,L))
    def dryify(s,t0):
        lines='\n'.join(s.t[t0:]).split('\n'); out=[]; i=0
        while i<len(lines):
            l=lines[i]
            if l.startswith('buffer_') or l=='s_barrier':
                j=i
                while j<len(lines) and (lines[j].startswith('buffer_') or lines[j]=='s_barrier'): j+=1
                L=s.lab('skip'); out.append('s_cbranch_execz %s'%L); out+=lines[i:j]; out.append('%s:'%L); i=j; continue
            m=re.match(r's_mov_b64 exec, (-1|1|0x[0-9a-f]+)$',l)
            if m: l='s_and_b64 exec, s[82:83], %s'%m.group(1)
            if l.startswith('s_and_saveexec_b64') and lines[i+1].startswith('s_cbranch_execz'):
                out.append(l); tgt=lines[i+1].split()[1]; L=s.lab('fall')
                out.append('s_cmp_eq_u32 s82, 0\ns_cbranch_scc1 %s\ns_cbranch_execz %s\n%s:'%(L,tgt,L)); i+=2; continue
            out.append(l); i+=1
        s.t[t0:]=out
    def stamp(s,slot,kidx=0,first=False,cnt=False):
        if not s.o['stamp']: return
        e=s.e
        e('s_memrealtime s[92:93]\ns_getreg_b32 s94, hwreg(HW_REG_XCC_ID)\ns_waitcnt lgkmcnt(0)')
        e('s_add_u32 s84, s28, 0x60000000\ns_addc_u32 s85, s29, 0\ns_mov_b32 s86, 0x1000000\ns_mov_b32 s87, 0x20000')
        e('s_lshl_b32 s88, s2, 3\ns_add_u32 s88, s88, s30\ns_lshl_b32 s88, s88, 6\ns_add_u32 s88, s88, %d'%(slot*4))
        e('s_mov_b64 s[78:79], exec\ns_mov_b64 exec, 1\nv_mov_b32 v252, 0\nv_mov_b32 v253, s92')
        e('buffer_store_dword v253, v252, s[84:87], s88 offen')
        if first: e('v_mov_b32 v254, s90\nv_mov_b32 v255, s94\nbuffer_store_dwordx2 v[254:255], v252, s[84:87], s88 offen offset:4')
        if cnt: e('v_mov_b32 v253, s95\nbuffer_store_dword v253, v252, s[84:87], s88 offen offset:4')
        if slot==4: e('v_mov_b32 v253, s95\nbuffer_store_dword v253, v252, s[84:87], s88 offen offset:44')
        e('s_mov_b64 exec, s[78:79]')
    def fused(s):
        e=s.e; R=s.o['R']; s.o['perlane']=1; s.o.setdefault('LA',1); s.step=16384
        k=s.px+NAME+'_kernel' if not s.px else s.px+'fused_kernel'
        e('.text\n.globl %s\n.p2align 8\n.type %s,@function\n%s:'%(k,k,k))
        s.end=s.lab('end'); Lsvc=s.lab('svc'); Lq=s.lab('qc'); Lsv2=s.lab('svc2')
        e('s_cmp_ge_u32 s2, 256\ns_cbranch_scc1 %s'%s.end)
        e('s_load_dwordx16 s[4:19], s[0:1], 0\ns_load_dwordx8 s[20:27], s[0:1], 64\ns_load_dwordx2 s[28:29], s[0:1], 96')
        if s.o['stamp']: e('s_memrealtime s[90:91]\ns_mov_b32 s95, 0')
        e('v_lshrrev_b32 v1, 6, v0\nv_mov_b32 v3, v0\nv_and_b32 v0, 63, v0\nv_readfirstlane_b32 s30, v1')
        e('s_mov_b32 s3, s2\ns_lshr_b32 s31, s2, 4\ns_and_b32 s64, s2, 15\ns_mov_b32 s43, 0x20000\ns_mov_b32 s42, %d\ns_mov_b64 s[82:83], -1'%WS_SIZE)
        e('s_cmp_eq_u32 s30, 4\ns_cbranch_scc1 %s'%Lsvc)
        e('v_lshrrev_b32 v4, 2, v3\nv_and_b32 v5, 3, v3\nv_lshlrev_b32 v5, 4, v5\nv_lshl_add_u32 v5, v4, 13, v5\nv_lshlrev_b32 v4, 1, v4')
        e('s_and_b32 s65, s64, 3\ns_lshl_b32 s65, s65, 7\ns_lshr_b32 s66, s64, 3\ns_lshl_b32 s66, s66, 6\ns_add_u32 s65, s65, s66\ns_lshl_b32 s66, s31, 9\ns_add_u32 s65, s65, s66')
        e('s_mov_b32 s46, %d\ns_mov_b32 s47, s43\ns_mov_b32 s50, 1152\ns_mov_b32 s51, s43'%(576*8192))
        e('s_mov_b32 s34, 0x1000000\ns_mov_b32 s35, s43\ns_mov_b32 s38, s34\ns_mov_b32 s39, s43\ns_mov_b32 s76, 32768')
        e('s_lshl_b32 s60, s64, 20\ns_lshl_b32 s61, s30, 12\ns_add_u32 s60, s60, s61\ns_mov_b32 s61, s60\ns_lshl_b32 s62, s31, 24')
        kk=s.K128
        e('v_lshrrev_b32 v2, 4, v0\nv_lshlrev_b32 v%d, 4, v2\nv_bfe_u32 v2, v0, 2, 2\nv_lshl_add_u32 v%d, v2, 8, v%d\nv_and_b32 v2, 3, v0\nv_lshl_add_u32 v1, v2, 10, v%d'%(kk,kk,kk,kk))
        e('v_and_b32 v2, 1, v0\nv_lshl_add_u32 v%d, v2, 6, v%d\nv_bfe_u32 v2, v0, 1, 1\nv_lshl_add_u32 v%d, v2, 10, v%d\nv_lshlrev_b32 v2, 4, v0'%(kk,kk,kk,kk))
        s.ph_offs('K')
        e('s_and_b32 s66, s64, 4\ns_cmp_eq_u32 s66, 0\ns_waitcnt lgkmcnt(0)')
        e('s_cselect_b32 s44, s20, s10\ns_cselect_b32 s45, s21, s11\ns_cselect_b32 s48, s14, s4\ns_cselect_b32 s49, s15, s5')
        e('s_add_u32 s32, s16, s62\ns_addc_u32 s33, s17, 0\ns_mov_b32 s36, s32\ns_mov_b32 s37, s33')
        halves=[]
        for sl in range(R): halves+=[lambda sl=sl: s.ph_issue(sl,0), lambda sl=sl: s.ph_issue(sl,1)]
        pre0,pre,hk,thr=s.o.get('fill',(0,1,(4,8),4))
        for h in halves[:pre0]: h()
        wb,xb,ab,tb=56,40,24,20
        for i in range(9):
            e('buffer_load_ushort v%d, v4, s[48:51], 0 offen offset:%d'%(xb+i,i*128))
            e('buffer_load_dwordx4 v[%d:%d], v5, s[44:47], s65 offen nt'%(wb+4*i,wb+4*i+3))
            if i<8: e('s_add_u32 s65, s65, %d'%(64*8192))
        for h in halves[pre0:pre0+pre]: h()
        if s.o.get('qst'): e('s_memrealtime s[100:101]')
        e('s_mov_b32 s40, s28\ns_mov_b32 s41, s29\ns_add_u32 s74, s28, %d\ns_addc_u32 s75, s29, 0\ns_load_dword s73, s[74:75], 0'%WS_E)
        e('s_add_u32 s98, s18, s62\ns_addc_u32 s99, s19, 0\ns_lshl_b32 s62, s62, 1')
        e('s_add_u32 s52, s6, s62\ns_addc_u32 s53, s7, 0\ns_add_u32 s54, s8, s62\ns_addc_u32 s55, s9, 0')
        e('s_add_u32 s56, s52, s34\ns_addc_u32 s57, s53, 0\ns_add_u32 s58, s54, s34\ns_addc_u32 s59, s55, 0')
        e('%s:\ns_mov_b32 s66, 0xffff0000'%Lq); t0=len(s.t)
        newer=4*pre; nh=pre0+pre
        for i in range(9):
            e('s_waitcnt vmcnt(%d)'%(newer+2*(8-i)))
            if s.o.get('qst') and i in (0,8): e('s_memrealtime s[%d:%d]'%((84,85) if i==0 else (86,87)))
            if i in hk: halves[nh](); nh+=1; newer+=4
            e('v_lshlrev_b32 v%d, 16, v%d'%(xb+i,xb+i))
            for d in range(4):
                e('v_lshlrev_b32 v%d, 16, v%d\nv_and_b32 v%d, s66, v%d'%(tb,wb+4*i+d,tb+1,wb+4*i+d))
                op='v_mul_f32' if i==0 else 'v_fmac_f32'
                e('%s v%d, v%d, v%d\n%s v%d, v%d, v%d'%(op,ab+2*d,xb+i,tb,op,ab+2*d+1,xb+i,tb+1))
        e('v_lshrrev_b32 v%d, 4, v3\nv_and_b32 v%d, 3, v3\nv_lshlrev_b32 v%d, 5, v%d\nv_lshl_add_u32 v%d, v%d, 7, v%d'%(tb,tb+1,tb+1,tb+1,tb,tb,tb+1))
        for ror in (4,8):
            for j in range(8): e('v_add_f32_dpp v%d, v%d, v%d row_ror:%d row_mask:0xf bank_mask:0xf'%(ab+j,ab+j,ab+j,ror))
        e('ds_write_b128 v%d, v[%d:%d] offset:%d\nds_write_b128 v%d, v[%d:%d] offset:%d'%(tb,ab,ab+3,L_QR,tb,ab+4,ab+7,L_QR+16))
        e('s_waitcnt lgkmcnt(0)')
        if s.o.get('qdry',1): s.dryify(t0); e('s_cbranch_execz %s'%Lsv2)
        e('s_barrier')
        e('s_add_u32 s73, s73, 0x%x'%TAGINC)
        if s.o.get('qst'): e('s_mov_b32 s62, s84\ns_mov_b32 s63, s86')
        s.stamp(0,first=True)
        if s.o.get('qst'):
            e('s_mov_b64 exec, 1\nv_mov_b32 v253, s100\nv_mov_b32 v254, s62\nv_mov_b32 v255, s63\nbuffer_store_dword v253, v252, s[84:87], s88 offen offset:20\nbuffer_store_dwordx2 v[254:255], v252, s[84:87], s88 offen offset:24\ns_mov_b64 exec, -1')
        for n_,h in enumerate(halves[nh:]):
            e('s_waitcnt vmcnt(%d)'%thr); h()
            if n_==0: s.masks()
        s.stamp(11)
        e('s_barrier')
        s.stamp(3)
        Ltail,t0=s.att_phased(); s.stamp(4)
        e('s_barrier')
        q=s.o.get('qst')
        s.wg_combine(); (q or s.stamp(5))
        s.team_loads(); (q or s.stamp(6))
        s.team_proj(); (q or s.stamp(7)); s.final(); s.stamp(10)
        s.dryify(t0)
        e('s_endpgm')
        e('%s:\ns_setprio 3\ns_waitcnt lgkmcnt(0)'%Lsvc)
        e('s_mov_b32 s40, s28\ns_mov_b32 s41, s29\ns_add_u32 s74, s28, %d\ns_addc_u32 s75, s29, 0\ns_load_dword s73, s[74:75], 0'%WS_E)
        t0_=s.o.get('tlb0','')
        if 'k' in t0_: e('s_lshl_b32 s65, s2, 20\ns_add_u32 s44, s16, s65\ns_addc_u32 s45, s17, 0\ns_load_dword s46, s[44:45], 0')
        if 'w' in t0_:
            e('s_and_b32 s66, s64, 4\ns_cmp_eq_u32 s66, 0\ns_cselect_b32 s48, s20, s10\ns_cselect_b32 s49, s21, s11')
            e('s_add_u32 s44, s48, 0x200000\ns_addc_u32 s45, s49, 0\ns_load_dword s46, s[44:45], 0\ns_add_u32 s44, s48, 0x400000\ns_addc_u32 s45, s49, 0\ns_load_dword s46, s[44:45], 0')
        if 'q' in t0_: e('s_load_dword s46, s[28:29], 0')
        if s.o.get('touch'):
            e('s_and_b32 s66, s64, 4\ns_cmp_eq_u32 s66, 0\ns_cselect_b32 s44, s20, s10\ns_cselect_b32 s45, s21, s11\ns_mov_b32 s46, %d\ns_mov_b32 s47, s43'%(576*8192))
            e('s_lshl_b32 s62, s31, 24\ns_add_u32 s32, s16, s62\ns_addc_u32 s33, s17, 0\ns_mov_b32 s34, 0x1000000\ns_mov_b32 s35, s43\ns_lshl_b32 s61, s64, 20')
            e('v_lshlrev_b32 v19, 21, v0\nv_mov_b32 v20, 0\ns_mov_b64 exec, 1')
            if 'k' in s.o['touch']: e('buffer_load_dword v22, v20, s[32:35], s61 offen nt')
            if 'w' in s.o['touch']: e('s_mov_b64 exec, 0x6\nbuffer_load_dword v23, v19, s[44:47], 0 offen nt')
            e('s_mov_b64 exec, -1')
        L=s.lab('notlead')
        e('s_cmp_lg_u32 s64, 0\ns_cbranch_scc1 %s'%L)
        e('s_lshl_b32 s65, s31, 10\ns_add_u32 s65, s65, %d\nv_lshlrev_b32 v19, 8, v0\nv_mov_b32 v20, 0\ns_mov_b64 exec, 0xf'%(WS_CNT))
        e('buffer_store_dword v20, v19, s[40:43], s65 offen sc1\ns_mov_b64 exec, -1\n%s:'%L)
        if s.o.get('qdry',1):
            for r in range(8): e('v_mov_b32 v%d, 0'%(s.VO+r))
            e('s_mov_b64 s[32:33], s[28:29]\ns_mov_b32 s34, 0\ns_mov_b32 s35, s43\ns_mov_b64 s[36:37], s[28:29]\ns_mov_b32 s38, 0\ns_mov_b32 s39, s43\ns_mov_b32 s61, 0\ns_mov_b32 s76, 0')
            e('s_mov_b64 s[82:83], 0\ns_mov_b64 exec, 0\ns_branch %s\n%s:\ns_mov_b64 exec, -1'%(Lq,Lsv2))
        e('s_waitcnt vmcnt(0) lgkmcnt(0)\ns_add_u32 s73, s73, 0x%x'%TAGINC)
        e('s_barrier')
        s.q_finish(24,'sc1')
        s.stamp(12)
        e('s_lshl_b32 s65, s31, 11\nv_lshlrev_b32 v19, 5, v0\nv_lshlrev_b32 v21, 4, v0')
        s.tagpoll(['buffer_load_dwordx4 v[24:27], v19, s[40:43], s65 offen sc1','buffer_load_dwordx4 v[28:31], v19, s[40:43], s65 offen offset:16 sc1'],[25,27,29,31],32,pipe=False)
        e('v_mov_b32 v25, v26\nv_mov_b32 v26, v28\nv_mov_b32 v27, v30')
        e('ds_write_b128 v21, v[24:27] offset:%d\ns_waitcnt lgkmcnt(0)'%L_Q)
        e('s_barrier')
        tl=s.o.get('tlb','')
        if tl:
            def touch(p,off):
                e('s_add_u32 s44, s%d, %s\ns_addc_u32 s45, s%d, 0\ns_load_dword s46, s[44:45], 0'%(p,off,p+1))
            if 's' in tl:
                e('s_lshl_b32 s65, s31, 4\ns_add_u32 s65, s65, s64\ns_lshl_b32 s65, s65, 20'); touch(18,'s65')
                e('s_lshl_b32 s65, s31, 5\ns_add_u32 s65, s65, s64\ns_lshl_b32 s65, s65, 20'); touch(6,'s65'); touch(8,'s65')
                e('s_add_u32 s65, s65, 0x1000000'); touch(6,'s65'); touch(8,'s65')
            if 'w' in tl:
                e('s_cmp_lt_u32 s64, 8\ns_cselect_b32 s48, s22, s12\ns_cselect_b32 s49, s23, s13')
                e('s_and_b32 s65, s64, 7\ns_lshl_b32 s65, s65, 5\ns_lshl_b32 s66, s31, 8\ns_add_u32 s65, s65, s66\ns_mul_i32 s65, s65, 1152'); touch(48,'s65')
                e('s_add_u32 s65, s65, %d'%(32*1152-4)); touch(48,'s65'); e('s_waitcnt lgkmcnt(0)')
            if 'b' in tl: e('s_waitcnt lgkmcnt(0)\ns_barrier')
            if 'p' in tl:
                e('s_lshl_b32 s65, s31, 25\ns_add_u32 s65, s65, 0x10f0000')
                for j in range(8):
                    touch(6,'s65'); touch(8,'s65'); e('s_add_u32 s65, s65, 0x200000')
                    if j%2: e('s_waitcnt lgkmcnt(0)')
            if 'o' in tl: e('s_load_dword s46, s[24:25], 0\ns_mov_b32 s65, %d'%WS_Y); touch(28,'s65')
            e('s_waitcnt lgkmcnt(0)')
        e('s_setprio 0\nv_mov_b32 v19, 0\nv_mov_b32 v20, 0\nv_mov_b32 v21, 0\ns_mov_b64 s[82:83], 0\ns_mov_b64 exec, 0\ns_mov_b32 s3, 0\ns_mov_b32 s30, 0\ns_branch %s'%Ltail)
        nv=251
        s.tail(k,nv)
        launch='; @launch grid=(256,1,1) block=(320,1,1) lds=%d'%LDS_SIZE
        return launch,'%s:256:320:%d'%(k,LDS_SIZE),[(k,nv,320)]
    def build(s):
        launch,spec,ks=getattr(s,s.o['mode'])()
        return HDR+launch+'\n.amdgcn_target "amdgcn-amd-amdhsa--gfx950"\n'+'\n'.join(s.t)+'\n',spec,ks
def write(path,**o):
    t,spec,ks=G(**o).build(); open(path,'w').write(t); return spec,ks
if __name__=='__main__':
    o=eval('dict(%s)'%(sys.argv[2] if len(sys.argv)>2 else ''))
    print(write(sys.argv[1],**o))
```

```python
import sys, re, math, struct
NAME='concat_heads__mha_block_cached__gqa_block_cached__decode'
HDR=open('cdna_kernels/%s.s.ref'%NAME).read().split('; Override launch')[0]

WS_Q=0; WS_PO=0x10000; WS_PML=0x110000; WS_Y=0x220000; WS_E=0x340000; WS_CNT=0x341000; WS_SIZE=0x350000
TAGINC=0x9E3779B1
L_Q=0; L_QR=1024; L_PART=3072; L_YL=16384; L_FL=16384+4*2560; L_S=L_FL+256; LDS_SIZE=L_S+32768
CSC=struct.unpack('<I',struct.pack('<f',math.log2(math.e)/math.sqrt(128)))[0]
LOG2E=struct.unpack('<I',struct.pack('<f',math.log2(math.e)))[0]
SCALE=struct.unpack('<I',struct.pack('<f',128**-0.5))[0]

class G:
    def __init__(s, **o):
        s.o=dict(mode='fused', pattern='wg', kfl='nt', vfl='nt', R=4, stamp=False, xcd=False, T=8, tlb='', seg=0, vthr='4445', kthr='4445', kmix='aa', pthr=0, burst=2); s.o.update(o)
        s.t=[]; s.uid=0; s.px=s.o.get('prefix','')
    def e(s,x): s.t.append(x)
    def lab(s,n): s.uid+=1; return 'L_%s%s_%d'%(s.px,n,s.uid)
    def head(s,name,nwg):
        s.e('.text\n.globl %s\n.p2align 8\n.type %s,@function\n%s:'%(name,name,name))
        s.end=s.lab('end')
        s.e('s_cmp_ge_u32 s2, %d\ns_cbranch_scc1 %s'%(nwg,s.end))
        s.e('s_load_dwordx16 s[4:19], s[0:1], 0\ns_load_dwordx8 s[20:27], s[0:1], 64\ns_load_dwordx2 s[28:29], s[0:1], 96')
        if s.o['stamp']: s.e('s_memrealtime s[90:91]\ns_mov_b32 s95, 0')
        s.e('v_lshrrev_b32 v1, 6, v0\nv_mov_b32 v3, v0\nv_and_b32 v0, 63, v0')
        s.e('v_readfirstlane_b32 s30, v1')
        if s.o['xcd']:
            s.e('s_and_b32 s31, s2, 7\ns_lshr_b32 s3, s2, 3\ns_lshl_b32 s31, s31, 5\ns_add_u32 s3, s3, s31')
        else: s.e('s_mov_b32 s3, s2')
        s.e('s_lshr_b32 s31, s3, 4\ns_and_b32 s64, s3, 15')
        s.e('s_waitcnt lgkmcnt(0)')
        s.e('s_mov_b32 s40, s28\ns_mov_b32 s41, s29\ns_mov_b32 s42, %d\ns_mov_b32 s43, 0x20000'%WS_SIZE)
        s.e('s_add_u32 s74, s28, %d\ns_addc_u32 s75, s29, 0\ns_load_dword s73, s[74:75], 0'%WS_E)
    def tail(s,name,nv,ns=102):
        if s.o['stamp']: nv=256
        s.e('%s:\ns_endpgm'%s.end)
        s.e('.section .rodata,"a"\n.p2align 6\n.amdhsa_kernel %s\n  .amdhsa_next_free_vgpr %d\n  .amdhsa_next_free_sgpr %d\n  .amdhsa_accum_offset %d\n  .amdhsa_group_segment_fixed_size 0\n  .amdhsa_kernarg_size 104\n  .amdhsa_user_sgpr_count 2\n  .amdhsa_user_sgpr_kernarg_segment_ptr 1\n  .amdhsa_system_sgpr_workgroup_id_x 1\n.end_amdhsa_kernel'%(name,nv,ns,(nv+3)//4*4))
    def q_issue(s,wb,xb):
        e=s.e
        if s.o.get('qpair',1): e('s_and_b32 s65, s64, 4\ns_cmp_eq_u32 s65, 0')
        else: e('s_cmp_lt_u32 s64, 8')
        e('s_cselect_b32 s44, s20, s10\ns_cselect_b32 s45, s21, s11\ns_cselect_b32 s48, s14, s4\ns_cselect_b32 s49, s15, s5')
        e('s_mov_b32 s46, %d\ns_mov_b32 s47, 0x20000\ns_mov_b32 s50, 1152\ns_mov_b32 s51, 0x20000'%(576*8192))
        if s.o.get('qpair',1): e('s_and_b32 s65, s64, 3\ns_lshl_b32 s65, s65, 7\ns_lshr_b32 s66, s64, 3\ns_lshl_b32 s66, s66, 6\ns_add_u32 s65, s65, s66\ns_lshl_b32 s66, s31, 9\ns_add_u32 s65, s65, s66')
        else: e('s_and_b32 s65, s64, 7\ns_lshl_b32 s65, s65, 6\ns_lshl_b32 s66, s31, 9\ns_add_u32 s65, s65, s66')
        e('v_lshrrev_b32 v4, 2, v3\nv_and_b32 v5, 3, v3\nv_lshlrev_b32 v5, 4, v5\nv_lshl_add_u32 v5, v4, 13, v5\nv_lshlrev_b32 v4, 1, v4')
        for i in range(9):
            e('buffer_load_ushort v%d, v4, s[48:51], 0 offen offset:%d'%(xb+i,i*128))
        for i in range(9):
            e('buffer_load_dwordx4 v[%d:%d], v5, s[44:47], s65 offen %s'%(wb+4*i,wb+4*i+3,s.o.get('qfl','nt')))
            if i<8: e('s_add_u32 s65, s65, %d'%(64*8192))
    def q_compute(s,wb,xb,ab,tb,newer,hooks={}):
        e=s.e
        for j in range(8): e('v_mov_b32 v%d, 0'%(ab+j))
        for i in range(9):
            e('s_waitcnt vmcnt(%d)'%(newer+8-i))
            if s.o.get('qst') and i in (0,8): e('s_memrealtime s[%d:%d]'%((84,85) if i==0 else (86,87)))
            if i in hooks: hooks[i][0](); newer+=hooks[i][1]
            e('v_lshlrev_b32 v%d, 16, v%d'%(xb+i,xb+i))
            for d in range(4):
                e('v_lshlrev_b32 v%d, 16, v%d\nv_and_b32 v%d, 0xffff0000, v%d'%(tb,wb+4*i+d,tb+1,wb+4*i+d))
                e('v_fmac_f32 v%d, v%d, v%d\nv_fmac_f32 v%d, v%d, v%d'%(ab+2*d,xb+i,tb,ab+2*d+1,xb+i,tb+1))
        for ror in (4,8):
            e('s_nop 1')
            for j in range(8): e('v_add_f32_dpp v%d, v%d, v%d row_ror:%d row_mask:0xf bank_mask:0xf'%(ab+j,ab+j,ab+j,ror))
        e('v_lshrrev_b32 v%d, 4, v3\nv_and_b32 v%d, 3, v3\nv_lshlrev_b32 v%d, 5, v%d\nv_lshl_add_u32 v%d, v%d, 7, v%d'%(tb,tb+1,tb+1,tb+1,tb,tb,tb+1))
        e('ds_write_b128 v%d, v[%d:%d] offset:%d\nds_write_b128 v%d, v[%d:%d] offset:%d'%(tb,ab,ab+3,L_QR,tb,ab+4,ab+7,L_QR+16))
        e('s_waitcnt lgkmcnt(0)')
    def q_finish(s,tb,fl):
        e=s.e
        e('v_and_b32 v%d, 31, v0\nv_lshlrev_b32 v%d, 2, v%d\nv_lshrrev_b32 v%d, 5, v0\nv_lshl_add_u32 v%d, v%d, 10, v%d'%(tb,tb,tb,tb+1,tb,tb+1,tb))
        for p in range(8): e('ds_read_b32 v%d, v%d offset:%d'%(tb+2+p,tb,L_QR+p*128))
        if s.o.get('qpair',1): e('s_and_b32 s65, s64, 7\ns_lshl_b32 s65, s65, 1\ns_lshr_b32 s66, s64, 3\ns_add_u32 s65, s65, s66\ns_lshl_b32 s66, s31, 4\ns_add_u32 s65, s65, s66\ns_lshl_b32 s65, s65, 7')
        else: e('s_lshl_b32 s65, s3, 7')
        e('v_and_b32 v%d, 31, v0\nv_lshlrev_b32 v%d, 2, v%d'%(tb,tb,tb))
        e('s_waitcnt lgkmcnt(0)')
        for a,b in ((0,1),(2,3),(4,5),(6,7),(0,2),(4,6),(0,4)): e('v_add_f32 v%d, v%d, v%d'%(tb+2+a,tb+2+a,tb+2+b))
        e('v_mov_b32 v%d, v%d\ns_nop 1\nv_permlane32_swap_b32 v%d, v%d\nv_add_f32 v%d, v%d, v%d'%(tb+3,tb+2,tb+2,tb+3,tb+2,tb+2,tb+3))
        e('s_nop 1\nv_mov_b32_dpp v%d, v%d quad_perm:[1,0,3,2] row_mask:0xf bank_mask:0xf'%(tb+3,tb+2))
        e('v_cvt_pk_bf16_f32 v%d, v%d, v%d\nv_mov_b32 v%d, s73'%(tb+2,tb+2,tb+3,tb+3))
        e('s_mov_b32 exec_lo, 0x55555555\ns_mov_b32 exec_hi, 0')
        e('buffer_store_dwordx2 v[%d:%d], v%d, s[40:43], s65 offen %s'%(tb+2,tb+3,tb,fl))
        e('s_mov_b64 exec, -1')
    RING=96
    def att_setup(s):
        e=s.e
        rot=s.o.get('rot',0)
        if rot==1: e('s_mul_i32 s96, s31, 11\ns_lshr_b32 s96, s96, 5\ns_mul_i32 s96, s96, 3\ns_sub_u32 s96, s31, s96')
        else: e('s_mov_b32 s96, 0')
        e('s_mov_b32 s97, s96\ns_lshl_b32 s66, s31, 1\ns_sub_u32 s66, s66, 1')
        for r,(kb,vb) in enumerate(((32,36),(52,54),(56,58))):
            e('s_add_u32 s65, s66, s97\ns_cmp_eq_u32 s97, 0\ns_cselect_b32 s65, s31, s65')
            e('s_cselect_b32 s%d, s16, s6\ns_cselect_b32 s%d, s17, s7\ns_cselect_b32 s%d, s18, s8\ns_cselect_b32 s%d, s19, s9'%(kb,kb+1,vb,vb+1))
            e('s_lshl_b32 s65, s65, 24\ns_add_u32 s%d, s%d, s65\ns_addc_u32 s%d, s%d, 0\ns_add_u32 s%d, s%d, s65\ns_addc_u32 s%d, s%d, 0'%(kb,kb,kb+1,kb+1,vb,vb,vb+1,vb+1))
            if r<2: e('s_add_u32 s97, s97, 1\ns_cmp_eq_u32 s97, 3\ns_cselect_b32 s97, 0, s97')
        e('s_mov_b32 s34, 0x1000000\ns_mov_b32 s35, 0x20000\ns_mov_b32 s38, 0x1000000\ns_mov_b32 s39, 0x20000')
        if s.o['pattern']=='wg': e('s_lshl_b32 s60, s64, 20'); s.step=16384
        else: e('s_lshl_b32 s60, s64, 14'); s.step=262144
        e('s_lshl_b32 s65, s30, 12\ns_add_u32 s60, s60, s65\ns_mov_b32 s61, s60')
        if s.o.get('xm'):
            s.xorval('s64'); e('s_xor_b32 s69, s61, s68')
        e('v_and_b32 v1, 3, v0\nv_lshlrev_b32 v1, 10, v1\nv_bfe_u32 v2, v0, 2, 2\nv_lshl_add_u32 v1, v2, 8, v1\nv_lshrrev_b32 v2, 4, v0\nv_lshl_add_u32 v1, v2, 4, v1')
        e('v_lshlrev_b32 v2, 4, v0')
    def xorval(s,m):
        a,b=s.o['xm']
        s.e('s_mul_i32 s68, %s, %d\ns_mul_i32 s66, s31, %d\ns_add_u32 s68, s68, s66\ns_and_b32 s68, s68, 63\ns_mul_i32 s68, s68, %d'%(m,a,b,s.step))
    def masks(s):
        e=s.e
        e('v_and_b32 v8, 1, v0\nv_cmp_eq_u32 vcc, 1, v8\nv_mov_b32 v9, 0xffff\nv_mov_b32 v10, 0xffff0000\nv_cndmask_b32 v9, v9, v10, vcc\nv_bfe_u32 v8, v0, 1, 2')
        for q in range(4): e('v_cmp_eq_u32 vcc, %d, v8\ns_nop 1\nv_cndmask_b32 v%d, 0, v9, vcc'%(q,4+q))
    def issueK(s,sl):
        for i in range(4):
            r=s.RING+sl*32+4*i
            s.e('buffer_load_dwordx4 v[%d:%d], v1, s[32:35], %s offen offset:%d %s'%(r,r+3,'s69' if s.o.get('xm') else 's61',64*i,s.o['kfl']))
    def issueV(s,sl):
        for i in range(4):
            r=s.RING+sl*32+16+4*i
            s.e('buffer_load_dwordx4 v[%d:%d], v2, s[36:39], %s offen offset:%d %s'%(r,r+3,'s69' if s.o.get('xm') else 's61',1024*i,s.o['vfl']))
        s.e('s_add_u32 s61, s61, %d'%s.step)
        if s.o.get('xm'): s.e('s_xor_b32 s69, s61, s68')
    def wo_issue(s):
        e=s.e
        e('s_cmp_lt_u32 s64, 8\ns_cselect_b32 s44, s22, s12\ns_cselect_b32 s45, s23, s13')
        e('s_and_b32 s65, s64, 7\ns_lshl_b32 s65, s65, 5\ns_lshl_b32 s66, s31, 8\ns_add_u32 s65, s65, s66\ns_mul_i32 s65, s65, 1152')
        e('s_add_u32 s44, s44, s65\ns_addc_u32 s45, s45, 0\ns_sub_u32 s46, %d, s65\ns_mov_b32 s47, 0x20000'%(4096*1152))
        e('s_mul_i32 s65, s30, %d'%(8*1152))
        e('v_lshrrev_b32 v26, 4, v0\nv_mul_u32_u24 v26, 2304, v26\nv_and_b32 v27, 15, v0\nv_lshl_add_u32 v26, v27, 4, v26')
        for cb in range(5):
            if cb==4: e('s_mov_b32 exec_lo, 0x00ff00ff\ns_mov_b32 exec_hi, 0x00ff00ff')
            for rg in range(2):
                r=56+(rg*5+cb)*4
                e('buffer_load_dwordx4 v[%d:%d], v26, s[44:47], s65 offen offset:%d nt'%(r,r+3,rg*1152+cb*256))
        e('s_mov_b64 exec, -1')
    def q_operand(s,first):
        e=s.e
        if not first: e('s_add_u32 s96, s96, 1\ns_cmp_eq_u32 s96, 3\ns_cselect_b32 s96, 0, s96')
        e('s_add_u32 s66, s96, 1\ns_lshl_b32 s66, s66, 8\ns_cmp_eq_u32 s96, 0\ns_cselect_b32 s65, 256, 0\ns_cselect_b32 s66, 0, s66')
        e('v_bfe_u32 v19, v0, 3, 1\nv_mul_u32_u24 v19, s65, v19\nv_lshrrev_b32 v24, 4, v0\nv_lshl_add_u32 v24, v24, 4, s66\nv_add_u32 v19, v19, v24')
        for i in range(4): e('ds_read_b128 v[%d:%d], v19 offset:%d'%(40+4*i,43+4*i,L_Q+64*i))
        e('v_mov_b32 v12, 0\nv_mov_b32 v13, 0\nv_mov_b32 v14, 0\nv_mov_b32 v15, 0\nv_mov_b32 v16, 0xff800000\nv_mov_b32 v17, 0xff800000\nv_mov_b32 v18, 0')
        e('s_waitcnt lgkmcnt(0)')
    def tile(s,sl,n,rare):
        e=s.e
        kb=s.RING+sl*32; vb=kb+16
        if s.o.get('split') or s.o.get('poolk')=='a':
            e('s_waitcnt vmcnt(%d)'%(s.newer(sl,0))); n=s.newer(sl,1)
            for c in range(2):
                for rb in range(2):
                    d=24+4*rb; r=kb+4*(rb*2+c)
                    e('v_mfma_f32_16x16x32_bf16 v[%d:%d], v[%d:%d], v[%d:%d], %s'%(d,d+3,r,r+3,s.Q128+4*c,s.Q128+4*c+3,'0' if c==0 else 'v[%d:%d]'%(d,d+3)))
            s.issueK(sl); e('s_nop 3')
            for r in range(4): e('v_cndmask_b32 v%d, v%d, v%d, s[70:71]'%(8+r,24+2*r,25+2*r))
            for r in range(4): e('v_add_f32_dpp v%d, v%d, v%d quad_perm:[1,0,3,2] row_mask:0xf bank_mask:0xf'%(8+r,8+r,8+r))
        else:
            e('s_waitcnt vmcnt(%d)'%n)
            for i in range(4):
                e('v_mfma_f32_16x16x32_bf16 v[8:11], v[%d:%d], v[%d:%d], %s'%(kb+4*i,kb+4*i+3,40+4*i,43+4*i,'0' if i==0 else 'v[8:11]'))
            s.issueK(sl)
            e('s_nop 3')
        s.rnd(8)
        La=s.lab('rare'); Lb=s.lab('back'); rare.append((La,Lb))
        e('v_max3_f32 v19, v8, v9, v10\nv_max_f32 v19, v19, v11\nv_cmp_gt_f32 vcc, v19, v16\ns_cbranch_vccnz %s\n%s:'%(La,Lb))
        for r in range(4): e('v_fma_f32 v%d, v%d, s67, -v17'%(20+r,8+r))
        for r in range(4): e('v_exp_f32 v%d, v%d'%(20+r,20+r))
        e('v_add_f32 v18, v18, v20\nv_cvt_pk_bf16_f32 v20, v20, v20')
        for r in range(1,4): e('v_add_f32 v18, v18, v%d\nv_cvt_pk_bf16_f32 v%d, v%d, v%d'%(20+r,20+r,20+r,20+r))
        for r in range(4):
            for q in range(4): e('v_and_b32 v%d, v%d, v%d'%(24+4*r+q,20+r,4+q))
        e('s_waitcnt vmcnt(%d)'%n)
        e('s_nop 0')
        for r in range(4):
            e('v_mfma_f32_16x16x32_bf16 v[12:15], v[%d:%d], v[%d:%d], v[12:15]'%(24+4*r,27+4*r,vb+4*r,vb+4*r+3))
        s.issueV(sl)
    def att_loop(s,wo_prefetch):
        e=s.e; R=s.o['R']; n=4+8*(R-1); P=s.o.get('P',0); C=s.o.get('C',2); NI=64//R
        Lr=s.lab('round'); Ll=s.lab('loop'); Ln=s.lab('nosw'); rare=[]; Lfl=s.lab('flush'); Ldyn=s.lab('dyn')
        e('s_mov_b32 s62, 0\ns_mov_b32 s67, 0x%x'%CSC)
        s.q_operand(True)
        e('%s:\ns_mov_b32 s63, %d'%(Lr,NI))
        if P: e('s_cmp_eq_u32 s62, 2\ns_cselect_b32 s63, %d, s63\ns_cselect_b32 s76, 0, 1'%(NI-1-P))
        else: e('s_mov_b32 s76, 1')
        e('%s:'%Ll)
        e('s_cmp_lg_u32 s63, s76\ns_cbranch_scc1 %s'%Ln)
        e('s_mov_b32 s32, s52\ns_mov_b32 s33, s53\ns_mov_b32 s36, s54\ns_mov_b32 s37, s55\ns_mov_b64 s[52:53], s[56:57]\ns_mov_b64 s[54:55], s[58:59]\ns_mov_b32 s61, s60')
        if s.o.get('xm'): e('s_xor_b32 s69, s61, s68')
        e('s_cmp_lt_u32 s62, 2\ns_cselect_b32 s34, s34, 0\ns_mov_b32 s38, s34')
        e('%s:'%Ln)
        for sl in range(R): s.tile(sl,n,rare)
        e('s_sub_u32 s63, s63, 1\ns_cmp_lg_u32 s63, 0\ns_cbranch_scc1 %s'%Ll)
        if P:
            TK=s.RING+32*R; Lp=s.lab('dloop'); LA=s.o.get('LA',2); NS=R//C; PL=s.o.get('perlane',0)
            G_=16 if PL else 64; total=G_*P*R//C; sh=4 if PL else 6
            assert LA in (1,2) and (LA==1 or NS%2==0)
            e('s_cmp_lg_u32 s62, 2\ns_cbranch_scc1 %s'%Lfl)
            if PL: e('s_mov_b32 s77, s64\ns_lshl_b32 s81, s31, 2\ns_add_u32 s81, s81, s30\ns_lshl_b32 s81, s81, 8\ns_lshl_b32 s89, s30, 12\ns_add_u32 s89, s89, %d'%((NI-P)*R*s.step))
            else: e('s_lshl_b32 s77, s64, 2\ns_add_u32 s77, s77, s30\ns_lshl_b32 s81, s31, 10')
            e('s_mov_b32 s80, 0x7fffffff\ns_add_u32 s81, s81, %d\nv_mov_b32 v%d, 0'%(WS_CNT,TK+2))
            if LA==2: e('s_add_u32 s65, s77, %d\nv_mov_b32 v%d, s65'%(G_,TK+1))
            s.stamp(14)
            e('%s:'%Lp)
            msh=20 if s.o['pattern']=='wg' else 14
            for h in range(NS):
                tk=TK+(h%2 if LA==2 else 0); tkn=TK+((h+1)%2 if LA==2 else 0)
                e('s_cmp_lt_u32 s77, %d\ns_cselect_b32 s34, 0x1000000, 0\ns_cselect_b32 s65, s80, %d\ns_mov_b32 s38, s34\ns_min_u32 s80, s80, s65'%(total,R//C))
                e('s_cmp_eq_u32 s80, 0\ns_cbranch_scc1 %s\ns_sub_u32 s80, s80, 1'%Lfl)
                e('v_mov_b32 v%d, 1\ns_lshr_b32 s65, s77, %d\ns_and_b32 s65, s65, 63\ns_mul_i32 s65, s65, %d'%(tk,sh,C*s.step))
                if PL: e('s_add_u32 s61, s65, s89\ns_and_b32 s65, s77, 15')
                else: e('s_add_u32 s61, s65, %d\ns_and_b32 s65, s77, 3\ns_lshl_b32 s65, s65, 12\ns_add_u32 s61, s61, s65\ns_bfe_u32 s65, s77, 0x40002'%((NI-P)*R*s.step))
                if s.o.get('xm'): s.xorval('s65')
                e('s_lshl_b32 s65, s65, %d\ns_add_u32 s61, s61, s65'%msh)
                if s.o.get('xm'): e('s_xor_b32 s69, s61, s68')
                e('s_mov_b64 exec, 1\nbuffer_atomic_add v%d, v%d, s[40:43], s81 offen sc0 sc1\ns_mov_b64 exec, -1'%(tk,TK+2))
                for sl in range(h*C,h*C+C): s.tile(sl,n+1,rare)
                e('s_waitcnt vmcnt(%d)\nv_readfirstlane_b32 s77, v%d'%(8*C if LA==1 else 16*C+1,tkn))
                if s.o['stamp']: e('s_add_u32 s95, s95, 1')
            e('s_branch %s'%Lp)
        e('%s:'%Lfl)
        e('v_mov_b32 v19, v18\ns_nop 1\nv_permlane32_swap_b32 v18, v19\nv_add_f32 v18, v18, v19\nv_mov_b32 v19, v18\ns_nop 1\nv_permlane16_swap_b32 v18, v19\nv_add_f32 v18, v18, v19')
        e('s_lshl_b32 s65, s96, 2\ns_add_u32 s65, s65, s30\ns_mul_i32 s65, s65, 1040')
        e('v_lshrrev_b32 v19, 5, v0\nv_lshlrev_b32 v19, 9, v19\nv_and_b32 v20, 15, v0\nv_lshl_add_u32 v19, v20, 5, v19\nv_bfe_u32 v20, v0, 4, 1\nv_lshl_add_u32 v19, v20, 4, v19\nv_add_u32 v19, s65, v19')
        e('v_bfe_u32 v20, v0, 3, 1\nv_lshl_add_u32 v20, v20, 3, s65\nv_mov_b32 v22, v17\nv_mov_b32 v23, v18')
        e('ds_write_b128 v19, v[12:15] offset:%d\nds_write_b64 v20, v[22:23] offset:%d'%(L_PART,L_PART+1024))
        Ld=s.lab('done')
        e('s_add_u32 s62, s62, 1\ns_cmp_eq_u32 s62, 3\ns_cbranch_scc1 %s'%Ld)
        e('s_waitcnt lgkmcnt(0)')
        if s.o['stamp']:
            La=s.lab('st'); Lb=s.lab('st')
            e('s_cmp_eq_u32 s62, 1\ns_cbranch_scc1 %s'%La); s.stamp(9); e('s_branch %s\n%s:'%(Lb,La)); s.stamp(8); e('%s:'%Lb)
        if wo_prefetch:
            Lw=s.lab('nowo')
            e('s_cmp_lg_u32 s62, 1\ns_cbranch_scc1 %s'%Lw); s.wo_issue(); e('%s:'%Lw)
        s.q_operand(False)
        e('s_branch %s'%Lr)
        for La,Lb in rare:
            e('%s:'%La)
            e('v_max_f32 v19, v19, v16\nv_mov_b32 v24, v19\ns_nop 1\nv_permlane32_swap_b32 v19, v24\nv_max_f32 v19, v19, v24\nv_mov_b32 v24, v19\ns_nop 1\nv_permlane16_swap_b32 v19, v24\nv_max_f32 v16, v19, v24')
            e('v_mul_f32 v24, s67, v16\nv_sub_f32 v25, v17, v24\nv_exp_f32 v25, v25\nv_mov_b32 v17, v24\ns_nop 0\nv_mul_f32 v18, v18, v25')
            e('v_mov_b32_dpp v26, v25 row_newbcast:0 row_mask:0x3 bank_mask:0xf\nv_mov_b32_dpp v26, v25 row_newbcast:8 row_mask:0xc bank_mask:0xf')
            for r in range(4): e('v_mul_f32 v%d, v%d, v26'%(12+r,12+r))
            e('s_branch %s'%Lb)
        e('%s:'%Ld)
    thr=0; VO=228; Q128=236; VS=244; MA0=245; S2=246; MA1=227; K128=250
    def ph_setup(s):
        e=s.e
        e('s_lshl_b32 s65, s31, 24\ns_add_u32 s32, s16, s65\ns_addc_u32 s33, s17, 0\ns_add_u32 s98, s18, s65\ns_addc_u32 s99, s19, 0')
        e('s_lshl_b32 s65, s31, 25\ns_add_u32 s52, s6, s65\ns_addc_u32 s53, s7, 0\ns_add_u32 s54, s8, s65\ns_addc_u32 s55, s9, 0')
        e('s_add_u32 s56, s52, 0x1000000\ns_addc_u32 s57, s53, 0\ns_add_u32 s58, s54, 0x1000000\ns_addc_u32 s59, s55, 0')
        e('s_mov_b32 s34, 0x1000000\ns_mov_b32 s35, 0x20000\ns_mov_b32 s36, s32\ns_mov_b32 s37, s33\ns_mov_b32 s38, 0x1000000\ns_mov_b32 s39, 0x20000')
        s.step=16384
        e('s_lshl_b32 s60, s64, 20\ns_lshl_b32 s65, s30, 12\ns_add_u32 s60, s60, s65\ns_mov_b32 s61, s60\ns_mov_b32 s76, 32768')
        e('v_and_b32 v1, 3, v0\nv_lshlrev_b32 v1, 10, v1\nv_bfe_u32 v2, v0, 2, 2\nv_lshl_add_u32 v1, v2, 8, v1\nv_lshrrev_b32 v2, 4, v0\nv_lshl_add_u32 v1, v2, 4, v1')
        k=s.K128
        e('v_lshlrev_b32 v%d, 4, v2\nv_and_b32 v2, 1, v0\nv_lshl_add_u32 v%d, v2, 6, v%d\nv_bfe_u32 v2, v0, 1, 1\nv_lshl_add_u32 v%d, v2, 10, v%d\nv_bfe_u32 v2, v0, 2, 2\nv_lshl_add_u32 v%d, v2, 8, v%d'%(k,k,k,k,k,k,k))
        e('v_lshlrev_b32 v2, 4, v0')
        s.ph_offs('K')
    def ph_offs(s,kind):
        e=s.e
        k128=[(s.K128,o) for o in (0,128,2048,2176)]; k64=[(1,64*i) for i in range(4)]; vl=[(2,1024*i) for i in range(4)]
        km=s.o.get('kmix','ab')
        ka={'a':k128,'b':k64}[km[0]]; kb={'a':k128,'b':k64}[km[1]]
        sets={'K':ka+[(r,o+16384) for r,o in kb],'V':vl+[(r,o+16384) for r,o in vl],'P':(k128 if s.o.get('poolk')=='a' else k64)+vl}[kind]
        if s.o.get('split'):
            sets={'K':k128+[(r,o+16384) for r,o in k128],'V':sets,'P':k128+vl}[kind]
            e('s_mov_b32 s68, 0x%x\ns_mov_b32 s96, 0x%x'%(0x0f0f0f0f if kind=='V' else 0x55555555, 0x55555555 if kind=='K' else 0x0f0f0f0f))
        for i,(r,o) in enumerate(sets):
            e('v_add_u32 v%d, %d, v%d'%(s.VO+i,o,r) if o else 'v_mov_b32 v%d, v%d'%(s.VO+i,r))
    def nops(s,sl,half):
        sp=s.o.get('split')
        return 8 if (sp and sp[(sl*2+half)%len(sp)]=='1') else 4
    def newer(s,sl,half):
        R=s.o['R']; seq=[(a,h) for a in range(R) for h in range(2)]; k=seq.index((sl,half))
        return sum(s.nops(*seq[(k+j)%(2*R)]) for j in range(1,2*R))
    def ph_issue(s,sl,half):
        if s.nops(sl,half)==8:
            m=(68,69) if half==0 else (96,97)
            for p in range(2):
                s.e('s_mov_b32 exec_lo, s%d\ns_mov_b32 exec_hi, s%d'%(m[0],m[0]) if p==0 else 's_not_b64 exec, exec')
                for i in range(4):
                    r=s.RING+sl*32+half*16+4*i
                    s.e('buffer_load_dwordx4 v[%d:%d], v%d, %s, s61 offen nt'%(r,r+3,s.VO+half*4+i,'s[36:39]' if half else 's[32:35]'))
            s.e('s_mov_b64 exec, -1')
            if half: s.e('s_add_u32 s61, s61, s76')
            return
        for i in range(4):
            r=s.RING+sl*32+half*16+4*i
            if isinstance(s.thr,str): s.e('s_waitcnt vmcnt(%s)'%s.thr[i])
            elif s.thr and i%(s.thr//100 or s.o.get('burst',4))==0: s.e('s_waitcnt vmcnt(%d)'%(s.thr%100))
            s.e('buffer_load_dwordx4 v[%d:%d], v%d, %s, s61 offen nt'%(r,r+3,s.VO+half*4+i,'s[36:39]' if half else 's[32:35]'))
        if half: s.e('s_add_u32 s61, s61, s76')
    def ph_switch(s,kind,a,b,start):
        e=s.e
        e('s_mov_b32 s32, s%d\ns_mov_b32 s33, s%d\ns_mov_b32 s36, s%d\ns_mov_b32 s37, s%d'%(a,a+1,b,b+1))
        e('s_add_u32 s61, s60, %d\ns_mov_b32 s76, %d'%(start,16384 if kind=='P' else 32768))
        s.ph_offs(kind)
    def ph_q(s,ty):
        e=s.e
        e('v_lshrrev_b32 v24, 4, v0\nv_lshlrev_b32 v24, 4, v24')
        if ty==0: e('v_bfe_u32 v19, v0, 3, 1\nv_lshl_add_u32 v24, v19, 8, v24')
        e('v_and_b32 v19, 1, v0\nv_lshl_add_u32 v25, v19, 6, v24')
        o=L_Q+(0 if ty==0 else (ty+1)*256)
        for i in range(0 if (s.o.get('split') or (s.o.get('kmix')=='aa' and (ty<2 or s.o.get('poolk')=='a'))) else 4): e('ds_read_b128 v[%d:%d], v24 offset:%d'%(40+4*i,43+4*i,o+64*i))
        for c in range(2): e('ds_read_b128 v[%d:%d], v25 offset:%d'%(s.Q128+4*c,s.Q128+4*c+3,o+128*c))
        e('v_mov_b32 v16, 0xff800000')
        s.ph_saddr(ty)
        e('s_waitcnt lgkmcnt(0)')
    def ph_saddr(s,ty):
        e=s.e
        e('s_lshl_b32 s65, s30, 13\ns_add_u32 s65, s65, %d\nv_lshrrev_b32 v19, 4, v0\nv_lshl_add_u32 v%d, v19, 4, s65'%(L_S+(64 if ty==2 else 0),s.VS))
        if ty==0: e('v_bfe_u32 v19, v0, 3, 1\nv_lshl_add_u32 v%d, v19, 6, v%d'%(s.VS,s.VS))
    def ph_loop(s,niter,body,switch):
        e=s.e; L=s.lab('pl'); Ln=s.lab('pn')
        e('s_mov_b32 s63, %d\n%s:'%(niter,L))
        if switch:
            e('s_cmp_lg_u32 s63, 1\ns_cbranch_scc1 %s'%Ln); switch(); e('%s:'%Ln)
        for sl in range(s.o['R']): body(sl)
        e('v_add_u32 v%d, %d, v%d\ns_sub_u32 s63, s63, 1\ns_cmp_lg_u32 s63, 0\ns_cbranch_scc1 %s'%(s.VS,256*s.o['R'],s.VS,L))
    def ph_kstep(s,sl):
        e=s.e; km='aa' if s.o.get('split') else s.o.get('kmix','ab')
        for half in range(2):
            kb=s.RING+sl*32+16*half; S=8 if half==0 else 32
            e('s_waitcnt vmcnt(%d)'%s.newer(sl,half))
            if km[half]=='a':
                for c in range(2):
                    for rb in range(2):
                        d=24+4*rb; r=kb+4*(rb*2+c)
                        e('v_mfma_f32_16x16x32_bf16 v[%d:%d], v[%d:%d], v[%d:%d], %s'%(d,d+3,r,r+3,s.Q128+4*c,s.Q128+4*c+3,'0' if c==0 else 'v[%d:%d]'%(d,d+3)))
                s.thr=s.o.get('kthr',0)
                s.ph_issue(sl,half); e('s_nop 3')
                for r in range(4): e('v_add_f32_dpp v%d, v%d, v%d quad_perm:[1,0,3,2] row_mask:0xf bank_mask:0xf'%(S+r,25+2*r,24+2*r))
            else:
                for i in range(4):
                    e('v_mfma_f32_16x16x32_bf16 v[%d:%d], v[%d:%d], v[%d:%d], %s'%(S,S+3,kb+4*i,kb+4*i+3,40+4*i,43+4*i,'0' if i==0 else 'v[%d:%d]'%(S,S+3)))
                s.thr=s.o.get('kthr',0)
                s.ph_issue(sl,half); e('s_nop 3')
            s.rnd(S)
            e('v_max3_f32 v16, v%d, v%d, v16\nv_max3_f32 v16, v%d, v%d, v16'%(S,S+1,S+2,S+3))
            e('s_mov_b64 exec, s[70:71]\nds_write_b128 v%d, v[%d:%d] offset:%d\ns_mov_b64 exec, -1'%(s.VS,S,S+3,(sl*2+half)*128))
    def rnd(s,S):
        if not s.o.get('mimic',1): return
        e=s.e
        for ps in range(2):
            e('v_cvt_pk_bf16_f32 v36, v%d, v%d\nv_cvt_pk_bf16_f32 v37, v%d, v%d'%(S,S+1,S+2,S+3))
            e('v_lshlrev_b32 v%d, 16, v36\nv_and_b32 v%d, s69, v36\nv_lshlrev_b32 v%d, 16, v37\nv_and_b32 v%d, s69, v37'%(S,S+1,S+2,S+3))
            if ps==0:
                for r in range(4): e('v_mul_f32 v%d, s62, v%d'%(S+r,S+r))
    def ph_kend(s,dst):
        e=s.e
        e('v_mov_b32 v19, v16\ns_nop 1\nv_permlane32_swap_b32 v16, v19\nv_max_f32 v16, v16, v19\nv_mov_b32 v19, v16\ns_nop 1\nv_permlane16_swap_b32 v16, v19\nv_max_f32 v16, v16, v19\ns_nop 1')
        e('v_mov_b32_dpp v%d, v16 row_newbcast:0 row_mask:0xf bank_mask:0x3\nv_mov_b32_dpp v%d, v16 row_newbcast:8 row_mask:0xf bank_mask:0xc'%(dst,dst))
    def ph_vstart(s,ty,src):
        e=s.e
        e('v_mov_b32 v16, v%d\nv_mul_f32 v17, s67, v%d\nv_mov_b32 v18, 0\nv_mov_b32 v12, 0\nv_mov_b32 v13, 0\nv_mov_b32 v14, 0\nv_mov_b32 v15, 0'%(src,src))
        s.ph_saddr(ty)
    def ph_vstep(s,sl):
        e=s.e; n=4+8*(s.o['R']-1)
        e('ds_read_b128 v[8:11], v%d offset:%d\nds_read_b128 v[%d:%d], v%d offset:%d'%(s.VS,sl*256,s.S2,s.S2+3,s.VS,sl*256+128))
        for half in range(2):
            vb=s.RING+sl*32+16*half; S=8 if half==0 else s.S2
            e('s_waitcnt lgkmcnt(%d)'%(1-half))
            for r in range(4): e('v_fma_f32 v%d, v%d, s67, -v17'%(20+r,S+r))
            for r in range(4): e('v_exp_f32 v%d, v%d'%(20+r,20+r))
            for r in range(4): e('v_add_f32 v18, v18, v%d\nv_cvt_pk_bf16_f32 v%d, v%d, v%d'%(20+r,20+r,20+r,20+r))
            for r in range(4):
                for q in range(4): e('v_and_b32 v%d, v%d, v%d'%(24+4*r+q,20+r,4+q))
            e('s_waitcnt vmcnt(%d)\ns_nop 0'%s.newer(sl,half))
            for r in range(4):
                e('v_mfma_f32_16x16x32_bf16 v[12:15], v[%d:%d], v[%d:%d], v[12:15]'%(24+4*r,27+4*r,vb+4*r,vb+4*r+3))
            s.thr=s.o.get('vthr',0)
            s.ph_issue(sl,half)
    def flush(s,ty):
        e=s.e
        e('v_mov_b32 v19, v18\ns_nop 1\nv_permlane32_swap_b32 v18, v19\nv_add_f32 v18, v18, v19\nv_mov_b32 v19, v18\ns_nop 1\nv_permlane16_swap_b32 v18, v19\nv_add_f32 v18, v18, v19')
        e('s_mul_i32 s65, s30, 1040\ns_add_u32 s65, s65, %d'%(ty*4160))
        e('v_lshrrev_b32 v19, 5, v0\nv_lshlrev_b32 v19, 9, v19\nv_and_b32 v20, 15, v0\nv_lshl_add_u32 v19, v20, 5, v19\nv_bfe_u32 v20, v0, 4, 1\nv_lshl_add_u32 v19, v20, 4, v19\nv_add_u32 v19, s65, v19')
        e('v_bfe_u32 v20, v0, 3, 1\nv_lshl_add_u32 v20, v20, 3, s65\nv_mov_b32 v22, v17\nv_mov_b32 v23, v18')
        e('ds_write_b128 v19, v[12:15] offset:%d\nds_write_b64 v20, v[22:23] offset:%d\ns_waitcnt lgkmcnt(0)'%(L_PART,L_PART+1024))
    def att_phased(s):
        e=s.e; R=s.o['R']; C=2; n=4+8*(R-1); T=s.o.get('T',16); assert R==4
        NF=32//R; Ns=(64-T)//2; assert Ns%R==0; NS_=Ns//R
        TK=s.RING+32*R; total=16*T//C; rare=[]; Lfl=s.lab('flush'); Lp=s.lab('dloop')
        def draw(): e('v_mov_b32 v%d, 1\ns_mov_b64 exec, 1\nbuffer_atomic_add v%d, v%d, s[40:43], s81 offen sc0 sc1\ns_mov_b64 exec, -1'%(TK,TK,TK+1))
        def take():
            e('s_waitcnt vmcnt(16)\nv_readfirstlane_b32 s77, v%d'%TK)
            if s.o['stamp']: e('s_add_u32 s95, s95, 1')
        def site(k,inpool):
            e('s_cmp_lt_u32 s77, %d\ns_cselect_b32 s34, 0x1000000, 0\ns_cselect_b32 s65, s80, %d\ns_mov_b32 s38, s34\ns_min_u32 s80, s80, s65'%(total,k))
            if inpool: e('s_cmp_eq_u32 s80, 0\ns_cbranch_scc1 %s\ns_sub_u32 s80, s80, 1'%Lfl)
            e('s_lshr_b32 s65, s77, 4\ns_and_b32 s65, s65, 31\ns_lshl_b32 s65, s65, 15\ns_add_u32 s61, s65, s89\ns_and_b32 s65, s77, 15\ns_lshl_b32 s65, s65, 20\ns_add_u32 s61, s61, s65')
            draw()
        e('s_mov_b32 s67, 0x%x\ns_mov_b32 s70, 0x01010101\ns_mov_b32 s71, 0x01010101\ns_mov_b32 s62, 0x%x\ns_mov_b32 s69, 0xffff0000'%(LOG2E if s.o.get('mimic',1) else CSC,SCALE))
        s.ph_q(0); s.ph_loop(NF,s.ph_kstep,lambda: s.ph_switch('V',98,98,0)); s.ph_kend(s.MA0); s.stamp(8)
        s.ph_vstart(0,s.MA0); s.ph_loop(NF,s.ph_vstep,lambda: s.ph_switch('K',52,52,0)); s.flush(0); s.stamp(9)
        s.wo_issue()
        s.ph_q(1); s.ph_loop(NF,s.ph_kstep,lambda: s.ph_switch('K',56,56,0)); s.ph_kend(s.MA0)
        s.ph_q(2); s.ph_loop(NS_,s.ph_kstep,lambda: s.ph_switch('V',54,54,0)); s.ph_kend(s.MA1); s.stamp(13)
        s.ph_vstart(1,s.MA0); s.ph_loop(NF,s.ph_vstep,lambda: s.ph_switch('V',58,58,0)); s.flush(1)
        if 'b' in s.o.get('tlb',''): e('s_barrier')
        s.ph_vstart(2,s.MA1); s.ph_loop(NS_-2,s.ph_vstep,None)
        e('s_lshl_b32 s81, s31, 2\ns_add_u32 s81, s81, s30\ns_lshl_b32 s81, s81, 8\ns_add_u32 s81, s81, %d'%WS_CNT)
        e('s_lshl_b32 s89, s30, 12\ns_add_u32 s89, s89, %d\ns_mov_b32 s80, 0x7fffffff\nv_mov_b32 v%d, 0'%(2*Ns*16384,TK+1))
        s.ph_vstep(0); s.ph_vstep(1); draw(); s.ph_vstep(2); s.ph_vstep(3); take()
        e('v_add_u32 v%d, %d, v%d'%(s.VS,256*R,s.VS))
        s.stamp(14)
        s.ph_switch('P',56,58,0)
        site(0,False); s.ph_vstep(0); s.ph_vstep(1); take()
        site(1,False); s.ph_vstep(2); s.ph_vstep(3); take()
        s.issueK=lambda sl: s.ph_issue(sl,0); s.issueV=lambda sl: s.ph_issue(sl,1)
        s.thr=s.o.get('pthr',0)
        if s.o.get('poolk')=='a': e('s_mov_b32 s70, 0xaaaaaaaa\ns_mov_b32 s71, 0xaaaaaaaa')
        e('%s:'%Lp)
        for h in range(2):
            site(2,True)
            for sl in range(h*C,h*C+C): s.tile(sl,n,rare)
            take()
        e('s_branch %s'%Lp)
        s.rare(rare)
        e('%s:'%Lfl); t0=len(s.t); s.flush(2)
        return Lfl,t0
    def rare(s,rare):
        e=s.e
        for La,Lb in rare:
            e('%s:'%La)
            e('v_max_f32 v19, v19, v16\nv_mov_b32 v24, v19\ns_nop 1\nv_permlane32_swap_b32 v19, v24\nv_max_f32 v19, v19, v24\nv_mov_b32 v24, v19\ns_nop 1\nv_permlane16_swap_b32 v19, v24\nv_max_f32 v16, v19, v24')
            e('v_mul_f32 v24, s67, v16\nv_sub_f32 v25, v17, v24\nv_exp_f32 v25, v25\nv_mov_b32 v17, v24\ns_nop 0\nv_mul_f32 v18, v18, v25')
            e('v_mov_b32_dpp v26, v25 row_newbcast:0 row_mask:0x3 bank_mask:0xf\nv_mov_b32_dpp v26, v25 row_newbcast:8 row_mask:0xc bank_mask:0xf')
            for r in range(4): e('v_mul_f32 v%d, v%d, v26'%(12+r,12+r))
            e('s_branch %s'%Lb)
    def wg_combine(s):
        e=s.e
        e('s_sub_u32 s65, s30, 1\ns_max_i32 s65, s65, 0\ns_mul_i32 s65, s65, 4160\ns_cmp_eq_u32 s30, 1\ns_cselect_b32 s66, 512, 0\ns_cselect_b32 s68, 8, 0\ns_add_u32 s66, s66, s65\ns_add_u32 s68, s68, s65')
        e('v_lshl_add_u32 v19, v0, 3, s66\nv_mov_b32 v20, s68')
        for i in range(4):
            e('ds_read_b64 v[%d:%d], v19 offset:%d\nds_read_b64 v[%d:%d], v20 offset:%d'%(24+2*i,25+2*i,L_PART+i*1040,32+2*i,33+2*i,L_PART+1024+i*1040))
        e('s_lshl_b32 s65, s31, 2\ns_add_u32 s65, s65, s30\ns_lshl_b32 s65, s65, 4\ns_add_u32 s65, s65, s64')
        if s.o['seg']: e('s_lshl_b32 s66, s65, 11\ns_add_u32 s66, s66, %d\nv_lshrrev_b32 v19, 2, v0\nv_lshlrev_b32 v19, 7, v19\nv_and_b32 v20, 3, v0\nv_lshl_add_u32 v19, v20, 4, v19'%WS_PO)
        else: e('s_lshl_b32 s66, s65, 10\ns_add_u32 s66, s66, %d\ns_lshl_b32 s65, s65, 4\ns_add_u32 s65, s65, %d\nv_lshlrev_b32 v19, 4, v0'%(WS_PO,WS_PML))
        e('v_mov_b32 v20, 0\nv_mov_b32 v13, s73\nv_mov_b32 v15, s73\nv_mov_b32 v41, s73\nv_mov_b32 v43, s73')
        e('s_waitcnt lgkmcnt(0)')
        e('v_max3_f32 v40, v32, v34, v36\nv_max_f32 v40, v40, v38')
        for i in range(4): e('v_sub_f32 v%d, v%d, v40'%(32+2*i,32+2*i))
        for i in range(4): e('v_exp_f32 v%d, v%d'%(32+2*i,32+2*i))
        e('s_nop 0\nv_mul_f32 v12, v32, v24\nv_mul_f32 v14, v32, v25\nv_mul_f32 v42, v32, v33')
        for i in range(1,4): e('v_fmac_f32 v12, v%d, v%d\nv_fmac_f32 v14, v%d, v%d\nv_fmac_f32 v42, v%d, v%d'%(32+2*i,24+2*i,32+2*i,25+2*i,32+2*i,33+2*i))
        e('buffer_store_dwordx4 v[12:15], v19, s[40:43], s66 offen sc1')
        if s.o['seg']: e('buffer_store_dwordx4 v[40:43], v19, s[40:43], s66 offen offset:64 sc1')
        else: e('s_mov_b64 exec, 1\nbuffer_store_dwordx4 v[40:43], v20, s[40:43], s65 offen sc1\ns_mov_b64 exec, -1')
    def tagpoll(s,loads,tagregs,tmp,pipe=True):
        e=s.e; L=s.lab('poll'); Lx=s.lab('pollx')
        if s.o.get('pp') and pipe:
            X=[l.replace('v[24:27]','v[48:51]').replace('v[28:31]','v[52:55]') for l in loads]
            Y=[l.replace('v[24:27]','v[120:123]').replace('v[28:31]','v[124:127]') for l in loads]
            def chk(d,lab):
                e('v_xor_b32 v%d, s73, v%d'%(tmp,tagregs[0]+d))
                for t in tagregs[1:]: e('v_xor_b32 v%d, s73, v%d\nv_or_b32 v%d, v%d, v%d'%(tmp+1,t+d,tmp,tmp,tmp+1))
                for r in (0,2,4,6): e('v_mov_b32 v%d, v%d'%(24+r,24+d+r))
                e('v_cmp_ne_u32 vcc, 0, v%d\ns_cbranch_vccz %s'%(tmp,lab))
            e('s_mov_b32 s72, 0x200000')
            for l in X: e(l)
            e('s_sleep %d\n%s:'%(s.o['pp'],L))
            for l in Y: e(l)
            e('s_waitcnt vmcnt(2)'); chk(24,Lx)
            for l in X: e(l)
            e('s_waitcnt vmcnt(2)'); chk(96,Lx)
            e('s_sub_u32 s72, s72, 1\ns_cmp_lg_u32 s72, 0\ns_cbranch_scc1 %s\n%s:'%(L,Lx))
            return
        e('s_mov_b32 s72, 0x200000\n%s:'%L)
        for l in loads: e(l)
        e('s_waitcnt vmcnt(0)')
        e('v_xor_b32 v%d, s73, v%d'%(tmp,tagregs[0]))
        for t in tagregs[1:]: e('v_xor_b32 v%d, s73, v%d\nv_or_b32 v%d, v%d, v%d'%(tmp+1,t,tmp,tmp,tmp+1))
        e('v_cmp_ne_u32 vcc, 0, v%d\ns_cbranch_vccz %s'%(tmp,Lx))
        if s.o.get('sleep'): e('s_sleep %d'%s.o['sleep'])
        e('s_sub_u32 s72, s72, 1\ns_cmp_lg_u32 s72, 0\ns_cbranch_scc1 %s\n%s:'%(L,Lx))
    def team_loads(s):
        e=s.e
        e('s_lshr_b32 s65, s64, 2\ns_lshl_b32 s66, s31, 2\ns_add_u32 s65, s65, s66')
        if s.o['seg']:
            e('s_lshl_b32 s66, s65, 15\ns_and_b32 s68, s64, 3\ns_lshl_b32 s68, s68, 2\ns_add_u32 s68, s68, s30\ns_lshl_b32 s68, s68, 7\ns_add_u32 s66, s66, s68\ns_add_u32 s66, s66, %d'%WS_PO)
            e('v_and_b32 v19, 15, v0\nv_lshlrev_b32 v19, 11, v19\nv_lshrrev_b32 v21, 4, v0\nv_lshl_add_u32 v19, v21, 4, v19')
            s.tagpoll(['buffer_load_dwordx4 v[24:27], v19, s[40:43], s66 offen offset:64 sc1','buffer_load_dwordx4 v[28:31], v19, s[40:43], s66 offen sc1'],[25,27,29,31],32)
            return
        e('s_lshl_b32 s66, s65, 14\ns_and_b32 s68, s64, 3\ns_lshl_b32 s68, s68, 8\ns_add_u32 s66, s66, s68\ns_lshl_b32 s68, s30, 6\ns_add_u32 s66, s66, s68\ns_add_u32 s66, s66, %d'%WS_PO)
        e('s_lshl_b32 s65, s65, 8\ns_add_u32 s65, s65, %d'%WS_PML)
        e('v_and_b32 v19, 15, v0\nv_lshlrev_b32 v20, 4, v19\nv_lshlrev_b32 v19, 10, v19\nv_lshrrev_b32 v21, 4, v0\nv_lshl_add_u32 v19, v21, 4, v19')
        s.tagpoll(['buffer_load_dwordx4 v[24:27], v20, s[40:43], s65 offen sc1','buffer_load_dwordx4 v[28:31], v19, s[40:43], s66 offen sc1'],[25,27,29,31],32)
    def rowred(s,op,regs):
        for ror in (8,4,2,1):
            s.e('s_nop 1')
            for r in regs: s.e('%s_dpp v%d, v%d, v%d row_ror:%d row_mask:0xf bank_mask:0xf'%(op,r,r,r,ror))
    def team_proj(s):
        e=s.e
        e('v_mov_b32 v21, v24'); s.rowred('v_max_f32',[21])
        e('v_sub_f32 v24, v24, v21\nv_exp_f32 v24, v24\ns_nop 0\nv_mul_f32 v26, v26, v24\nv_mul_f32 v28, v28, v24\nv_mul_f32 v30, v30, v24')
        s.rowred('v_add_f32',[26,28,30])
        e('v_rcp_f32 v26, v26\ns_nop 0\nv_mul_f32 v28, v28, v26\nv_mul_f32 v30, v30, v26\nv_cvt_pk_bf16_f32 v28, v28, v28\nv_cvt_pk_bf16_f32 v30, v30, v30')
        for rg in range(2):
            for q in range(4): e('v_and_b32 v%d, v%d, v%d'%(32+4*rg+q,28+2*rg,4+q))
        e('s_nop 1')
        for rg in range(2):
            for cb in range(5):
                r=56+(rg*5+cb)*4; d=100+4*cb
                e('v_mfma_f32_16x16x32_bf16 v[%d:%d], v[%d:%d], v[%d:%d], %s'%(d,d+3,32+4*rg,35+4*rg,r,r+3,'0' if rg==0 else 'v[%d:%d]'%(d,d+3)))
        e('s_mul_i32 s65, s30, 2560\nv_and_b32 v19, 15, v0\nv_lshl_add_u32 v19, v19, 5, s65\nv_bfe_u32 v20, v0, 4, 1\nv_lshl_add_u32 v19, v20, 4, v19')
        e('s_nop 4\ns_mov_b32 exec_hi, 0')
        for cb in range(5): e('ds_write_b128 v19, v[%d:%d] offset:%d'%(100+4*cb,103+4*cb,L_YL+cb*512))
        e('s_mov_b64 exec, -1')
        e('s_cmp_lt_u32 s64, 8\ns_cselect_b32 s69, 1, 0\ns_mul_i32 s65, s69, %d\ns_and_b32 s66, s64, 7\ns_lshl_b32 s68, s31, 3\ns_add_u32 s66, s66, s68\ns_lshl_b32 s66, s66, 6\ns_add_u32 s65, s65, s66\ns_add_u32 s65, s65, %d'%(72*8192,WS_Y))
        e('v_lshlrev_b32 v19, 4, v3\nv_lshrrev_b32 v20, 1, v3\nv_lshlrev_b32 v20, 13, v20\nv_and_b32 v21, 1, v3\nv_lshl_add_u32 v20, v21, 5, v20')
        e('v_mov_b32 v41, s73\nv_mov_b32 v43, s73\nv_mov_b32 v45, s73\nv_mov_b32 v47, s73')
        e('s_waitcnt lgkmcnt(0)\ns_barrier')
        Ls=s.lab('noy')
        e('v_cmp_gt_u32 vcc, 144, v3\ns_and_saveexec_b64 s[70:71], vcc\ns_cbranch_execz %s'%Ls)
        for w in range(4): e('ds_read_b128 v[%d:%d], v19 offset:%d'%(24+4*w,27+4*w,L_YL+w*2560))
        e('s_waitcnt lgkmcnt(0)')
        for r in range(4): e('v_add_f32 v%d, v%d, v%d\nv_add_f32 v%d, v%d, v%d'%(24+r,24+r,28+r,32+r,32+r,36+r))
        for r in range(4): e('v_add_f32 v%d, v%d, v%d'%(40+2*r,24+r,32+r))
        e('buffer_store_dwordx4 v[40:43], v20, s[40:43], s65 offen sc1\nbuffer_store_dwordx4 v[44:47], v20, s[40:43], s65 offen offset:16 sc1')
        e('%s:\ns_mov_b64 exec, s[70:71]'%Ls)
    def final(s):
        e=s.e
        e('s_cmp_ge_u32 s3, 144\ns_cbranch_scc1 %s'%s.end)
        e('s_lshl_b32 s65, s3, 13\ns_add_u32 s65, s65, %d\ns_add_u32 s66, s65, 4096\nv_lshlrev_b32 v19, 4, v3'%WS_Y)
        e('s_mov_b32 s44, s24\ns_mov_b32 s45, s25\ns_mov_b32 s46, 2304\ns_mov_b32 s47, 0x20000')
        e('s_lshl_b32 s68, s30, 5\nv_and_b32 v21, 3, v0\nv_lshl_add_u32 v21, v21, 3, s68')
        s.tagpoll(['buffer_load_dwordx4 v[24:27], v19, s[40:43], s65 offen sc1','buffer_load_dwordx4 v[28:31], v19, s[40:43], s66 offen sc1'],[25,27,29,31],32)
        if s.o['stamp']: e('s_sub_u32 s95, 0x200000, s72'); s.stamp(12)
        e('v_add_f32 v24, v24, v28\nv_add_f32 v25, v26, v30')
        for ror in (4,8):
            e('s_nop 1')
            for r in range(2): e('v_add_f32_dpp v%d, v%d, v%d row_ror:%d row_mask:0xf bank_mask:0xf'%(24+r,24+r,24+r,ror))
        for sw in ('32','16'):
            for r in range(2): e('v_mov_b32 v%d, v%d'%(28+r,24+r))
            e('s_nop 1')
            for r in range(2): e('v_permlane%s_swap_b32 v%d, v%d'%(sw,24+r,28+r))
            for r in range(2): e('v_add_f32 v%d, v%d, v%d'%(24+r,24+r,28+r))
        e('s_mov_b64 exec, 0xf\nds_write_b64 v21, v[24:25] offset:%d\ns_mov_b64 exec, -1'%L_FL)
        e('s_waitcnt lgkmcnt(0)\ns_barrier')
        e('s_cmp_lg_u32 s30, 0\ns_cbranch_scc1 %s'%s.end)
        e('s_mov_b64 exec, 0xff\nv_lshlrev_b32 v19, 2, v0')
        for w in range(4): e('ds_read_b32 v%d, v19 offset:%d'%(24+w,L_FL+32*w))
        e('s_lshl_b32 s65, s3, 4\nv_lshlrev_b32 v19, 1, v0\ns_waitcnt lgkmcnt(0)')
        e('v_add_f32 v24, v24, v25\nv_add_f32 v26, v26, v27\nv_add_f32 v24, v24, v26\nv_cvt_pk_bf16_f32 v24, v24, v24')
        e('buffer_store_short v24, v19, s[44:47], s65 offen')
        L=s.lab('noep')
        e('s_cmp_lg_u32 s3, 0\ns_cbranch_scc1 %s'%L)
        e('s_mov_b64 exec, 1\nv_mov_b32 v19, %d\nv_mov_b32 v20, s73\nbuffer_store_dword v20, v19, s[40:43], 0 offen sc1\n%s:'%(WS_E,L))
    def dryify(s,t0):
        lines='\n'.join(s.t[t0:]).split('\n'); out=[]; i=0
        while i<len(lines):
            l=lines[i]
            if l.startswith('buffer_') or l=='s_barrier':
                j=i
                while j<len(lines) and (lines[j].startswith('buffer_') or lines[j]=='s_barrier'): j+=1
                L=s.lab('skip'); out.append('s_cbranch_execz %s'%L); out+=lines[i:j]; out.append('%s:'%L); i=j; continue
            m=re.match(r's_mov_b64 exec, (-1|1|0x[0-9a-f]+)$',l)
            if m: l='s_and_b64 exec, s[82:83], %s'%m.group(1)
            if l.startswith('s_and_saveexec_b64') and lines[i+1].startswith('s_cbranch_execz'):
                out.append(l); tgt=lines[i+1].split()[1]; L=s.lab('fall')
                out.append('s_cmp_eq_u32 s82, 0\ns_cbranch_scc1 %s\ns_cbranch_execz %s\n%s:'%(L,tgt,L)); i+=2; continue
            out.append(l); i+=1
        s.t[t0:]=out
    def stamp(s,slot,kidx=0,first=False,cnt=False):
        if not s.o['stamp']: return
        e=s.e
        e('s_memrealtime s[92:93]\ns_getreg_b32 s94, hwreg(HW_REG_XCC_ID)\ns_waitcnt lgkmcnt(0)')
        e('s_add_u32 s84, s28, 0x60000000\ns_addc_u32 s85, s29, 0\ns_mov_b32 s86, 0x1000000\ns_mov_b32 s87, 0x20000')
        e('s_lshl_b32 s88, s2, 3\ns_add_u32 s88, s88, s30\ns_lshl_b32 s88, s88, 6\ns_add_u32 s88, s88, %d'%(slot*4))
        e('s_mov_b64 s[78:79], exec\ns_mov_b64 exec, 1\nv_mov_b32 v252, 0\nv_mov_b32 v253, s92')
        e('buffer_store_dword v253, v252, s[84:87], s88 offen')
        if first: e('v_mov_b32 v254, s90\nv_mov_b32 v255, s94\nbuffer_store_dwordx2 v[254:255], v252, s[84:87], s88 offen offset:4')
        if cnt: e('v_mov_b32 v253, s95\nbuffer_store_dword v253, v252, s[84:87], s88 offen offset:4')
        if slot==4: e('v_mov_b32 v253, s95\nbuffer_store_dword v253, v252, s[84:87], s88 offen offset:44')
        e('s_mov_b64 exec, s[78:79]')
    def fused(s):
        e=s.e; R=s.o['R']; s.o['perlane']=1; s.o.setdefault('LA',1); s.step=16384
        k=s.px+NAME+'_kernel' if not s.px else s.px+'fused_kernel'
        e('.text\n.globl %s\n.p2align 8\n.type %s,@function\n%s:'%(k,k,k))
        s.end=s.lab('end'); Lsvc=s.lab('svc'); Lq=s.lab('qc'); Lsv2=s.lab('svc2')
        e('s_cmp_ge_u32 s2, 256\ns_cbranch_scc1 %s'%s.end)
        e('s_load_dwordx16 s[4:19], s[0:1], 0\ns_load_dwordx8 s[20:27], s[0:1], 64\ns_load_dwordx2 s[28:29], s[0:1], 96')
        if s.o['stamp']: e('s_memrealtime s[90:91]\ns_mov_b32 s95, 0')
        e('v_lshrrev_b32 v1, 6, v0\nv_mov_b32 v3, v0\nv_and_b32 v0, 63, v0\nv_readfirstlane_b32 s30, v1')
        e('s_mov_b32 s3, s2\ns_lshr_b32 s31, s2, 4\ns_and_b32 s64, s2, 15\ns_mov_b32 s43, 0x20000\ns_mov_b32 s42, %d\ns_mov_b64 s[82:83], -1'%WS_SIZE)
        e('s_cmp_eq_u32 s30, 4\ns_cbranch_scc1 %s'%Lsvc)
        e('v_lshrrev_b32 v4, 2, v3\nv_and_b32 v5, 3, v3\nv_lshlrev_b32 v5, 4, v5\nv_lshl_add_u32 v5, v4, 13, v5\nv_lshlrev_b32 v4, 1, v4')
        e('s_and_b32 s65, s64, 3\ns_lshl_b32 s65, s65, 7\ns_lshr_b32 s66, s64, 3\ns_lshl_b32 s66, s66, 6\ns_add_u32 s65, s65, s66\ns_lshl_b32 s66, s31, 9\ns_add_u32 s65, s65, s66')
        e('s_mov_b32 s46, %d\ns_mov_b32 s47, s43\ns_mov_b32 s50, 1152\ns_mov_b32 s51, s43'%(576*8192))
        e('s_mov_b32 s34, 0x1000000\ns_mov_b32 s35, s43\ns_mov_b32 s38, s34\ns_mov_b32 s39, s43\ns_mov_b32 s76, 32768')
        e('s_lshl_b32 s60, s64, 20\ns_lshl_b32 s61, s30, 12\ns_add_u32 s60, s60, s61\ns_mov_b32 s61, s60\ns_lshl_b32 s62, s31, 24')
        kk=s.K128
        e('v_lshrrev_b32 v2, 4, v0\nv_lshlrev_b32 v%d, 4, v2\nv_bfe_u32 v2, v0, 2, 2\nv_lshl_add_u32 v%d, v2, 8, v%d\nv_and_b32 v2, 3, v0\nv_lshl_add_u32 v1, v2, 10, v%d'%(kk,kk,kk,kk))
        e('v_and_b32 v2, 1, v0\nv_lshl_add_u32 v%d, v2, 6, v%d\nv_bfe_u32 v2, v0, 1, 1\nv_lshl_add_u32 v%d, v2, 10, v%d\nv_lshlrev_b32 v2, 4, v0'%(kk,kk,kk,kk))
        s.ph_offs('K')
        e('s_and_b32 s66, s64, 4\ns_cmp_eq_u32 s66, 0\ns_waitcnt lgkmcnt(0)')
        e('s_cselect_b32 s44, s20, s10\ns_cselect_b32 s45, s21, s11\ns_cselect_b32 s48, s14, s4\ns_cselect_b32 s49, s15, s5')
        e('s_add_u32 s32, s16, s62\ns_addc_u32 s33, s17, 0\ns_mov_b32 s36, s32\ns_mov_b32 s37, s33')
        halves=[]
        for sl in range(R): halves+=[lambda sl=sl: s.ph_issue(sl,0), lambda sl=sl: s.ph_issue(sl,1)]
        pre0,pre,hk,thr=s.o.get('fill',(0,1,(4,8),4))
        for h in halves[:pre0]: h()
        wb,xb,ab,tb=56,40,24,20
        for i in range(9):
            e('buffer_load_ushort v%d, v4, s[48:51], 0 offen offset:%d'%(xb+i,i*128))
            e('buffer_load_dwordx4 v[%d:%d], v5, s[44:47], s65 offen nt'%(wb+4*i,wb+4*i+3))
            if i<8: e('s_add_u32 s65, s65, %d'%(64*8192))
        for h in halves[pre0:pre0+pre]: h()
        if s.o.get('qst'): e('s_memrealtime s[100:101]')
        e('s_mov_b32 s40, s28\ns_mov_b32 s41, s29\ns_add_u32 s74, s28, %d\ns_addc_u32 s75, s29, 0\ns_load_dword s73, s[74:75], 0'%WS_E)
        e('s_add_u32 s98, s18, s62\ns_addc_u32 s99, s19, 0\ns_lshl_b32 s62, s62, 1')
        e('s_add_u32 s52, s6, s62\ns_addc_u32 s53, s7, 0\ns_add_u32 s54, s8, s62\ns_addc_u32 s55, s9, 0')
        e('s_add_u32 s56, s52, s34\ns_addc_u32 s57, s53, 0\ns_add_u32 s58, s54, s34\ns_addc_u32 s59, s55, 0')
        e('%s:\ns_mov_b32 s66, 0xffff0000'%Lq); t0=len(s.t)
        newer=4*pre; nh=pre0+pre
        for i in range(9):
            e('s_waitcnt vmcnt(%d)'%(newer+2*(8-i)))
            if s.o.get('qst') and i in (0,8): e('s_memrealtime s[%d:%d]'%((84,85) if i==0 else (86,87)))
            if i in hk: halves[nh](); nh+=1; newer+=4
            e('v_lshlrev_b32 v%d, 16, v%d'%(xb+i,xb+i))
            for d in range(4):
                e('v_lshlrev_b32 v%d, 16, v%d\nv_and_b32 v%d, s66, v%d'%(tb,wb+4*i+d,tb+1,wb+4*i+d))
                op='v_mul_f32' if i==0 else 'v_fmac_f32'
                e('%s v%d, v%d, v%d\n%s v%d, v%d, v%d'%(op,ab+2*d,xb+i,tb,op,ab+2*d+1,xb+i,tb+1))
        e('v_lshrrev_b32 v%d, 4, v3\nv_and_b32 v%d, 3, v3\nv_lshlrev_b32 v%d, 5, v%d\nv_lshl_add_u32 v%d, v%d, 7, v%d'%(tb,tb+1,tb+1,tb+1,tb,tb,tb+1))
        for ror in (4,8):
            for j in range(8): e('v_add_f32_dpp v%d, v%d, v%d row_ror:%d row_mask:0xf bank_mask:0xf'%(ab+j,ab+j,ab+j,ror))
        e('ds_write_b128 v%d, v[%d:%d] offset:%d\nds_write_b128 v%d, v[%d:%d] offset:%d'%(tb,ab,ab+3,L_QR,tb,ab+4,ab+7,L_QR+16))
        e('s_waitcnt lgkmcnt(0)')
        if s.o.get('qdry',1): s.dryify(t0); e('s_cbranch_execz %s'%Lsv2)
        e('s_barrier')
        e('s_add_u32 s73, s73, 0x%x'%TAGINC)
        if s.o.get('qst'): e('s_mov_b32 s62, s84\ns_mov_b32 s63, s86')
        s.stamp(0,first=True)
        if s.o.get('qst'):
            e('s_mov_b64 exec, 1\nv_mov_b32 v253, s100\nv_mov_b32 v254, s62\nv_mov_b32 v255, s63\nbuffer_store_dword v253, v252, s[84:87], s88 offen offset:20\nbuffer_store_dwordx2 v[254:255], v252, s[84:87], s88 offen offset:24\ns_mov_b64 exec, -1')
        for n_,h in enumerate(halves[nh:]):
            e('s_waitcnt vmcnt(%d)'%thr); h()
            if n_==0: s.masks()
        s.stamp(11)
        e('s_barrier')
        s.stamp(3)
        Ltail,t0=s.att_phased(); s.stamp(4)
        e('s_barrier')
        q=s.o.get('qst')
        s.wg_combine(); (q or s.stamp(5))
        s.team_loads(); (q or s.stamp(6))
        s.team_proj(); (q or s.stamp(7)); s.final(); s.stamp(10)
        s.dryify(t0)
        e('s_endpgm')
        e('%s:\ns_setprio 3\ns_waitcnt lgkmcnt(0)'%Lsvc)
        e('s_mov_b32 s40, s28\ns_mov_b32 s41, s29\ns_add_u32 s74, s28, %d\ns_addc_u32 s75, s29, 0\ns_load_dword s73, s[74:75], 0'%WS_E)
        t0_=s.o.get('tlb0','')
        if 'k' in t0_: e('s_lshl_b32 s65, s2, 20\ns_add_u32 s44, s16, s65\ns_addc_u32 s45, s17, 0\ns_load_dword s46, s[44:45], 0')
        if 'w' in t0_:
            e('s_and_b32 s66, s64, 4\ns_cmp_eq_u32 s66, 0\ns_cselect_b32 s48, s20, s10\ns_cselect_b32 s49, s21, s11')
            e('s_add_u32 s44, s48, 0x200000\ns_addc_u32 s45, s49, 0\ns_load_dword s46, s[44:45], 0\ns_add_u32 s44, s48, 0x400000\ns_addc_u32 s45, s49, 0\ns_load_dword s46, s[44:45], 0')
        if 'q' in t0_: e('s_load_dword s46, s[28:29], 0')
        if s.o.get('touch'):
            e('s_and_b32 s66, s64, 4\ns_cmp_eq_u32 s66, 0\ns_cselect_b32 s44, s20, s10\ns_cselect_b32 s45, s21, s11\ns_mov_b32 s46, %d\ns_mov_b32 s47, s43'%(576*8192))
            e('s_lshl_b32 s62, s31, 24\ns_add_u32 s32, s16, s62\ns_addc_u32 s33, s17, 0\ns_mov_b32 s34, 0x1000000\ns_mov_b32 s35, s43\ns_lshl_b32 s61, s64, 20')
            e('v_lshlrev_b32 v19, 21, v0\nv_mov_b32 v20, 0\ns_mov_b64 exec, 1')
            if 'k' in s.o['touch']: e('buffer_load_dword v22, v20, s[32:35], s61 offen nt')
            if 'w' in s.o['touch']: e('s_mov_b64 exec, 0x6\nbuffer_load_dword v23, v19, s[44:47], 0 offen nt')
            e('s_mov_b64 exec, -1')
        L=s.lab('notlead')
        e('s_cmp_lg_u32 s64, 0\ns_cbranch_scc1 %s'%L)
        e('s_lshl_b32 s65, s31, 10\ns_add_u32 s65, s65, %d\nv_lshlrev_b32 v19, 8, v0\nv_mov_b32 v20, 0\ns_mov_b64 exec, 0xf'%(WS_CNT))
        e('buffer_store_dword v20, v19, s[40:43], s65 offen sc1\ns_mov_b64 exec, -1\n%s:'%L)
        if s.o.get('qdry',1):
            for r in range(8): e('v_mov_b32 v%d, 0'%(s.VO+r))
            e('s_mov_b64 s[32:33], s[28:29]\ns_mov_b32 s34, 0\ns_mov_b32 s35, s43\ns_mov_b64 s[36:37], s[28:29]\ns_mov_b32 s38, 0\ns_mov_b32 s39, s43\ns_mov_b32 s61, 0\ns_mov_b32 s76, 0')
            e('s_mov_b64 s[82:83], 0\ns_mov_b64 exec, 0\ns_branch %s\n%s:\ns_mov_b64 exec, -1'%(Lq,Lsv2))
        e('s_waitcnt vmcnt(0) lgkmcnt(0)\ns_add_u32 s73, s73, 0x%x'%TAGINC)
        e('s_barrier')
        s.q_finish(24,'sc1')
        s.stamp(12)
        e('s_lshl_b32 s65, s31, 11\nv_lshlrev_b32 v19, 5, v0\nv_lshlrev_b32 v21, 4, v0')
        s.tagpoll(['buffer_load_dwordx4 v[24:27], v19, s[40:43], s65 offen sc1','buffer_load_dwordx4 v[28:31], v19, s[40:43], s65 offen offset:16 sc1'],[25,27,29,31],32,pipe=False)
        e('v_mov_b32 v25, v26\nv_mov_b32 v26, v28\nv_mov_b32 v27, v30')
        e('ds_write_b128 v21, v[24:27] offset:%d\ns_waitcnt lgkmcnt(0)'%L_Q)
        e('s_barrier')
        tl=s.o.get('tlb','')
        if tl:
            def touch(p,off):
                e('s_add_u32 s44, s%d, %s\ns_addc_u32 s45, s%d, 0\ns_load_dword s46, s[44:45], 0'%(p,off,p+1))
            if 's' in tl:
                e('s_lshl_b32 s65, s31, 4\ns_add_u32 s65, s65, s64\ns_lshl_b32 s65, s65, 20'); touch(18,'s65')
                e('s_lshl_b32 s65, s31, 5\ns_add_u32 s65, s65, s64\ns_lshl_b32 s65, s65, 20'); touch(6,'s65'); touch(8,'s65')
                e('s_add_u32 s65, s65, 0x1000000'); touch(6,'s65'); touch(8,'s65')
            if 'w' in tl:
                e('s_cmp_lt_u32 s64, 8\ns_cselect_b32 s48, s22, s12\ns_cselect_b32 s49, s23, s13')
                e('s_and_b32 s65, s64, 7\ns_lshl_b32 s65, s65, 5\ns_lshl_b32 s66, s31, 8\ns_add_u32 s65, s65, s66\ns_mul_i32 s65, s65, 1152'); touch(48,'s65')
                e('s_add_u32 s65, s65, %d'%(32*1152-4)); touch(48,'s65'); e('s_waitcnt lgkmcnt(0)')
            if 'b' in tl: e('s_waitcnt lgkmcnt(0)\ns_barrier')
            if 'p' in tl:
                e('s_lshl_b32 s65, s31, 25\ns_add_u32 s65, s65, 0x10f0000')
                for j in range(8):
                    touch(6,'s65'); touch(8,'s65'); e('s_add_u32 s65, s65, 0x200000')
                    if j%2: e('s_waitcnt lgkmcnt(0)')
            if 'o' in tl: e('s_load_dword s46, s[24:25], 0\ns_mov_b32 s65, %d'%WS_Y); touch(28,'s65')
            e('s_waitcnt lgkmcnt(0)')
        e('s_setprio 0\nv_mov_b32 v19, 0\nv_mov_b32 v20, 0\nv_mov_b32 v21, 0\ns_mov_b64 s[82:83], 0\ns_mov_b64 exec, 0\ns_mov_b32 s3, 0\ns_mov_b32 s30, 0\ns_branch %s'%Ltail)
        nv=251
        s.tail(k,nv)
        launch='; @launch grid=(256,1,1) block=(320,1,1) lds=%d'%LDS_SIZE
        return launch,'%s:256:320:%d'%(k,LDS_SIZE),[(k,nv,320)]
    def build(s):
        launch,spec,ks=getattr(s,s.o['mode'])()
        return HDR+launch+'\n.amdgcn_target "amdgcn-amd-amdhsa--gfx950"\n'+'\n'.join(s.t)+'\n',spec,ks
def write(path,**o):
    t,spec,ks=G(**o).build(); open(path,'w').write(t); return spec,ks
if __name__=='__main__':
    o=eval('dict(%s)'%(sys.argv[2] if len(sys.argv)>2 else ''))
    print(write(sys.argv[1],**o))
```

```python
import sys, re, math, struct
NAME='concat_heads__mha_block_cached__gqa_block_cached__decode'
HDR=open('cdna_kernels/%s.s.ref'%NAME).read().split('; Override launch')[0]

WS_Q=0; WS_PO=0x10000; WS_PML=0x110000; WS_Y=0x220000; WS_E=0x340000; WS_CNT=0x341000; WS_S=0x350000; WS_SIZE=0x350000+1024*16*64
TAGINC=0x9E3779B1
L_Q=0; L_QR=1024; L_PART=3072; L_YL=16384; L_FL=16384+4*2560; L_S=L_FL+256; LDS_SIZE=L_S+32768
CSC=struct.unpack('<I',struct.pack('<f',math.log2(math.e)/math.sqrt(128)))[0]
LOG2E=struct.unpack('<I',struct.pack('<f',math.log2(math.e)))[0]
SCALE=struct.unpack('<I',struct.pack('<f',128**-0.5))[0]

DOC="""; ---------------------------------------------------------------------------------------------
; Hand-offs between workgroups are 8-byte {value, tag} granules written and read with sc1.  The tag
; ---------------------------------------------------------------------------------------------
"""
class G:
    def __init__(s, **o):
        s.o=dict(mode='fused', pattern='wg', kfl='nt', vfl='nt', R=4, stamp=False, xcd=False, T=8, tlb='', seg=0, xlast=1, vthr='4445', kthr='4445', kmix='aa', pthr=0, burst=2); s.o.update(o)
        s.t=[]; s.uid=0; s.px=s.o.get('prefix','')
    def e(s,x): s.t.append(x)
    def lab(s,n): s.uid+=1; return 'L_%s%s_%d'%(s.px,n,s.uid)
    def head(s,name,nwg):
        s.e('.text\n.globl %s\n.p2align 8\n.type %s,@function\n%s:'%(name,name,name))
        s.end=s.lab('end')
        s.e('s_cmp_ge_u32 s2, %d\ns_cbranch_scc1 %s'%(nwg,s.end))
        s.e('s_load_dwordx16 s[4:19], s[0:1], 0\ns_load_dwordx8 s[20:27], s[0:1], 64\ns_load_dwordx2 s[28:29], s[0:1], 96')
        if s.o['stamp']: s.e('s_memrealtime s[90:91]\ns_mov_b32 s95, 0')
        s.e('v_lshrrev_b32 v1, 6, v0\nv_mov_b32 v3, v0\nv_and_b32 v0, 63, v0')
        s.e('v_readfirstlane_b32 s30, v1')
        if s.o['xcd']:
            s.e('s_and_b32 s31, s2, 7\ns_lshr_b32 s3, s2, 3\ns_lshl_b32 s31, s31, 5\ns_add_u32 s3, s3, s31')
        else: s.e('s_mov_b32 s3, s2')
        s.e('s_lshr_b32 s31, s3, 4\ns_and_b32 s64, s3, 15')
        s.e('s_waitcnt lgkmcnt(0)')
        s.e('s_mov_b32 s40, s28\ns_mov_b32 s41, s29\ns_mov_b32 s42, %d\ns_mov_b32 s43, 0x20000'%WS_SIZE)
        s.e('s_add_u32 s74, s28, %d\ns_addc_u32 s75, s29, 0\ns_load_dword s73, s[74:75], 0'%WS_E)
    def tail(s,name,nv,ns=102):
        if s.o['stamp']: nv=256
        s.e('%s:\ns_endpgm'%s.end)
        s.e('.section .rodata,"a"\n.p2align 6\n.amdhsa_kernel %s\n  .amdhsa_next_free_vgpr %d\n  .amdhsa_next_free_sgpr %d\n  .amdhsa_accum_offset %d\n  .amdhsa_group_segment_fixed_size 0\n  .amdhsa_kernarg_size 104\n  .amdhsa_user_sgpr_count 2\n  .amdhsa_user_sgpr_kernarg_segment_ptr 1\n  .amdhsa_system_sgpr_workgroup_id_x 1\n.end_amdhsa_kernel'%(name,nv,ns,(nv+3)//4*4))
    def q_issue(s,wb,xb):
        e=s.e
        if s.o.get('qpair',1): e('s_and_b32 s65, s64, 4\ns_cmp_eq_u32 s65, 0')
        else: e('s_cmp_lt_u32 s64, 8')
        e('s_cselect_b32 s44, s20, s10\ns_cselect_b32 s45, s21, s11\ns_cselect_b32 s48, s14, s4\ns_cselect_b32 s49, s15, s5')
        e('s_mov_b32 s46, %d\ns_mov_b32 s47, 0x20000\ns_mov_b32 s50, 1152\ns_mov_b32 s51, 0x20000'%(576*8192))
        if s.o.get('qpair',1): e('s_and_b32 s65, s64, 3\ns_lshl_b32 s65, s65, 7\ns_lshr_b32 s66, s64, 3\ns_lshl_b32 s66, s66, 6\ns_add_u32 s65, s65, s66\ns_lshl_b32 s66, s31, 9\ns_add_u32 s65, s65, s66')
        else: e('s_and_b32 s65, s64, 7\ns_lshl_b32 s65, s65, 6\ns_lshl_b32 s66, s31, 9\ns_add_u32 s65, s65, s66')
        e('v_lshrrev_b32 v4, 2, v3\nv_and_b32 v5, 3, v3\nv_lshlrev_b32 v5, 4, v5\nv_lshl_add_u32 v5, v4, 13, v5\nv_lshlrev_b32 v4, 1, v4')
        for i in range(9):
            e('buffer_load_ushort v%d, v4, s[48:51], 0 offen offset:%d'%(xb+i,i*128))
        for i in range(9):
            e('buffer_load_dwordx4 v[%d:%d], v5, s[44:47], s65 offen %s'%(wb+4*i,wb+4*i+3,s.o.get('qfl','nt')))
            if i<8: e('s_add_u32 s65, s65, %d'%(64*8192))
    def q_compute(s,wb,xb,ab,tb,newer,hooks={}):
        e=s.e
        for j in range(8): e('v_mov_b32 v%d, 0'%(ab+j))
        for i in range(9):
            e('s_waitcnt vmcnt(%d)'%(newer+8-i))
            if s.o.get('qst') and i in (0,8): e('s_memrealtime s[%d:%d]'%((84,85) if i==0 else (86,87)))
            if i in hooks: hooks[i][0](); newer+=hooks[i][1]
            e('v_lshlrev_b32 v%d, 16, v%d'%(xb+i,xb+i))
            for d in range(4):
                e('v_lshlrev_b32 v%d, 16, v%d\nv_and_b32 v%d, 0xffff0000, v%d'%(tb,wb+4*i+d,tb+1,wb+4*i+d))
                e('v_fmac_f32 v%d, v%d, v%d\nv_fmac_f32 v%d, v%d, v%d'%(ab+2*d,xb+i,tb,ab+2*d+1,xb+i,tb+1))
        for ror in (4,8):
            e('s_nop 1')
            for j in range(8): e('v_add_f32_dpp v%d, v%d, v%d row_ror:%d row_mask:0xf bank_mask:0xf'%(ab+j,ab+j,ab+j,ror))
        e('v_lshrrev_b32 v%d, 4, v3\nv_and_b32 v%d, 3, v3\nv_lshlrev_b32 v%d, 5, v%d\nv_lshl_add_u32 v%d, v%d, 7, v%d'%(tb,tb+1,tb+1,tb+1,tb,tb,tb+1))
        e('ds_write_b128 v%d, v[%d:%d] offset:%d\nds_write_b128 v%d, v[%d:%d] offset:%d'%(tb,ab,ab+3,L_QR,tb,ab+4,ab+7,L_QR+16))
        e('s_waitcnt lgkmcnt(0)')
    def q_finish(s,tb,fl):
        e=s.e
        e('v_and_b32 v%d, 31, v0\nv_lshlrev_b32 v%d, 2, v%d\nv_lshrrev_b32 v%d, 5, v0\nv_lshl_add_u32 v%d, v%d, 10, v%d'%(tb,tb,tb,tb+1,tb,tb+1,tb))
        for p in range(8): e('ds_read_b32 v%d, v%d offset:%d'%(tb+2+p,tb,L_QR+p*128))
        if s.o.get('qpair',1): e('s_and_b32 s65, s64, 7\ns_lshl_b32 s65, s65, 1\ns_lshr_b32 s66, s64, 3\ns_add_u32 s65, s65, s66\ns_lshl_b32 s66, s31, 4\ns_add_u32 s65, s65, s66\ns_lshl_b32 s65, s65, 7')
        else: e('s_lshl_b32 s65, s3, 7')
        e('v_and_b32 v%d, 31, v0\nv_lshlrev_b32 v%d, 2, v%d'%(tb,tb,tb))
        e('s_waitcnt lgkmcnt(0)')
        for a,b in ((0,1),(2,3),(4,5),(6,7),(0,2),(4,6),(0,4)): e('v_add_f32 v%d, v%d, v%d'%(tb+2+a,tb+2+a,tb+2+b))
        e('v_mov_b32 v%d, v%d\ns_nop 1\nv_permlane32_swap_b32 v%d, v%d\nv_add_f32 v%d, v%d, v%d'%(tb+3,tb+2,tb+2,tb+3,tb+2,tb+2,tb+3))
        e('s_nop 1\nv_mov_b32_dpp v%d, v%d quad_perm:[1,0,3,2] row_mask:0xf bank_mask:0xf'%(tb+3,tb+2))
        e('v_cvt_pk_bf16_f32 v%d, v%d, v%d\nv_mov_b32 v%d, s73'%(tb+2,tb+2,tb+3,tb+3))
        e('s_mov_b32 exec_lo, 0x55555555\ns_mov_b32 exec_hi, 0')
        e('buffer_store_dwordx2 v[%d:%d], v%d, s[40:43], s65 offen %s'%(tb+2,tb+3,tb,fl))
        e('s_mov_b64 exec, -1')
    RING=96
    def att_setup(s):
        e=s.e
        rot=s.o.get('rot',0)
        if rot==1: e('s_mul_i32 s96, s31, 11\ns_lshr_b32 s96, s96, 5\ns_mul_i32 s96, s96, 3\ns_sub_u32 s96, s31, s96')
        else: e('s_mov_b32 s96, 0')
        e('s_mov_b32 s97, s96\ns_lshl_b32 s66, s31, 1\ns_sub_u32 s66, s66, 1')
        for r,(kb,vb) in enumerate(((32,36),(52,54),(56,58))):
            e('s_add_u32 s65, s66, s97\ns_cmp_eq_u32 s97, 0\ns_cselect_b32 s65, s31, s65')
            e('s_cselect_b32 s%d, s16, s6\ns_cselect_b32 s%d, s17, s7\ns_cselect_b32 s%d, s18, s8\ns_cselect_b32 s%d, s19, s9'%(kb,kb+1,vb,vb+1))
            e('s_lshl_b32 s65, s65, 24\ns_add_u32 s%d, s%d, s65\ns_addc_u32 s%d, s%d, 0\ns_add_u32 s%d, s%d, s65\ns_addc_u32 s%d, s%d, 0'%(kb,kb,kb+1,kb+1,vb,vb,vb+1,vb+1))
            if r<2: e('s_add_u32 s97, s97, 1\ns_cmp_eq_u32 s97, 3\ns_cselect_b32 s97, 0, s97')
        e('s_mov_b32 s34, 0x1000000\ns_mov_b32 s35, 0x20000\ns_mov_b32 s38, 0x1000000\ns_mov_b32 s39, 0x20000')
        if s.o['pattern']=='wg': e('s_lshl_b32 s60, s64, 20'); s.step=16384
        else: e('s_lshl_b32 s60, s64, 14'); s.step=262144
        e('s_lshl_b32 s65, s30, 12\ns_add_u32 s60, s60, s65\ns_mov_b32 s61, s60')
        if s.o.get('xm'):
            s.xorval('s64'); e('s_xor_b32 s69, s61, s68')
        e('v_and_b32 v1, 3, v0\nv_lshlrev_b32 v1, 10, v1\nv_bfe_u32 v2, v0, 2, 2\nv_lshl_add_u32 v1, v2, 8, v1\nv_lshrrev_b32 v2, 4, v0\nv_lshl_add_u32 v1, v2, 4, v1')
        e('v_lshlrev_b32 v2, 4, v0')
    def xorval(s,m):
        a,b=s.o['xm']
        s.e('s_mul_i32 s68, %s, %d\ns_mul_i32 s66, s31, %d\ns_add_u32 s68, s68, s66\ns_and_b32 s68, s68, 63\ns_mul_i32 s68, s68, %d'%(m,a,b,s.step))
    def masks(s):
        e=s.e
        e('v_and_b32 v8, 1, v0\nv_cmp_eq_u32 vcc, 1, v8\nv_mov_b32 v9, 0xffff\nv_mov_b32 v10, 0xffff0000\nv_cndmask_b32 v9, v9, v10, vcc\nv_bfe_u32 v8, v0, 1, 2')
        for q in range(4): e('v_cmp_eq_u32 vcc, %d, v8\ns_nop 1\nv_cndmask_b32 v%d, 0, v9, vcc'%(q,4+q))
    def issueK(s,sl):
        for i in range(4):
            r=s.RING+sl*32+4*i
            s.e('buffer_load_dwordx4 v[%d:%d], v1, s[32:35], %s offen offset:%d %s'%(r,r+3,'s69' if s.o.get('xm') else 's61',64*i,s.o['kfl']))
    def issueV(s,sl):
        for i in range(4):
            r=s.RING+sl*32+16+4*i
            s.e('buffer_load_dwordx4 v[%d:%d], v2, s[36:39], %s offen offset:%d %s'%(r,r+3,'s69' if s.o.get('xm') else 's61',1024*i,s.o['vfl']))
        s.e('s_add_u32 s61, s61, %d'%s.step)
        if s.o.get('xm'): s.e('s_xor_b32 s69, s61, s68')
    def wo_issue(s):
        e=s.e
        e('s_cmp_lt_u32 s64, 8\ns_cselect_b32 s44, s22, s12\ns_cselect_b32 s45, s23, s13')
        e('s_and_b32 s65, s64, 7\ns_lshl_b32 s65, s65, 5\ns_lshl_b32 s66, s31, 8\ns_add_u32 s65, s65, s66\ns_mul_i32 s65, s65, 1152')
        e('s_add_u32 s44, s44, s65\ns_addc_u32 s45, s45, 0\ns_sub_u32 s46, %d, s65\ns_mov_b32 s47, 0x20000'%(4096*1152))
        e('s_mul_i32 s65, s30, %d'%(8*1152))
        e('v_lshrrev_b32 v26, 4, v0\nv_mul_u32_u24 v26, 2304, v26\nv_and_b32 v27, 15, v0\nv_lshl_add_u32 v26, v27, 4, v26')
        for cb in range(5):
            if cb==4: e('s_mov_b32 exec_lo, 0x00ff00ff\ns_mov_b32 exec_hi, 0x00ff00ff')
            for rg in range(2):
                r=56+(rg*5+cb)*4
                e('buffer_load_dwordx4 v[%d:%d], v26, s[44:47], s65 offen offset:%d nt'%(r,r+3,rg*1152+cb*256))
        e('s_mov_b64 exec, -1')
    def q_operand(s,first):
        e=s.e
        if not first: e('s_add_u32 s96, s96, 1\ns_cmp_eq_u32 s96, 3\ns_cselect_b32 s96, 0, s96')
        e('s_add_u32 s66, s96, 1\ns_lshl_b32 s66, s66, 8\ns_cmp_eq_u32 s96, 0\ns_cselect_b32 s65, 256, 0\ns_cselect_b32 s66, 0, s66')
        e('v_bfe_u32 v19, v0, 3, 1\nv_mul_u32_u24 v19, s65, v19\nv_lshrrev_b32 v24, 4, v0\nv_lshl_add_u32 v24, v24, 4, s66\nv_add_u32 v19, v19, v24')
        for i in range(4): e('ds_read_b128 v[%d:%d], v19 offset:%d'%(40+4*i,43+4*i,L_Q+64*i))
        e('v_mov_b32 v12, 0\nv_mov_b32 v13, 0\nv_mov_b32 v14, 0\nv_mov_b32 v15, 0\nv_mov_b32 v16, 0xff800000\nv_mov_b32 v17, 0xff800000\nv_mov_b32 v18, 0')
        e('s_waitcnt lgkmcnt(0)')
    def tile(s,sl,n,rare):
        e=s.e
        kb=s.RING+sl*32; vb=kb+16
        if s.o.get('split') or s.o.get('poolk')=='a':
            e('s_waitcnt vmcnt(%d)'%(s.newer(sl,0))); n=s.newer(sl,1)
            for c in range(2):
                for rb in range(2):
                    d=24+4*rb; r=kb+4*(rb*2+c)
                    e('v_mfma_f32_16x16x32_bf16 v[%d:%d], v[%d:%d], v[%d:%d], %s'%(d,d+3,r,r+3,s.Q128+4*c,s.Q128+4*c+3,'0' if c==0 else 'v[%d:%d]'%(d,d+3)))
            s.issueK(sl); e('s_nop 3')
            for r in range(4): e('v_cndmask_b32 v%d, v%d, v%d, s[70:71]'%(8+r,24+2*r,25+2*r))
            for r in range(4): e('v_add_f32_dpp v%d, v%d, v%d quad_perm:[1,0,3,2] row_mask:0xf bank_mask:0xf'%(8+r,8+r,8+r))
        else:
            e('s_waitcnt vmcnt(%d)'%n)
            for i in range(4):
                e('v_mfma_f32_16x16x32_bf16 v[8:11], v[%d:%d], v[%d:%d], %s'%(kb+4*i,kb+4*i+3,40+4*i,43+4*i,'0' if i==0 else 'v[8:11]'))
            s.issueK(sl)
            e('s_nop 3')
        s.rnd(8)
        La=s.lab('rare'); Lb=s.lab('back'); rare.append((La,Lb))
        e('v_max3_f32 v19, v8, v9, v10\nv_max_f32 v19, v19, v11\nv_cmp_gt_f32 vcc, v19, v16\ns_cbranch_vccnz %s\n%s:'%(La,Lb))
        for r in range(4): e('v_fma_f32 v%d, v%d, s67, -v17'%(20+r,8+r))
        for r in range(4): e('v_exp_f32 v%d, v%d'%(20+r,20+r))
        e('v_add_f32 v18, v18, v20\nv_cvt_pk_bf16_f32 v20, v20, v20')
        for r in range(1,4): e('v_add_f32 v18, v18, v%d\nv_cvt_pk_bf16_f32 v%d, v%d, v%d'%(20+r,20+r,20+r,20+r))
        for r in range(4):
            for q in range(4): e('v_and_b32 v%d, v%d, v%d'%(24+4*r+q,20+r,4+q))
        e('s_waitcnt vmcnt(%d)'%n)
        e('s_nop 0')
        for r in range(4):
            e('v_mfma_f32_16x16x32_bf16 v[12:15], v[%d:%d], v[%d:%d], v[12:15]'%(24+4*r,27+4*r,vb+4*r,vb+4*r+3))
        s.issueV(sl)
    def att_loop(s,wo_prefetch):
        e=s.e; R=s.o['R']; n=4+8*(R-1); P=s.o.get('P',0); C=s.o.get('C',2); NI=64//R
        Lr=s.lab('round'); Ll=s.lab('loop'); Ln=s.lab('nosw'); rare=[]; Lfl=s.lab('flush'); Ldyn=s.lab('dyn')
        e('s_mov_b32 s62, 0\ns_mov_b32 s67, 0x%x'%CSC)
        s.q_operand(True)
        e('%s:\ns_mov_b32 s63, %d'%(Lr,NI))
        if P: e('s_cmp_eq_u32 s62, 2\ns_cselect_b32 s63, %d, s63\ns_cselect_b32 s76, 0, 1'%(NI-1-P))
        else: e('s_mov_b32 s76, 1')
        e('%s:'%Ll)
        e('s_cmp_lg_u32 s63, s76\ns_cbranch_scc1 %s'%Ln)
        e('s_mov_b32 s32, s52\ns_mov_b32 s33, s53\ns_mov_b32 s36, s54\ns_mov_b32 s37, s55\ns_mov_b64 s[52:53], s[56:57]\ns_mov_b64 s[54:55], s[58:59]\ns_mov_b32 s61, s60')
        if s.o.get('xm'): e('s_xor_b32 s69, s61, s68')
        e('s_cmp_lt_u32 s62, 2\ns_cselect_b32 s34, s34, 0\ns_mov_b32 s38, s34')
        e('%s:'%Ln)
        for sl in range(R): s.tile(sl,n,rare)
        e('s_sub_u32 s63, s63, 1\ns_cmp_lg_u32 s63, 0\ns_cbranch_scc1 %s'%Ll)
        if P:
            TK=s.RING+32*R; Lp=s.lab('dloop'); LA=s.o.get('LA',2); NS=R//C; PL=s.o.get('perlane',0)
            G_=16 if PL else 64; total=G_*P*R//C; sh=4 if PL else 6
            assert LA in (1,2) and (LA==1 or NS%2==0)
            e('s_cmp_lg_u32 s62, 2\ns_cbranch_scc1 %s'%Lfl)
            if PL: e('s_mov_b32 s77, s64\ns_lshl_b32 s81, s31, 2\ns_add_u32 s81, s81, s30\ns_lshl_b32 s81, s81, 8\ns_lshl_b32 s89, s30, 12\ns_add_u32 s89, s89, %d'%((NI-P)*R*s.step))
            else: e('s_lshl_b32 s77, s64, 2\ns_add_u32 s77, s77, s30\ns_lshl_b32 s81, s31, 10')
            e('s_mov_b32 s80, 0x7fffffff\ns_add_u32 s81, s81, %d\nv_mov_b32 v%d, 0'%(WS_CNT,TK+2))
            if LA==2: e('s_add_u32 s65, s77, %d\nv_mov_b32 v%d, s65'%(G_,TK+1))
            s.stamp(14)
            e('%s:'%Lp)
            msh=20 if s.o['pattern']=='wg' else 14
            for h in range(NS):
                tk=TK+(h%2 if LA==2 else 0); tkn=TK+((h+1)%2 if LA==2 else 0)
                e('s_cmp_lt_u32 s77, %d\ns_cselect_b32 s34, 0x1000000, 0\ns_cselect_b32 s65, s80, %d\ns_mov_b32 s38, s34\ns_min_u32 s80, s80, s65'%(total,R//C))
                e('s_cmp_eq_u32 s80, 0\ns_cbranch_scc1 %s\ns_sub_u32 s80, s80, 1'%Lfl)
                e('v_mov_b32 v%d, 1\ns_lshr_b32 s65, s77, %d\ns_and_b32 s65, s65, 63\ns_mul_i32 s65, s65, %d'%(tk,sh,C*s.step))
                if PL: e('s_add_u32 s61, s65, s89\ns_and_b32 s65, s77, 15')
                else: e('s_add_u32 s61, s65, %d\ns_and_b32 s65, s77, 3\ns_lshl_b32 s65, s65, 12\ns_add_u32 s61, s61, s65\ns_bfe_u32 s65, s77, 0x40002'%((NI-P)*R*s.step))
                if s.o.get('xm'): s.xorval('s65')
                e('s_lshl_b32 s65, s65, %d\ns_add_u32 s61, s61, s65'%msh)
                if s.o.get('xm'): e('s_xor_b32 s69, s61, s68')
                e('s_mov_b64 exec, 1\nbuffer_atomic_add v%d, v%d, s[40:43], s81 offen sc0 sc1\ns_mov_b64 exec, -1'%(tk,TK+2))
                for sl in range(h*C,h*C+C): s.tile(sl,n+1,rare)
                e('s_waitcnt vmcnt(%d)\nv_readfirstlane_b32 s77, v%d'%(8*C if LA==1 else 16*C+1,tkn))
                if s.o['stamp']: e('s_add_u32 s95, s95, 1')
            e('s_branch %s'%Lp)
        e('%s:'%Lfl)
        e('v_mov_b32 v19, v18\ns_nop 1\nv_permlane32_swap_b32 v18, v19\nv_add_f32 v18, v18, v19\nv_mov_b32 v19, v18\ns_nop 1\nv_permlane16_swap_b32 v18, v19\nv_add_f32 v18, v18, v19')
        e('s_lshl_b32 s65, s96, 2\ns_add_u32 s65, s65, s30\ns_mul_i32 s65, s65, 1040')
        e('v_lshrrev_b32 v19, 5, v0\nv_lshlrev_b32 v19, 9, v19\nv_and_b32 v20, 15, v0\nv_lshl_add_u32 v19, v20, 5, v19\nv_bfe_u32 v20, v0, 4, 1\nv_lshl_add_u32 v19, v20, 4, v19\nv_add_u32 v19, s65, v19')
        e('v_bfe_u32 v20, v0, 3, 1\nv_lshl_add_u32 v20, v20, 3, s65\nv_mov_b32 v22, v17\nv_mov_b32 v23, v18')
        e('ds_write_b128 v19, v[12:15] offset:%d\nds_write_b64 v20, v[22:23] offset:%d'%(L_PART,L_PART+1024))
        Ld=s.lab('done')
        e('s_add_u32 s62, s62, 1\ns_cmp_eq_u32 s62, 3\ns_cbranch_scc1 %s'%Ld)
        e('s_waitcnt lgkmcnt(0)')
        if s.o['stamp']:
            La=s.lab('st'); Lb=s.lab('st')
            e('s_cmp_eq_u32 s62, 1\ns_cbranch_scc1 %s'%La); s.stamp(9); e('s_branch %s\n%s:'%(Lb,La)); s.stamp(8); e('%s:'%Lb)
        if wo_prefetch:
            Lw=s.lab('nowo')
            e('s_cmp_lg_u32 s62, 1\ns_cbranch_scc1 %s'%Lw); s.wo_issue(); e('%s:'%Lw)
        s.q_operand(False)
        e('s_branch %s'%Lr)
        for La,Lb in rare:
            e('%s:'%La)
            e('v_max_f32 v19, v19, v16\nv_mov_b32 v24, v19\ns_nop 1\nv_permlane32_swap_b32 v19, v24\nv_max_f32 v19, v19, v24\nv_mov_b32 v24, v19\ns_nop 1\nv_permlane16_swap_b32 v19, v24\nv_max_f32 v16, v19, v24')
            e('v_mul_f32 v24, s67, v16\nv_sub_f32 v25, v17, v24\nv_exp_f32 v25, v25\nv_mov_b32 v17, v24\ns_nop 0\nv_mul_f32 v18, v18, v25')
            e('v_mov_b32_dpp v26, v25 row_newbcast:0 row_mask:0x3 bank_mask:0xf\nv_mov_b32_dpp v26, v25 row_newbcast:8 row_mask:0xc bank_mask:0xf')
            for r in range(4): e('v_mul_f32 v%d, v%d, v26'%(12+r,12+r))
            e('s_branch %s'%Lb)
        e('%s:'%Ld)
    thr=0; pub=None; VO=228; Q128=236; VS=244; MA0=245; S2=246; MA1=227; K128=250
    def ph_setup(s):
        e=s.e
        e('s_lshl_b32 s65, s31, 24\ns_add_u32 s32, s16, s65\ns_addc_u32 s33, s17, 0\ns_add_u32 s98, s18, s65\ns_addc_u32 s99, s19, 0')
        e('s_lshl_b32 s65, s31, 25\ns_add_u32 s52, s6, s65\ns_addc_u32 s53, s7, 0\ns_add_u32 s54, s8, s65\ns_addc_u32 s55, s9, 0')
        e('s_add_u32 s56, s52, 0x1000000\ns_addc_u32 s57, s53, 0\ns_add_u32 s58, s54, 0x1000000\ns_addc_u32 s59, s55, 0')
        e('s_mov_b32 s34, 0x1000000\ns_mov_b32 s35, 0x20000\ns_mov_b32 s36, s32\ns_mov_b32 s37, s33\ns_mov_b32 s38, 0x1000000\ns_mov_b32 s39, 0x20000')
        s.step=16384
        e('s_lshl_b32 s60, s64, 20\ns_lshl_b32 s65, s30, 12\ns_add_u32 s60, s60, s65\ns_mov_b32 s61, s60\ns_mov_b32 s76, 32768')
        e('v_and_b32 v1, 3, v0\nv_lshlrev_b32 v1, 10, v1\nv_bfe_u32 v2, v0, 2, 2\nv_lshl_add_u32 v1, v2, 8, v1\nv_lshrrev_b32 v2, 4, v0\nv_lshl_add_u32 v1, v2, 4, v1')
        k=s.K128
        e('v_lshlrev_b32 v%d, 4, v2\nv_and_b32 v2, 1, v0\nv_lshl_add_u32 v%d, v2, 6, v%d\nv_bfe_u32 v2, v0, 1, 1\nv_lshl_add_u32 v%d, v2, 10, v%d\nv_bfe_u32 v2, v0, 2, 2\nv_lshl_add_u32 v%d, v2, 8, v%d'%(k,k,k,k,k,k,k))
        e('v_lshlrev_b32 v2, 4, v0')
        s.ph_offs('K')
    def ph_offs(s,kind):
        e=s.e
        k128=[(s.K128,o) for o in (0,128,2048,2176)]; k64=[(1,64*i) for i in range(4)]; vl=[(2,1024*i) for i in range(4)]
        km=s.o.get('kmix','ab')
        ka={'a':k128,'b':k64}[km[0]]; kb={'a':k128,'b':k64}[km[1]]
        t2=4096 if s.o.get('adj') else 16384
        sets={'K':ka+[(r,o+t2) for r,o in kb],'V':vl+[(r,o+t2) for r,o in vl],'P':(k128 if s.o.get('poolk')=='a' else k64)+vl}[kind]
        if s.o.get('split'):
            sets={'K':k128+[(r,o+16384) for r,o in k128],'V':sets,'P':k128+vl}[kind]
            e('s_mov_b32 s68, 0x%x\ns_mov_b32 s96, 0x%x'%(0x0f0f0f0f if kind=='V' else 0x55555555, 0x55555555 if kind=='K' else 0x0f0f0f0f))
        for i,(r,o) in enumerate(sets):
            e('v_add_u32 v%d, %d, v%d'%(s.VO+i,o,r) if o else 'v_mov_b32 v%d, v%d'%(s.VO+i,r))
    def nops(s,sl,half):
        sp=s.o.get('split')
        return 8 if (sp and sp[(sl*2+half)%len(sp)]=='1') else 4
    def newer(s,sl,half):
        R=s.o['R']; seq=[(a,h) for a in range(R) for h in range(2)]; k=seq.index((sl,half))
        return sum(s.nops(*seq[(k+j)%(2*R)]) for j in range(1,2*R))
    def ph_issue(s,sl,half):
        if s.nops(sl,half)==8:
            m=(68,69) if half==0 else (96,97)
            for p in range(2):
                s.e('s_mov_b32 exec_lo, s%d\ns_mov_b32 exec_hi, s%d'%(m[0],m[0]) if p==0 else 's_not_b64 exec, exec')
                for i in range(4):
                    r=s.RING+sl*32+half*16+4*i
                    s.e('buffer_load_dwordx4 v[%d:%d], v%d, %s, s61 offen nt'%(r,r+3,s.VO+half*4+i,'s[36:39]' if half else 's[32:35]'))
            s.e('s_mov_b64 exec, -1')
            if half: s.e('s_add_u32 s61, s61, s76')
            return
        for i in range(4):
            r=s.RING+sl*32+half*16+4*i
            if isinstance(s.thr,str): s.e('s_waitcnt vmcnt(%s)'%s.thr[i])
            elif s.thr and i%(s.thr//100 or s.o.get('burst',4))==0: s.e('s_waitcnt vmcnt(%d)'%(s.thr%100))
            s.e('buffer_load_dwordx4 v[%d:%d], v%d, %s, s61 offen nt'%(r,r+3,s.VO+half*4+i,'s[36:39]' if half else 's[32:35]'))
        if half: s.e('s_add_u32 s61, s61, s76')
    def ph_switch(s,kind,a,b,start):
        e=s.e
        e('s_mov_b32 s32, s%d\ns_mov_b32 s33, s%d\ns_mov_b32 s36, s%d\ns_mov_b32 s37, s%d'%(a,a+1,b,b+1))
        e('s_add_u32 s61, s60, %d\ns_mov_b32 s76, %d'%(start,16384 if kind=='P' else 32768))
        s.ph_offs(kind)
    def ph_q(s,ty):
        e=s.e
        e('v_lshrrev_b32 v24, 4, v0\nv_lshlrev_b32 v24, 4, v24')
        if ty==0: e('v_bfe_u32 v19, v0, 3, 1\nv_lshl_add_u32 v24, v19, 8, v24')
        e('v_and_b32 v19, 1, v0\nv_lshl_add_u32 v25, v19, 6, v24')
        o=L_Q+(0 if ty==0 else (ty+1)*256)
        for i in range(0 if (s.o.get('split') or (s.o.get('kmix')=='aa' and (ty<2 or s.o.get('poolk')=='a' or s.o.get('vp')))) else 4): e('ds_read_b128 v[%d:%d], v24 offset:%d'%(40+4*i,43+4*i,o+64*i))
        for c in range(2): e('ds_read_b128 v[%d:%d], v25 offset:%d'%(s.Q128+4*c,s.Q128+4*c+3,o+128*c))
        e('v_mov_b32 v16, 0xff800000')
        s.ph_saddr(ty)
        e('s_waitcnt lgkmcnt(0)')
    def ph_saddr(s,ty):
        e=s.e
        e('s_lshl_b32 s65, s30, 13\ns_add_u32 s65, s65, %d\nv_lshrrev_b32 v19, 4, v0\nv_lshl_add_u32 v%d, v19, 4, s65'%(L_S+(64 if ty==2 else 0),s.VS))
        if ty==0: e('v_bfe_u32 v19, v0, 3, 1\nv_lshl_add_u32 v%d, v19, 6, v%d'%(s.VS,s.VS))
    def ph_loop(s,niter,body,switch):
        e=s.e; L=s.lab('pl'); Ln=s.lab('pn')
        e('s_mov_b32 s63, %d\n%s:'%(niter,L))
        if switch:
            e('s_cmp_lg_u32 s63, 1\ns_cbranch_scc1 %s'%Ln); switch(); e('%s:'%Ln)
        for sl in range(s.o['R']): body(sl)
        e('v_add_u32 v%d, %d, v%d\ns_sub_u32 s63, s63, 1\ns_cmp_lg_u32 s63, 0\ns_cbranch_scc1 %s'%(s.VS,256*s.o['R'],s.VS,L))
    def ph_kstep(s,sl):
        e=s.e; km='aa' if s.o.get('split') else s.o.get('kmix','ab')
        for half in range(2):
            kb=s.RING+sl*32+16*half; S=8 if half==0 else 32
            e('s_waitcnt vmcnt(%d)'%s.newer(sl,half))
            if km[half]=='a':
                for c in range(2):
                    for rb in range(2):
                        d=24+4*rb; r=kb+4*(rb*2+c)
                        e('v_mfma_f32_16x16x32_bf16 v[%d:%d], v[%d:%d], v[%d:%d], %s'%(d,d+3,r,r+3,s.Q128+4*c,s.Q128+4*c+3,'0' if c==0 else 'v[%d:%d]'%(d,d+3)))
                s.thr=s.o.get('kthr',0)
                s.ph_issue(sl,half); e('s_nop 3')
                for r in range(4): e('v_add_f32_dpp v%d, v%d, v%d quad_perm:[1,0,3,2] row_mask:0xf bank_mask:0xf'%(S+r,25+2*r,24+2*r))
            else:
                for i in range(4):
                    e('v_mfma_f32_16x16x32_bf16 v[%d:%d], v[%d:%d], v[%d:%d], %s'%(S,S+3,kb+4*i,kb+4*i+3,40+4*i,43+4*i,'0' if i==0 else 'v[%d:%d]'%(S,S+3)))
                s.thr=s.o.get('kthr',0)
                s.ph_issue(sl,half); e('s_nop 3')
            s.rnd(S)
            e('v_max3_f32 v16, v%d, v%d, v16\nv_max3_f32 v16, v%d, v%d, v16'%(S,S+1,S+2,S+3))
            if s.pub is not None:
                e('v_mov_b32 v38, v37\nv_mov_b32 v37, s73\nv_mov_b32 v39, s73\ns_mov_b32 exec_lo, 0x00010001\ns_mov_b32 exec_hi, 0x00010001')
                e('buffer_store_dwordx4 v[36:39], v19, s[40:43], s68 offen offset:%d sc1\ns_mov_b64 exec, -1\ns_nop 0'%((s.pub*8+sl*2+half)*64))
                continue
            e('s_mov_b64 exec, s[70:71]\nds_write_b128 v%d, v[%d:%d] offset:%d\ns_mov_b64 exec, -1'%(s.VS,S,S+3,(sl*2+half)*128))
    def rnd(s,S):
        if not s.o.get('mimic',1): return
        e=s.e
        for ps in range(2):
            e('v_cvt_pk_bf16_f32 v36, v%d, v%d\nv_cvt_pk_bf16_f32 v37, v%d, v%d'%(S,S+1,S+2,S+3))
            e('v_lshlrev_b32 v%d, 16, v36\nv_and_b32 v%d, s69, v36\nv_lshlrev_b32 v%d, 16, v37\nv_and_b32 v%d, s69, v37'%(S,S+1,S+2,S+3))
            if ps==0:
                for r in range(4): e('v_mul_f32 v%d, s62, v%d'%(S+r,S+r))
    def ph_kend(s,dst):
        e=s.e
        e('v_mov_b32 v19, v16\ns_nop 1\nv_permlane32_swap_b32 v16, v19\nv_max_f32 v16, v16, v19\nv_mov_b32 v19, v16\ns_nop 1\nv_permlane16_swap_b32 v16, v19\nv_max_f32 v16, v16, v19\ns_nop 1')
        e('v_mov_b32_dpp v%d, v16 row_newbcast:0 row_mask:0xf bank_mask:0x3\nv_mov_b32_dpp v%d, v16 row_newbcast:8 row_mask:0xf bank_mask:0xc'%(dst,dst))
    def ph_vstart(s,ty,src):
        e=s.e
        e('v_mov_b32 v16, v%d\nv_mul_f32 v17, s67, v%d\nv_mov_b32 v18, 0\nv_mov_b32 v12, 0\nv_mov_b32 v13, 0\nv_mov_b32 v14, 0\nv_mov_b32 v15, 0'%(src,src))
        s.ph_saddr(ty)
    def ph_vstep(s,sl):
        e=s.e; n=4+8*(s.o['R']-1)
        e('ds_read_b128 v[8:11], v%d offset:%d\nds_read_b128 v[%d:%d], v%d offset:%d'%(s.VS,sl*256,s.S2,s.S2+3,s.VS,sl*256+128))
        for half in range(2):
            vb=s.RING+sl*32+16*half; S=8 if half==0 else s.S2
            e('s_waitcnt lgkmcnt(%d)'%(1-half))
            for r in range(4): e('v_fma_f32 v%d, v%d, s67, -v17'%(20+r,S+r))
            for r in range(4): e('v_exp_f32 v%d, v%d'%(20+r,20+r))
            for r in range(4): e('v_add_f32 v18, v18, v%d\nv_cvt_pk_bf16_f32 v%d, v%d, v%d'%(20+r,20+r,20+r,20+r))
            for r in range(4):
                for q in range(4): e('v_and_b32 v%d, v%d, v%d'%(24+4*r+q,20+r,4+q))
            e('s_waitcnt vmcnt(%d)\ns_nop 0'%s.newer(sl,half))
            for r in range(4):
                e('v_mfma_f32_16x16x32_bf16 v[12:15], v[%d:%d], v[%d:%d], v[12:15]'%(24+4*r,27+4*r,vb+4*r,vb+4*r+3))
            s.thr=s.o.get('vthr',0)
            s.ph_issue(sl,half)
    def flush(s,ty):
        e=s.e
        e('v_mov_b32 v19, v18\ns_nop 1\nv_permlane32_swap_b32 v18, v19\nv_add_f32 v18, v18, v19\nv_mov_b32 v19, v18\ns_nop 1\nv_permlane16_swap_b32 v18, v19\nv_add_f32 v18, v18, v19')
        e('s_mul_i32 s65, s30, 1040\ns_add_u32 s65, s65, %d'%(ty*4160))
        e('v_lshrrev_b32 v19, 5, v0\nv_lshlrev_b32 v19, 9, v19\nv_and_b32 v20, 15, v0\nv_lshl_add_u32 v19, v20, 5, v19\nv_bfe_u32 v20, v0, 4, 1\nv_lshl_add_u32 v19, v20, 4, v19\nv_add_u32 v19, s65, v19')
        e('v_bfe_u32 v20, v0, 3, 1\nv_lshl_add_u32 v20, v20, 3, s65\nv_mov_b32 v22, v17\nv_mov_b32 v23, v18')
        e('ds_write_b128 v19, v[12:15] offset:%d\nds_write_b64 v20, v[22:23] offset:%d\ns_waitcnt lgkmcnt(0)'%(L_PART,L_PART+1024))
    def att_phased(s):
        e=s.e; R=s.o['R']; C=2; n=4+8*(R-1); T=s.o.get('T',16); assert R==4
        NF=32//R; Ns=(64-T)//2; assert Ns%R==0; NS_=Ns//R
        TK=s.RING+32*R; total=(64 if s.o.get('team') else 16)*T//C; rare=[]; Lfl=s.lab('flush'); Lp=s.lab('dloop')
        def draw(): e('v_mov_b32 v%d, 1\ns_mov_b64 exec, 1\nbuffer_atomic_add v%d, v%d, s[40:43], s81 offen sc0 sc1\ns_mov_b64 exec, -1'%(TK,TK,TK+1))
        def take():
            e('s_waitcnt vmcnt(16)\nv_readfirstlane_b32 s77, v%d'%TK)
            if s.o['stamp']: e('s_add_u32 s95, s95, 1')
        def site(k,inpool):
            e('s_cmp_lt_u32 s77, %d\ns_cselect_b32 s34, 0x1000000, 0\ns_cselect_b32 s65, s80, %d\ns_mov_b32 s38, s34\ns_min_u32 s80, s80, s65'%(total,k))
            if inpool: e('s_cmp_eq_u32 s80, 0\ns_cbranch_scc1 %s\ns_sub_u32 s80, s80, 1'%Lfl)
            if s.o.get('team'): e('s_bfe_u32 s65, s77, 0x50006\ns_lshl_b32 s65, s65, 15\ns_add_u32 s61, s65, %d\ns_bfe_u32 s65, s77, 0x40002\ns_lshl_b32 s65, s65, 20\ns_add_u32 s61, s61, s65\ns_and_b32 s65, s77, 3\ns_lshl_b32 s65, s65, 12\ns_add_u32 s61, s61, s65'%(2*Ns*16384))
            else: e('s_lshr_b32 s65, s77, 4\ns_and_b32 s65, s65, 31\ns_lshl_b32 s65, s65, 15\ns_add_u32 s61, s65, s89\ns_and_b32 s65, s77, 15\ns_lshl_b32 s65, s65, 20\ns_add_u32 s61, s61, s65')
            draw()
        e('s_mov_b32 s67, 0x%x\ns_mov_b32 s70, 0x01010101\ns_mov_b32 s71, 0x01010101\ns_mov_b32 s62, 0x%x\ns_mov_b32 s69, 0xffff0000'%(LOG2E if s.o.get('mimic',1) else CSC,SCALE))
        s.ph_q(0); s.ph_loop(NF,s.ph_kstep,lambda: s.ph_switch('V',98,98,0)); s.ph_kend(s.MA0); s.stamp(8)
        s.ph_vstart(0,s.MA0); s.ph_loop(NF,s.ph_vstep,lambda: s.ph_switch('K',52,52,0)); s.flush(0); s.stamp(9)
        s.wo_issue()
        s.ph_q(1); s.ph_loop(NF,s.ph_kstep,lambda: s.ph_switch('K',56,56,0)); s.ph_kend(s.MA0)
        s.ph_q(2); s.ph_loop(NS_,s.ph_kstep,lambda: s.ph_switch('V',54,54,0)); s.ph_kend(s.MA1); s.stamp(13)
        s.ph_vstart(1,s.MA0); s.ph_loop(NF,s.ph_vstep,lambda: s.ph_switch('V',58,58,0)); s.flush(1)
        if 'b' in s.o.get('tlb',''): e('s_barrier')
        s.ph_vstart(2,s.MA1); s.ph_loop(NS_-2,s.ph_vstep,None)
        if s.o.get('team'): e('s_lshl_b32 s81, s31, 10\ns_add_u32 s81, s81, %d'%WS_CNT)
        else: e('s_lshl_b32 s81, s31, 2\ns_add_u32 s81, s81, s30\ns_lshl_b32 s81, s81, 8\ns_add_u32 s81, s81, %d'%WS_CNT)
        e('s_lshl_b32 s89, s30, 12\ns_add_u32 s89, s89, %d\ns_mov_b32 s80, 0x7fffffff\nv_mov_b32 v%d, 0'%(2*Ns*16384,TK+1))
        if s.o.get('C1'):
            total=16*T
            def draw1(r): e('v_mov_b32 v%d, 1\ns_mov_b64 exec, 1\nbuffer_atomic_add v%d, v%d, s[40:43], s81 offen sc0 sc1\ns_mov_b64 exec, -1'%(r,r,TK+1))
            def site1(sl,k,inpool):
                r=TK+2*(sl%2)
                e('s_waitcnt vmcnt(16)\nv_readfirstlane_b32 s77, v%d'%r)
                if s.o['stamp']: e('s_add_u32 s95, s95, 1')
                e('s_cmp_lt_u32 s77, %d\ns_cselect_b32 s34, 0x1000000, 0\ns_cselect_b32 s65, s80, %d\ns_mov_b32 s38, s34\ns_min_u32 s80, s80, s65'%(total,k))
                if inpool: e('s_cmp_eq_u32 s80, 0\ns_cbranch_scc1 %s\ns_sub_u32 s80, s80, 1'%Lfl)
                e('s_lshr_b32 s65, s77, 4\ns_and_b32 s65, s65, 63\ns_lshl_b32 s65, s65, 14\ns_add_u32 s61, s65, s89\ns_and_b32 s65, s77, 15\ns_lshl_b32 s65, s65, 20\ns_add_u32 s61, s61, s65')
                draw1(r)
            s.ph_vstep(0); s.ph_vstep(1); draw1(TK); s.ph_vstep(2); draw1(TK+2); s.ph_vstep(3)
            e('v_add_u32 v%d, %d, v%d'%(s.VS,256*R,s.VS))
            s.stamp(14)
            s.ph_switch('P',56,58,0)
            for sl in range(4): site1(sl,sl,False); s.ph_vstep(sl)
            s.issueK=lambda sl: s.ph_issue(sl,0); s.issueV=lambda sl: s.ph_issue(sl,1)
            s.thr=s.o.get('pthr',0)
            e('%s:'%Lp)
            for sl in range(4): site1(sl,4,True); s.tile(sl,n,rare)
        else:
            s.ph_vstep(0); s.ph_vstep(1); draw(); s.ph_vstep(2); s.ph_vstep(3); take()
            e('v_add_u32 v%d, %d, v%d'%(s.VS,256*R,s.VS))
            s.stamp(14)
            s.ph_switch('P',56,58,0)
            site(0,False); s.ph_vstep(0); s.ph_vstep(1); take()
            site(1,False); s.ph_vstep(2); s.ph_vstep(3); take()
            s.issueK=lambda sl: s.ph_issue(sl,0); s.issueV=lambda sl: s.ph_issue(sl,1)
            s.thr=s.o.get('pthr',0)
            if s.o.get('poolk')=='a': e('s_mov_b32 s70, 0xaaaaaaaa\ns_mov_b32 s71, 0xaaaaaaaa')
            e('%s:'%Lp)
            for h in range(2):
                site(2,True)
                for sl in range(h*C,h*C+C): s.tile(sl,n,rare)
                take()
        e('s_branch %s'%Lp)
        s.rare(rare)
        e('%s:'%Lfl); t0=len(s.t); s.flush(2)
        return Lfl,t0
    def att_vpool(s):
        e=s.e; R=4; T=s.o['T']; NF=8; Ns=(64-T)//2; NS_=Ns//R; TK=s.RING+32*R; total=16*T//2
        SC=[40,44,48,52,236,240,246,250]; rare=[]; redo=[]; Lfl=s.lab('flush'); Lp=s.lab('dloop')
        e('s_mov_b32 s67, 0x%x\ns_mov_b32 s70, 0x01010101\ns_mov_b32 s71, 0x01010101\ns_mov_b32 s62, 0x%x\ns_mov_b32 s69, 0xffff0000'%(LOG2E,SCALE))
        s.ph_q(0); s.ph_loop(NF,s.ph_kstep,lambda: s.ph_switch('V',98,98,0)); s.ph_kend(s.MA0); s.stamp(8)
        s.ph_vstart(0,s.MA0); s.ph_loop(NF,s.ph_vstep,lambda: s.ph_switch('K',52,52,0)); s.flush(0); s.stamp(9)
        s.wo_issue()
        s.ph_q(1); s.ph_loop(NF,s.ph_kstep,lambda: s.ph_switch('K',56,56,0)); s.ph_kend(s.MA0)
        s.ph_q(2); s.ph_loop(NS_,s.ph_kstep,None)
        e('s_lshl_b32 s68, s3, 2\ns_add_u32 s68, s68, s30\ns_mul_i32 s68, s68, %d\ns_add_u32 s68, s68, %d\nv_lshrrev_b32 v19, 4, v0\nv_lshlrev_b32 v19, 4, v19'%(T*64,WS_S))
        kt=s.o['kthr']; s.o['kthr']=s.o.get('pubthr',408)
        for it in range(T//8):
            if it==T//8-1: s.ph_switch('V',54,54,0)
            s.pub=it
            for sl in range(R): s.ph_kstep(sl)
        s.pub=None; s.o['kthr']=kt
        s.ph_kend(s.MA1); s.stamp(13)
        s.ph_vstart(1,s.MA0); s.ph_loop(NF,s.ph_vstep,lambda: s.ph_switch('V',58,58,0)); s.flush(1)
        s.ph_vstart(2,s.MA1); s.ph_loop(NS_-2,s.ph_vstep,None)
        e('s_lshl_b32 s81, s31, 2\ns_add_u32 s81, s81, s30\ns_lshl_b32 s81, s81, 8\ns_add_u32 s81, s81, %d'%WS_CNT)
        e('s_lshl_b32 s89, s30, 12\ns_add_u32 s89, s89, %d\ns_mov_b32 s80, 0x7fffffff\nv_mov_b32 v%d, 0'%(2*Ns*16384,TK+1))
        e('s_lshl_b32 s66, s31, 6\ns_add_u32 s66, s66, s30\ns_mul_i32 s66, s66, %d\ns_add_u32 s66, s66, %d\nv_lshrrev_b32 v1, 4, v0\nv_lshl_add_u32 v1, v1, 4, s66'%(T*64,WS_S))
        def draw(r): e('v_mov_b32 v%d, 1\ns_mov_b64 exec, 1\nbuffer_atomic_add v%d, v%d, s[40:43], s81 offen sc0 sc1\ns_mov_b64 exec, -1'%(r,r,TK+1))
        def scload(sl): return ['buffer_load_dwordx4 v[%d:%d], v1, s[40:43], s%d offen offset:%d sc1'%(SC[2*sl+h],SC[2*sl+h]+3,48+sl,64*h) for h in range(2)]
        def site(sl,k,sc=True):
            r=TK+2*(sl%2)
            e('s_waitcnt vmcnt(16)\nv_readfirstlane_b32 s77, v%d'%r)
            if s.o['stamp']: e('s_add_u32 s95, s95, 1')
            e('s_cmp_lt_u32 s77, %d\ns_cselect_b32 s34, 0x1000000, 0\ns_cselect_b32 s65, s80, %d\ns_cselect_b32 s77, s77, 0\ns_mov_b32 s38, s34\ns_min_u32 s80, s80, s65'%(total,k))
            e('s_lshr_b32 s65, s77, 4\ns_lshl_b32 s%d, s65, 7\ns_lshl_b32 s65, s65, 15\ns_add_u32 s61, s65, s89\ns_and_b32 s65, s77, 15\ns_mul_i32 s66, s65, %d\ns_add_u32 s%d, s%d, s66\ns_lshl_b32 s65, s65, 20\ns_add_u32 s61, s61, s65'%(48+sl,4*T*64,48+sl,48+sl))
            draw(r)
            for l in (scload(sl) if sc else []): e(l)
        s.ph_vstep(0); s.ph_vstep(1); draw(TK); s.ph_vstep(2); draw(TK+2); s.ph_vstep(3)
        e('v_add_u32 v%d, %d, v%d'%(s.VS,256*R,s.VS))
        s.stamp(14)
        vt=s.o['vthr']; s.o['vthr']=s.o.get('pthr',0)
        for sl in range(R): site(sl,sl,sl<3); s.ph_vstep(sl)
        for l in scload(3): e(l)
        s.o['vthr']=vt; s.thr=s.o.get('pthr',0)
        e('%s:'%Lp)
        for sl in range(R):
            a,b=SC[2*sl],SC[2*sl+1]; Lr=s.lab('redo'); Lc=s.lab('chk'); redo.append((Lr,Lc,sl))
            e('s_cmp_eq_u32 s80, 0\ns_cbranch_scc1 %s\ns_sub_u32 s80, s80, 1\ns_mov_b32 s72, 0x200000\ns_waitcnt vmcnt(28)\n%s:'%(Lfl,Lc))
            e('v_xor_b32 v19, s73, v%d\nv_xor_b32 v20, s73, v%d\nv_xor_b32 v21, s73, v%d\nv_xor_b32 v22, s73, v%d\nv_or_b32 v19, v19, v20\nv_or3_b32 v19, v19, v21, v22\nv_cmp_ne_u32 vcc, 0, v19\ns_cbranch_vccnz %s\n%s_ok:'%(a+1,a+3,b+1,b+3,Lr,Lc))
            e('v_lshlrev_b32 v8, 16, v%d\nv_and_b32 v9, s69, v%d\nv_lshlrev_b32 v10, 16, v%d\nv_and_b32 v11, s69, v%d\nv_mov_b32 v%d, v%d\nv_mov_b32 v%d, v%d'%(a,a,a+2,a+2,s.MA0,b,s.MA1,b+2))
            site(sl,3)
            for half in range(2):
                vb=s.RING+sl*32+16*half
                if half: e('v_lshlrev_b32 v8, 16, v%d\nv_and_b32 v9, s69, v%d\nv_lshlrev_b32 v10, 16, v%d\nv_and_b32 v11, s69, v%d'%(s.MA0,s.MA0,s.MA1,s.MA1))
                La=s.lab('rare'); Lb=s.lab('back'); rare.append((La,Lb))
                e('v_max3_f32 v19, v8, v9, v10\nv_max_f32 v19, v19, v11\nv_cmp_gt_f32 vcc, v19, v16\ns_cbranch_vccnz %s\n%s:'%(La,Lb))
                for r in range(4): e('v_fma_f32 v%d, v%d, s67, -v17'%(20+r,8+r))
                for r in range(4): e('v_exp_f32 v%d, v%d'%(20+r,20+r))
                for r in range(4): e('v_add_f32 v18, v18, v%d\nv_cvt_pk_bf16_f32 v%d, v%d, v%d'%(20+r,20+r,20+r,20+r))
                for r in range(4):
                    for q in range(4): e('v_and_b32 v%d, v%d, v%d'%(24+4*r+q,20+r,4+q))
                e('s_waitcnt vmcnt(28)\ns_nop 0')
                for r in range(4): e('v_mfma_f32_16x16x32_bf16 v[12:15], v[%d:%d], v[%d:%d], v[12:15]'%(24+4*r,27+4*r,vb+4*r,vb+4*r+3))
                s.ph_issue(sl,half)
        e('s_branch %s'%Lp)
        s.rare(rare)
        for Lr,Lc,sl in redo:
            e('%s:'%Lr)
            for l in scload(sl): e(l)
            e('s_waitcnt vmcnt(0)\ns_sub_u32 s72, s72, 1\ns_cmp_lg_u32 s72, 0\ns_cbranch_scc1 %s\ns_branch %s_ok'%(Lc,Lc))
        e('%s:'%Lfl); t0=len(s.t); s.flush(2)
        return Lfl,t0
    def rare(s,rare):
        e=s.e
        for La,Lb in rare:
            e('%s:'%La)
            e('v_max_f32 v19, v19, v16\nv_mov_b32 v24, v19\ns_nop 1\nv_permlane32_swap_b32 v19, v24\nv_max_f32 v19, v19, v24\nv_mov_b32 v24, v19\ns_nop 1\nv_permlane16_swap_b32 v19, v24\nv_max_f32 v16, v19, v24')
            e('v_mul_f32 v24, s67, v16\nv_sub_f32 v25, v17, v24\nv_exp_f32 v25, v25\nv_mov_b32 v17, v24\ns_nop 0\nv_mul_f32 v18, v18, v25')
            e('v_mov_b32_dpp v26, v25 row_newbcast:0 row_mask:0x3 bank_mask:0xf\nv_mov_b32_dpp v26, v25 row_newbcast:8 row_mask:0xc bank_mask:0xf')
            for r in range(4): e('v_mul_f32 v%d, v%d, v26'%(12+r,12+r))
            e('s_branch %s'%Lb)
    def wg_combine(s):
        e=s.e
        e('s_sub_u32 s65, s30, 1\ns_max_i32 s65, s65, 0\ns_mul_i32 s65, s65, 4160\ns_cmp_eq_u32 s30, 1\ns_cselect_b32 s66, 512, 0\ns_cselect_b32 s68, 8, 0\ns_add_u32 s66, s66, s65\ns_add_u32 s68, s68, s65')
        e('v_lshl_add_u32 v19, v0, 3, s66\nv_mov_b32 v20, s68')
        for i in range(4):
            e('ds_read_b64 v[%d:%d], v19 offset:%d\nds_read_b64 v[%d:%d], v20 offset:%d'%(24+2*i,25+2*i,L_PART+i*1040,32+2*i,33+2*i,L_PART+1024+i*1040))
        e('s_lshl_b32 s65, s31, 2\ns_add_u32 s65, s65, s30\ns_lshl_b32 s65, s65, 4\ns_add_u32 s65, s65, s64')
        if s.o['seg']: e('s_lshl_b32 s66, s65, 11\ns_add_u32 s66, s66, %d\nv_lshrrev_b32 v19, 2, v0\nv_lshlrev_b32 v19, 7, v19\nv_and_b32 v20, 3, v0\nv_lshl_add_u32 v19, v20, 4, v19'%WS_PO)
        else: e('s_lshl_b32 s66, s65, 10\ns_add_u32 s66, s66, %d\ns_lshl_b32 s65, s65, 4\ns_add_u32 s65, s65, %d\nv_lshlrev_b32 v19, 4, v0'%(WS_PO,WS_PML))
        e('v_mov_b32 v20, 0\nv_mov_b32 v13, s73\nv_mov_b32 v15, s73\nv_mov_b32 v9, s73\nv_mov_b32 v11, s73')
        e('s_waitcnt lgkmcnt(0)')
        e('v_max3_f32 v8, v32, v34, v36\nv_max_f32 v8, v8, v38')
        for i in range(4): e('v_sub_f32 v%d, v%d, v8'%(32+2*i,32+2*i))
        for i in range(4): e('v_exp_f32 v%d, v%d'%(32+2*i,32+2*i))
        e('s_nop 0\nv_mul_f32 v12, v32, v24\nv_mul_f32 v14, v32, v25\nv_mul_f32 v10, v32, v33')
        for i in range(1,4): e('v_fmac_f32 v12, v%d, v%d\nv_fmac_f32 v14, v%d, v%d\nv_fmac_f32 v10, v%d, v%d'%(32+2*i,24+2*i,32+2*i,25+2*i,32+2*i,33+2*i))
        e('buffer_store_dwordx4 v[12:15], v19, s[40:43], s66 offen sc1')
        if s.o['seg']: e('buffer_store_dwordx4 v[8:11], v19, s[40:43], s66 offen offset:64 sc1')
        else: e('s_mov_b64 exec, 1\nbuffer_store_dwordx4 v[8:11], v20, s[40:43], s65 offen sc1\ns_mov_b64 exec, -1')
    def tagpoll(s,loads,tagregs,tmp,pipe=True):
        e=s.e; L=s.lab('poll'); Lx=s.lab('pollx')
        if s.o.get('pp') and pipe:
            X=[l.replace('v[24:27]','v[48:51]').replace('v[28:31]','v[52:55]') for l in loads]
            Y=[l.replace('v[24:27]','v[120:123]').replace('v[28:31]','v[124:127]') for l in loads]
            def chk(d,lab):
                e('v_xor_b32 v%d, s73, v%d'%(tmp,tagregs[0]+d))
                for t in tagregs[1:]: e('v_xor_b32 v%d, s73, v%d\nv_or_b32 v%d, v%d, v%d'%(tmp+1,t+d,tmp,tmp,tmp+1))
                for r in (0,2,4,6): e('v_mov_b32 v%d, v%d'%(24+r,24+d+r))
                e('v_cmp_ne_u32 vcc, 0, v%d\ns_cbranch_vccz %s'%(tmp,lab))
            e('s_mov_b32 s72, 0x200000')
            for l in X: e(l)
            e('s_sleep %d\n%s:'%(s.o['pp'],L))
            for l in Y: e(l)
            e('s_waitcnt vmcnt(2)'); chk(24,Lx)
            for l in X: e(l)
            e('s_waitcnt vmcnt(2)'); chk(96,Lx)
            e('s_sub_u32 s72, s72, 1\ns_cmp_lg_u32 s72, 0\ns_cbranch_scc1 %s\n%s:'%(L,Lx))
            return
        e('s_mov_b32 s72, 0x200000\n%s:'%L)
        for l in loads: e(l)
        e('s_waitcnt vmcnt(0)')
        e('v_xor_b32 v%d, s73, v%d'%(tmp,tagregs[0]))
        for t in tagregs[1:]: e('v_xor_b32 v%d, s73, v%d\nv_or_b32 v%d, v%d, v%d'%(tmp+1,t,tmp,tmp,tmp+1))
        e('v_cmp_ne_u32 vcc, 0, v%d\ns_cbranch_vccz %s'%(tmp,Lx))
        if s.o.get('sleep'): e('s_sleep %d'%s.o['sleep'])
        e('s_sub_u32 s72, s72, 1\ns_cmp_lg_u32 s72, 0\ns_cbranch_scc1 %s\n%s:'%(L,Lx))
    def team_loads(s):
        e=s.e
        e('s_lshr_b32 s65, s64, 2\ns_lshl_b32 s66, s31, 2\ns_add_u32 s65, s65, s66')
        if s.o['seg']:
            e('s_lshl_b32 s66, s65, 15\ns_and_b32 s68, s64, 3\ns_lshl_b32 s68, s68, 2\ns_add_u32 s68, s68, s30\ns_lshl_b32 s68, s68, 7\ns_add_u32 s66, s66, s68\ns_add_u32 s66, s66, %d'%WS_PO)
            e('v_and_b32 v19, 15, v0\nv_lshlrev_b32 v19, 11, v19\nv_lshrrev_b32 v21, 4, v0\nv_lshl_add_u32 v19, v21, 4, v19')
            s.tagpoll(['buffer_load_dwordx4 v[24:27], v19, s[40:43], s66 offen offset:64 sc1','buffer_load_dwordx4 v[28:31], v19, s[40:43], s66 offen sc1'],[25,27,29,31],32)
            return
        e('s_lshl_b32 s66, s65, 14\ns_and_b32 s68, s64, 3\ns_lshl_b32 s68, s68, 8\ns_add_u32 s66, s66, s68\ns_lshl_b32 s68, s30, 6\ns_add_u32 s66, s66, s68\ns_add_u32 s66, s66, %d'%WS_PO)
        e('s_lshl_b32 s65, s65, 8\ns_add_u32 s65, s65, %d'%WS_PML)
        e('v_and_b32 v19, 15, v0\nv_lshlrev_b32 v20, 4, v19\nv_lshlrev_b32 v19, 10, v19\nv_lshrrev_b32 v21, 4, v0\nv_lshl_add_u32 v19, v21, 4, v19')
        s.tagpoll(['buffer_load_dwordx4 v[24:27], v20, s[40:43], s65 offen sc1','buffer_load_dwordx4 v[28:31], v19, s[40:43], s66 offen sc1'],[25,27,29,31],32)
    def rowred(s,op,regs):
        for ror in (8,4,2,1):
            s.e('s_nop 1')
            for r in regs: s.e('%s_dpp v%d, v%d, v%d row_ror:%d row_mask:0xf bank_mask:0xf'%(op,r,r,r,ror))
    def team_proj(s):
        e=s.e
        e('v_mov_b32 v21, v24'); s.rowred('v_max_f32',[21])
        e('v_sub_f32 v24, v24, v21\nv_exp_f32 v24, v24\ns_nop 0\nv_mul_f32 v26, v26, v24\nv_mul_f32 v28, v28, v24\nv_mul_f32 v30, v30, v24')
        s.rowred('v_add_f32',[26,28,30])
        e('v_rcp_f32 v26, v26\ns_nop 0\nv_mul_f32 v28, v28, v26\nv_mul_f32 v30, v30, v26\nv_cvt_pk_bf16_f32 v28, v28, v28\nv_cvt_pk_bf16_f32 v30, v30, v30')
        for rg in range(2):
            for q in range(4): e('v_and_b32 v%d, v%d, v%d'%(32+4*rg+q,28+2*rg,4+q))
        e('s_nop 1')
        for rg in range(2):
            for cb in range(5):
                r=56+(rg*5+cb)*4; d=100+4*cb
                e('v_mfma_f32_16x16x32_bf16 v[%d:%d], v[%d:%d], v[%d:%d], %s'%(d,d+3,32+4*rg,35+4*rg,r,r+3,'0' if rg==0 else 'v[%d:%d]'%(d,d+3)))
        e('s_mul_i32 s65, s30, 2560\nv_and_b32 v19, 15, v0\nv_lshl_add_u32 v19, v19, 5, s65\nv_bfe_u32 v20, v0, 4, 1\nv_lshl_add_u32 v19, v20, 4, v19')
        e('s_nop 4\ns_mov_b32 exec_hi, 0')
        for cb in range(5): e('ds_write_b128 v19, v[%d:%d] offset:%d'%(100+4*cb,103+4*cb,L_YL+cb*512))
        e('s_mov_b64 exec, -1')
        e('s_cmp_lt_u32 s64, 8\ns_cselect_b32 s69, 1, 0\ns_mul_i32 s65, s69, %d\ns_and_b32 s66, s64, 7\ns_lshl_b32 s68, s31, 3\ns_add_u32 s66, s66, s68\ns_lshl_b32 s66, s66, 6\ns_add_u32 s65, s65, s66\ns_add_u32 s65, s65, %d'%(72*8192,WS_Y))
        e('v_lshlrev_b32 v19, 4, v3\nv_lshrrev_b32 v20, 1, v3\nv_lshlrev_b32 v20, 13, v20\nv_and_b32 v21, 1, v3\nv_lshl_add_u32 v20, v21, 5, v20')
        e('v_mov_b32 v41, s73\nv_mov_b32 v43, s73\nv_mov_b32 v45, s73\nv_mov_b32 v47, s73')
        e('s_waitcnt lgkmcnt(0)\ns_barrier')
        Ls=s.lab('noy')
        e('v_cmp_gt_u32 vcc, 144, v3\ns_and_saveexec_b64 s[70:71], vcc\ns_cbranch_execz %s'%Ls)
        for w in range(4): e('ds_read_b128 v[%d:%d], v19 offset:%d'%(24+4*w,27+4*w,L_YL+w*2560))
        e('s_waitcnt lgkmcnt(0)')
        for r in range(4): e('v_add_f32 v%d, v%d, v%d\nv_add_f32 v%d, v%d, v%d'%(24+r,24+r,28+r,32+r,32+r,36+r))
        for r in range(4): e('v_add_f32 v%d, v%d, v%d'%(40+2*r,24+r,32+r))
        e('buffer_store_dwordx4 v[40:43], v20, s[40:43], s65 offen sc1\nbuffer_store_dwordx4 v[44:47], v20, s[40:43], s65 offen offset:16 sc1')
        e('%s:\ns_mov_b64 exec, s[70:71]'%Ls)
    def final(s):
        e=s.e
        e('s_cmp_ge_u32 s3, 144\ns_cbranch_scc1 %s'%s.end)
        e('s_lshl_b32 s65, s3, 13\ns_add_u32 s65, s65, %d\ns_add_u32 s66, s65, 4096\nv_lshlrev_b32 v19, 4, v3'%WS_Y)
        e('s_mov_b32 s44, s24\ns_mov_b32 s45, s25\ns_mov_b32 s46, 2304\ns_mov_b32 s47, 0x20000')
        e('s_lshl_b32 s68, s30, 5\nv_and_b32 v21, 3, v0\nv_lshl_add_u32 v21, v21, 3, s68')
        s.tagpoll(['buffer_load_dwordx4 v[24:27], v19, s[40:43], s65 offen sc1','buffer_load_dwordx4 v[28:31], v19, s[40:43], s66 offen sc1'],[25,27,29,31],32)
        if s.o['stamp']: e('s_sub_u32 s95, 0x200000, s72'); s.stamp(12)
        e('v_add_f32 v24, v24, v28\nv_add_f32 v25, v26, v30')
        for ror in (4,8):
            e('s_nop 1')
            for r in range(2): e('v_add_f32_dpp v%d, v%d, v%d row_ror:%d row_mask:0xf bank_mask:0xf'%(24+r,24+r,24+r,ror))
        for sw in ('32','16'):
            for r in range(2): e('v_mov_b32 v%d, v%d'%(28+r,24+r))
            e('s_nop 1')
            for r in range(2): e('v_permlane%s_swap_b32 v%d, v%d'%(sw,24+r,28+r))
            for r in range(2): e('v_add_f32 v%d, v%d, v%d'%(24+r,24+r,28+r))
        e('s_mov_b64 exec, 0xf\nds_write_b64 v21, v[24:25] offset:%d\ns_mov_b64 exec, -1'%L_FL)
        e('s_waitcnt lgkmcnt(0)\ns_barrier')
        e('s_cmp_lg_u32 s30, 0\ns_cbranch_scc1 %s'%s.end)
        L=s.lab('noep')
        e('s_cmp_lg_u32 s3, 0\ns_cbranch_scc1 %s'%L)
        e('s_mov_b64 exec, 1\nv_mov_b32 v21, %d\nv_mov_b32 v20, s73\nbuffer_store_dword v20, v21, s[40:43], 0 offen\n%s:'%(WS_E,L))
        e('s_mov_b64 exec, 0xff\nv_lshlrev_b32 v19, 2, v0')
        for w in range(4): e('ds_read_b32 v%d, v19 offset:%d'%(24+w,L_FL+32*w))
        e('s_lshl_b32 s65, s3, 4\nv_lshlrev_b32 v19, 1, v0\ns_waitcnt lgkmcnt(0)')
        e('v_add_f32 v24, v24, v25\nv_add_f32 v26, v26, v27\nv_add_f32 v24, v24, v26\nv_cvt_pk_bf16_f32 v24, v24, v24')
        e('buffer_store_short v24, v19, s[44:47], s65 offen')
    def dryify(s,t0):
        lines='\n'.join(s.t[t0:]).split('\n'); out=[]; i=0
        while i<len(lines):
            l=lines[i]
            if l.startswith('buffer_') or l=='s_barrier':
                j=i
                while j<len(lines) and (lines[j].startswith('buffer_') or lines[j]=='s_barrier'): j+=1
                L=s.lab('skip'); out.append('s_cbranch_execz %s'%L); out+=lines[i:j]; out.append('%s:'%L); i=j; continue
            m=re.match(r's_mov_b64 exec, (-1|1|0x[0-9a-f]+)$',l)
            if m: l='s_and_b64 exec, s[82:83], %s'%m.group(1)
            if l.startswith('s_and_saveexec_b64') and lines[i+1].startswith('s_cbranch_execz'):
                out.append(l); tgt=lines[i+1].split()[1]; L=s.lab('fall')
                out.append('s_cmp_eq_u32 s82, 0\ns_cbranch_scc1 %s\ns_cbranch_execz %s\n%s:'%(L,tgt,L)); i+=2; continue
            out.append(l); i+=1
        s.t[t0:]=out
    def stamp(s,slot,kidx=0,first=False,cnt=False):
        if not s.o['stamp']: return
        e=s.e
        e('s_memrealtime s[92:93]\ns_getreg_b32 s94, hwreg(HW_REG_XCC_ID)\ns_waitcnt lgkmcnt(0)')
        e('s_add_u32 s84, s28, 0x60000000\ns_addc_u32 s85, s29, 0\ns_mov_b32 s86, 0x1000000\ns_mov_b32 s87, 0x20000')
        e('s_lshl_b32 s88, s2, 3\ns_add_u32 s88, s88, s30\ns_lshl_b32 s88, s88, 6\ns_add_u32 s88, s88, %d'%(slot*4))
        e('s_mov_b64 s[78:79], exec\ns_mov_b64 exec, 1\nv_mov_b32 v252, 0\nv_mov_b32 v253, s92')
        e('buffer_store_dword v253, v252, s[84:87], s88 offen')
        if first: e('v_mov_b32 v254, s90\nv_mov_b32 v255, s94\nbuffer_store_dwordx2 v[254:255], v252, s[84:87], s88 offen offset:4')
        if cnt: e('v_mov_b32 v253, s95\nbuffer_store_dword v253, v252, s[84:87], s88 offen offset:4')
        if slot==4: e('v_mov_b32 v253, s95\nbuffer_store_dword v253, v252, s[84:87], s88 offen offset:44')
        e('s_mov_b64 exec, s[78:79]')
    def fused(s):
        e=s.e; R=s.o['R']; s.o['perlane']=1; s.o.setdefault('LA',1); s.step=16384
        k=s.px+NAME+'_kernel' if not s.px else s.px+'fused_kernel'
        e('.text\n.globl %s\n.p2align 8\n.type %s,@function\n%s:'%(k,k,k))
        s.end=s.lab('end'); Lsvc=s.lab('svc'); Lq=s.lab('qc'); Lsv2=s.lab('svc2')
        e('s_cmp_ge_u32 s2, 256\ns_cbranch_scc1 %s'%s.end)
        e('s_load_dwordx16 s[4:19], s[0:1], 0\ns_load_dwordx8 s[20:27], s[0:1], 64\ns_load_dwordx2 s[28:29], s[0:1], 96')
        if s.o['stamp']: e('s_memrealtime s[90:91]\ns_mov_b32 s95, 0')
        e('v_lshrrev_b32 v1, 6, v0\nv_mov_b32 v3, v0\nv_and_b32 v0, 63, v0\nv_readfirstlane_b32 s30, v1')
        e('s_mov_b32 s3, s2\ns_lshr_b32 s31, s2, 4\ns_and_b32 s64, s2, 15\ns_mov_b32 s43, 0x20000\ns_mov_b32 s42, %d\ns_mov_b64 s[82:83], -1'%WS_SIZE)
        e('s_cmp_eq_u32 s30, 4\ns_cbranch_scc1 %s'%Lsvc)
        e('v_lshrrev_b32 v4, 2, v3\nv_and_b32 v5, 3, v3\nv_lshlrev_b32 v5, 4, v5\nv_lshl_add_u32 v5, v4, 13, v5\nv_lshlrev_b32 v4, 1, v4')
        e('s_and_b32 s65, s64, 3\ns_lshl_b32 s65, s65, 7\ns_lshr_b32 s66, s64, 3\ns_lshl_b32 s66, s66, 6\ns_add_u32 s65, s65, s66\ns_lshl_b32 s66, s31, 9\ns_add_u32 s65, s65, s66')
        e('s_mov_b32 s46, %d\ns_mov_b32 s47, s43\ns_mov_b32 s50, 1152\ns_mov_b32 s51, s43'%(576*8192))
        e('s_mov_b32 s34, 0x1000000\ns_mov_b32 s35, s43\ns_mov_b32 s38, s34\ns_mov_b32 s39, s43\ns_mov_b32 s76, 32768')
        e('s_lshl_b32 s60, s64, 20\ns_lshl_b32 s61, s30, %d\ns_add_u32 s60, s60, s61\ns_mov_b32 s61, s60\ns_lshl_b32 s62, s31, 24'%(13 if s.o.get('adj') else 12))
        kk=s.K128
        e('v_lshrrev_b32 v2, 4, v0\nv_lshlrev_b32 v%d, 4, v2\nv_bfe_u32 v2, v0, 2, 2\nv_lshl_add_u32 v%d, v2, 8, v%d\nv_and_b32 v2, 3, v0\nv_lshl_add_u32 v1, v2, 10, v%d'%(kk,kk,kk,kk))
        e('v_and_b32 v2, 1, v0\nv_lshl_add_u32 v%d, v2, 6, v%d\nv_bfe_u32 v2, v0, 1, 1\nv_lshl_add_u32 v%d, v2, 10, v%d\nv_lshlrev_b32 v2, 4, v0'%(kk,kk,kk,kk))
        s.ph_offs('K')
        e('s_and_b32 s66, s64, 4\ns_cmp_eq_u32 s66, 0\ns_waitcnt lgkmcnt(0)')
        e('s_cselect_b32 s44, s20, s10\ns_cselect_b32 s45, s21, s11\ns_cselect_b32 s48, s14, s4\ns_cselect_b32 s49, s15, s5')
        e('s_add_u32 s32, s16, s62\ns_addc_u32 s33, s17, 0\ns_mov_b32 s36, s32\ns_mov_b32 s37, s33')
        halves=[]
        for sl in range(R): halves+=[lambda sl=sl: s.ph_issue(sl,0), lambda sl=sl: s.ph_issue(sl,1)]
        pre0,pre,hk,thr=s.o.get('fill',(0,1,(4,8),4))
        for h in halves[:pre0]: h()
        wb,xb,ab,tb=56,40,24,20
        xl=s.o.get('xlast')
        for i in range(9):
            if not xl: e('buffer_load_ushort v%d, v4, s[48:51], 0 offen offset:%d'%(xb+i,i*128))
            e('buffer_load_dwordx4 v[%d:%d], v5, s[44:47], s65 offen nt'%(wb+4*i,wb+4*i+3))
            if i<8: e('s_add_u32 s65, s65, %d'%(64*8192))
        for i in range(9 if xl else 0): e('buffer_load_ushort v%d, v4, s[48:51], 0 offen offset:%d'%(xb+i,i*128))
        for h in halves[pre0:pre0+pre]: h()
        if s.o.get('qst'): e('s_memrealtime s[100:101]')
        e('s_mov_b32 s40, s28\ns_mov_b32 s41, s29\ns_add_u32 s74, s28, %d\ns_addc_u32 s75, s29, 0\ns_load_dword s73, s[74:75], 0'%WS_E)
        e('s_add_u32 s98, s18, s62\ns_addc_u32 s99, s19, 0\ns_lshl_b32 s62, s62, 1')
        e('s_add_u32 s52, s6, s62\ns_addc_u32 s53, s7, 0\ns_add_u32 s54, s8, s62\ns_addc_u32 s55, s9, 0')
        e('s_add_u32 s56, s52, s34\ns_addc_u32 s57, s53, 0\ns_add_u32 s58, s54, s34\ns_addc_u32 s59, s55, 0')
        e('%s:\ns_mov_b32 s66, 0xffff0000'%Lq); t0=len(s.t)
        newer=4*pre; nh=pre0+pre
        for i in range(9):
            e('s_waitcnt vmcnt(%d)'%(newer+(1 if xl else 2)*(8-i)))
            if s.o.get('qst') and i in (0,8): e('s_memrealtime s[%d:%d]'%((84,85) if i==0 else (86,87)))
            if i in hk: halves[nh](); nh+=1; newer+=4
            e('v_lshlrev_b32 v%d, 16, v%d'%(xb+i,xb+i))
            for d in range(4):
                e('v_lshlrev_b32 v%d, 16, v%d\nv_and_b32 v%d, s66, v%d'%(tb,wb+4*i+d,tb+1,wb+4*i+d))
                op='v_mul_f32' if i==0 else 'v_fmac_f32'
                e('%s v%d, v%d, v%d\n%s v%d, v%d, v%d'%(op,ab+2*d,xb+i,tb,op,ab+2*d+1,xb+i,tb+1))
        e('v_lshrrev_b32 v%d, 4, v3\nv_and_b32 v%d, 3, v3\nv_lshlrev_b32 v%d, 5, v%d\nv_lshl_add_u32 v%d, v%d, 7, v%d'%(tb,tb+1,tb+1,tb+1,tb,tb,tb+1))
        for ror in (4,8):
            for j in range(8): e('v_add_f32_dpp v%d, v%d, v%d row_ror:%d row_mask:0xf bank_mask:0xf'%(ab+j,ab+j,ab+j,ror))
        e('ds_write_b128 v%d, v[%d:%d] offset:%d\nds_write_b128 v%d, v[%d:%d] offset:%d'%(tb,ab,ab+3,L_QR,tb,ab+4,ab+7,L_QR+16))
        e('s_waitcnt lgkmcnt(0)')
        if s.o.get('qdry',1): s.dryify(t0); e('s_cbranch_execz %s'%Lsv2)
        e('s_barrier')
        e('s_add_u32 s73, s73, 0x%x'%TAGINC)
        if s.o.get('qst'): e('s_mov_b32 s62, s84\ns_mov_b32 s63, s86')
        s.stamp(0,first=True)
        if s.o.get('qst'):
            e('s_mov_b64 exec, 1\nv_mov_b32 v253, s100\nv_mov_b32 v254, s62\nv_mov_b32 v255, s63\nbuffer_store_dword v253, v252, s[84:87], s88 offen offset:20\nbuffer_store_dwordx2 v[254:255], v252, s[84:87], s88 offen offset:24\ns_mov_b64 exec, -1')
        for n_,h in enumerate(halves[nh:]):
            e('s_waitcnt vmcnt(%d)'%thr); h()
            if n_==0: s.masks()
        s.stamp(11)
        e('s_barrier')
        s.stamp(3)
        Ltail,t0=(s.att_vpool() if s.o.get('vp') else s.att_phased()); s.stamp(4)
        e('s_barrier')
        q=s.o.get('qst')
        s.wg_combine(); (q or s.stamp(5))
        s.team_loads(); (q or s.stamp(6))
        s.team_proj(); (q or s.stamp(7)); s.final(); s.stamp(10)
        s.dryify(t0)
        e('s_endpgm')
        e('%s:\ns_setprio 3\ns_waitcnt lgkmcnt(0)'%Lsvc)
        e('s_mov_b32 s40, s28\ns_mov_b32 s41, s29\ns_add_u32 s74, s28, %d\ns_addc_u32 s75, s29, 0\ns_load_dword s73, s[74:75], 0'%WS_E)
        t0_=s.o.get('tlb0','')
        if 'k' in t0_: e('s_lshl_b32 s65, s2, 20\ns_add_u32 s44, s16, s65\ns_addc_u32 s45, s17, 0\ns_load_dword s46, s[44:45], 0')
        if 'w' in t0_:
            e('s_and_b32 s66, s64, 4\ns_cmp_eq_u32 s66, 0\ns_cselect_b32 s48, s20, s10\ns_cselect_b32 s49, s21, s11')
            e('s_add_u32 s44, s48, 0x200000\ns_addc_u32 s45, s49, 0\ns_load_dword s46, s[44:45], 0\ns_add_u32 s44, s48, 0x400000\ns_addc_u32 s45, s49, 0\ns_load_dword s46, s[44:45], 0')
        if 'q' in t0_: e('s_load_dword s46, s[28:29], 0')
        if s.o.get('touch'):
            e('s_and_b32 s66, s64, 4\ns_cmp_eq_u32 s66, 0\ns_cselect_b32 s44, s20, s10\ns_cselect_b32 s45, s21, s11\ns_mov_b32 s46, %d\ns_mov_b32 s47, s43'%(576*8192))
            e('s_lshl_b32 s62, s31, 24\ns_add_u32 s32, s16, s62\ns_addc_u32 s33, s17, 0\ns_mov_b32 s34, 0x1000000\ns_mov_b32 s35, s43\ns_lshl_b32 s61, s64, 20')
            e('v_lshlrev_b32 v19, 21, v0\nv_mov_b32 v20, 0\ns_mov_b64 exec, 1')
            if 'k' in s.o['touch']: e('buffer_load_dword v22, v20, s[32:35], s61 offen nt')
            if 'w' in s.o['touch']: e('s_mov_b64 exec, 0x6\nbuffer_load_dword v23, v19, s[44:47], 0 offen nt')
            e('s_mov_b64 exec, -1')
        L=s.lab('notlead')
        e('s_cmp_lg_u32 s64, 0\ns_cbranch_scc1 %s'%L)
        e('s_lshl_b32 s65, s31, 10\ns_add_u32 s65, s65, %d\nv_lshlrev_b32 v19, 8, v0\nv_mov_b32 v20, 0\ns_mov_b64 exec, 0xf'%(WS_CNT))
        e('buffer_store_dword v20, v19, s[40:43], s65 offen sc1\ns_mov_b64 exec, -1\n%s:'%L)
        if s.o.get('qdry',1):
            for r in range(8): e('v_mov_b32 v%d, 0'%(s.VO+r))
            e('s_mov_b64 s[32:33], s[28:29]\ns_mov_b32 s34, 0\ns_mov_b32 s35, s43\ns_mov_b64 s[36:37], s[28:29]\ns_mov_b32 s38, 0\ns_mov_b32 s39, s43\ns_mov_b32 s61, 0\ns_mov_b32 s76, 0')
            e('s_mov_b64 s[82:83], 0\ns_mov_b64 exec, 0\ns_branch %s\n%s:\ns_mov_b64 exec, -1'%(Lq,Lsv2))
        e('s_waitcnt vmcnt(0) lgkmcnt(0)\ns_add_u32 s73, s73, 0x%x'%TAGINC)
        e('s_barrier')
        s.q_finish(24,'sc1')
        s.stamp(12)
        e('s_lshl_b32 s65, s31, 11\nv_lshlrev_b32 v19, 5, v0\nv_lshlrev_b32 v21, 4, v0')
        s.tagpoll(['buffer_load_dwordx4 v[24:27], v19, s[40:43], s65 offen sc1','buffer_load_dwordx4 v[28:31], v19, s[40:43], s65 offen offset:16 sc1'],[25,27,29,31],32,pipe=False)
        e('v_mov_b32 v25, v26\nv_mov_b32 v26, v28\nv_mov_b32 v27, v30')
        e('ds_write_b128 v21, v[24:27] offset:%d\ns_waitcnt lgkmcnt(0)'%L_Q)
        e('s_barrier')
        tl=s.o.get('tlb','')
        if tl:
            def touch(p,off):
                e('s_add_u32 s44, s%d, %s\ns_addc_u32 s45, s%d, 0\ns_load_dword s46, s[44:45], 0'%(p,off,p+1))
            if 's' in tl:
                e('s_lshl_b32 s65, s31, 4\ns_add_u32 s65, s65, s64\ns_lshl_b32 s65, s65, 20'); touch(18,'s65')
                e('s_lshl_b32 s65, s31, 5\ns_add_u32 s65, s65, s64\ns_lshl_b32 s65, s65, 20'); touch(6,'s65'); touch(8,'s65')
                e('s_add_u32 s65, s65, 0x1000000'); touch(6,'s65'); touch(8,'s65')
            if 'w' in tl:
                e('s_cmp_lt_u32 s64, 8\ns_cselect_b32 s48, s22, s12\ns_cselect_b32 s49, s23, s13')
                e('s_and_b32 s65, s64, 7\ns_lshl_b32 s65, s65, 5\ns_lshl_b32 s66, s31, 8\ns_add_u32 s65, s65, s66\ns_mul_i32 s65, s65, 1152'); touch(48,'s65')
                e('s_add_u32 s65, s65, %d'%(32*1152-4)); touch(48,'s65'); e('s_waitcnt lgkmcnt(0)')
            if 'b' in tl: e('s_waitcnt lgkmcnt(0)\ns_barrier')
            if 'p' in tl:
                e('s_lshl_b32 s65, s31, 25\ns_add_u32 s65, s65, 0x10f0000')
                for j in range(8):
                    touch(6,'s65'); touch(8,'s65'); e('s_add_u32 s65, s65, 0x200000')
                    if j%2: e('s_waitcnt lgkmcnt(0)')
            if 'o' in tl: e('s_load_dword s46, s[24:25], 0\ns_mov_b32 s65, %d'%WS_Y); touch(28,'s65')
            e('s_waitcnt lgkmcnt(0)')
        e('s_setprio 0\nv_mov_b32 v19, 0\nv_mov_b32 v20, 0\nv_mov_b32 v21, 0\ns_mov_b64 s[82:83], 0\ns_mov_b64 exec, 0\ns_mov_b32 s3, 0\ns_mov_b32 s30, 0\ns_branch %s'%Ltail)
        nv=254 if s.o.get('vp') else 251
        s.tail(k,nv)
        launch='; @launch grid=(256,1,1) block=(320,1,1) lds=%d'%LDS_SIZE
        return launch,'%s:256:320:%d'%(k,LDS_SIZE),[(k,nv,320)]
    def build(s):
        launch,spec,ks=getattr(s,s.o['mode'])()
        return HDR+launch+'\n'+DOC+'.amdgcn_target "amdgcn-amd-amdhsa--gfx950"\n'+'\n'.join(s.t)+'\n',spec,ks
def write(path,**o):
    t,spec,ks=G(**o).build(); open(path,'w').write(t); return spec,ks
if __name__=='__main__':
    o=eval('dict(%s)'%(sys.argv[2] if len(sys.argv)>2 else ''))
    print(write(sys.argv[1],**o))
```
